```python
import torch

def _softmax(x, axis=-1):
    return torch.softmax(x, dim=axis)
def _gelu(x):
    return torch.nn.functional.gelu(x, approximate="tanh")
def _silu(x):
    return torch.nn.functional.silu(x)
def _sigmoid(x):
    return torch.sigmoid(x)
def _layernorm(x, axis=-1, eps=1e-5):
    m = x.mean(dim=axis, keepdim=True)
    v = x.var(dim=axis, keepdim=True, unbiased=False)
    return (x - m) / torch.sqrt(v + eps)
def _scatter_add(tgt, idx, src, axis=0):
    return tgt.clone().index_add_(axis, idx, src)
def _segment_sum(src, seg, n):
    out = torch.zeros((n,) + src.shape[1:], dtype=src.dtype)
    return out.index_add_(0, seg, src)
def _pad(x, pw):
    flat = tuple(v for pair in reversed(pw) for v in pair)
    return torch.nn.functional.pad(x, flat)

kernel_name = 'gated_mix__sliding_block_cached__glu_gated_reglu__decode'

def setup_inputs():

    _w = (lambda a: (lambda t: t.to(torch.bfloat16) if t.is_floating_point() else t)(torch.as_tensor(a)))
    def _A_setup():
        B, Sq, D = 1, 1, 640
        Hq, Hkv, Sk, Dh = 32, 32, 32768, 192
        assert Hq % Hkv == 0, (Hq, Hkv)
        return {
            "x": _w((lambda *s: torch.randn(*s, dtype=torch.bfloat16) * 0.05)(B, Sq, D)),
            "k_cache": _w((lambda *s: torch.randn(*s, dtype=torch.bfloat16) * 6.4)(B, Hkv, Sk, Dh)),
            "v_cache": _w((lambda *s: torch.randn(*s, dtype=torch.bfloat16) * 0.05)(B, Hkv, Sk, Dh)),
            "wq": _w((lambda *s: torch.randn(*s, dtype=torch.bfloat16) * 6.4)(D, Hq * Dh) * (D ** -0.5)),
            "wo": _w((lambda *s: torch.randn(*s, dtype=torch.bfloat16) * 0.05)(Hq * Dh, D) * ((Hq * Dh) ** -0.5)),
        }
    _A_in = _A_setup()

    def _B_setup():
        B, S, D, F = 1, 1, 640, 1536
        return {
            "x": _w((lambda *s: torch.randn(*s, dtype=torch.bfloat16) * 0.05)(B, S, D)),
            "W_gate": _w((lambda *s: torch.randn(*s, dtype=torch.bfloat16) * 0.4)(D, F) * (2.0 / D) ** 0.5),
            "W_up": _w((lambda *s: torch.randn(*s, dtype=torch.bfloat16) * 0.4)(D, F) * (2.0 / D) ** 0.5),
            "W_down": _w((lambda *s: torch.randn(*s, dtype=torch.bfloat16) * 0.4)(F, D) * (1.0 / F) ** 0.5),
        }
    _B_in = _B_setup()

    return {
        "A_x": _A_in["x"],
        "A_k_cache": _A_in["k_cache"],
        "A_v_cache": _A_in["v_cache"],
        "A_wq": _A_in["wq"],
        "A_wo": _A_in["wo"],
        "B_x": _B_in["x"],
        "B_W_gate": _B_in["W_gate"],
        "B_W_up": _B_in["W_up"],
        "B_W_down": _B_in["W_down"],
        "gate_w": _w((lambda *s: torch.randn(*s, dtype=torch.bfloat16) * 0.1)(640) * 16.0),
    }

def reference(A_x, A_k_cache, A_v_cache, A_wq, A_wo, B_x, B_W_gate, B_W_up, B_W_down, gate_w):
    def _A_ref(x, k_cache, v_cache, wq, wo):
        B, Sq, D = x.shape
        Hq, Dh = 32, 192
        Hkv, Sk = k_cache.shape[1], k_cache.shape[2]
        W = min(4096, max(256, Sk // 4))
        rep = Hq // Hkv
        q = (lambda x, *d: x.permute(*d))((x @ wq).reshape(B, Sq, Hq, Dh), 0, 2, 1, 3)
        k = (lambda x, n, axis: torch.repeat_interleave(x, n, dim=axis))(k_cache[:, :, Sk - W:, :], rep, axis=1)
        v = (lambda x, n, axis: torch.repeat_interleave(x, n, dim=axis))(v_cache[:, :, Sk - W:, :], rep, axis=1)
        scores = torch.einsum("bhqd,bhkd->bhqk", q, k) * (Dh ** -0.5)
        p = _softmax(scores, axis=-1)
        o = torch.einsum("bhqk,bhkd->bhqd", p, v)
        return (lambda x, *d: x.permute(*d))(o, 0, 2, 1, 3).reshape(B, Sq, Hq * Dh) @ wo

    def _B_ref(x, W_gate, W_up, W_down):
        gate = torch.einsum("bsd,df->bsf", x, W_gate)
        up = torch.einsum("bsd,df->bsf", x, W_up)
        gate = gate * (lambda x, dt: x.to(dt))(gate > 0, gate.dtype)
        h = gate * up
        return torch.einsum("bsf,fd->bsd", h, W_down)

    x = A_x
    g = _sigmoid((x * gate_w).sum(-1, keepdims=True))
    a = _A_ref(x, A_k_cache, A_v_cache, A_wq, A_wo)
    b = _B_ref(x, B_W_gate, B_W_up, B_W_down)
    return g * a + (1 - g) * b
```

```python
import sys

KN = "gated_mix__sliding_block_cached__glu_gated_reglu__decode"

class G:
    def __init__(self):
        self.L = []
        self.uid = 0
    def e(self, s):
        self.L.append("    " + s)
    def lab(self, s):
        self.L.append(s + ":")
    def new(self, p):
        self.uid += 1
        return "L_%s_%d" % (p, self.uid)

def gen(opt):
    g = G()
    e = g.e
    NT = " nt" if opt.get("nt", 0) else ""
    sK, sV, sWQ, sWO, sF, sWD, sX, sGW, sOUT, sWS = [32 + 4*i for i in range(10)]
    def srd(b): return "s[%d:%d]" % (b, b+3)
    sH, sS, sW, sT, sJ = 72, 73, 74, 75, 76
    sA, sB, sC, sD = 77, 78, 79, 80
    sCnt = 81
    sLog2e = 82
    sKoff, sVoff = 83, 84
    WS_Q = 4096
    WS_O = WS_Q + 256*3072
    WS_R = WS_O + 256*2048
    WS_END = WS_R + 256*5120
    L_QP = 0
    L_PT = 24576
    L_QB = L_PT + 2048
    L_HB = L_QB + 512
    L_GB = L_HB + 64
    L_ST = L_GB + 64
    L_WB = L_ST + 64
    L_S = 32768
    L_END = L_S + 73728
    LDS = (L_END + 255)//256*256
    vTid, vLane, vOff12, vHalf, vC = 0, 1, 2, 3, 4
    T0, T1, T2 = 5, 6, 7
    vAcc = 8
    vAccF = 14
    vTmp = 20
    def KS(i): return 64 + 4*i
    def VS(i): return (192 + 4*i) if i < 16 else (64 + 4*(i-16))
    vWQd = 192
    vFd = 212
    vXq = 224
    vXf = 230
    vGx = 234
    vGw = 240

    hdr = open("cdna_kernels/%s.s.ref" % KN).read().split("\n")
    top = []
    for ln in hdr:
        if ln.startswith("; @launch"): break
        top.append(ln)
    out = top + ["; @launch grid=(256,1,1) block=(512,1,1) lds=%d" % LDS,
        '.amdgcn_target "amdgcn-amd-amdhsa--gfx950"', ".text", ".globl %s_kernel" % KN, ".p2align 8",
        ".type %s_kernel,@function" % KN, "%s_kernel:" % KN]

    e("s_cmp_ge_u32 s2, 256")
    e("s_cbranch_scc1 L_end")
    e("s_load_dwordx16 s[4:19], s[0:1], 0")
    e("s_load_dwordx8 s[20:27], s[0:1], 64")
    e("s_load_dwordx2 s[28:29], s[0:1], 96")
    e("s_mov_b32 s%d, s2" % sJ)
    e("s_and_b32 s%d, s2, 31" % sH)
    e("s_lshr_b32 s%d, s2, 5" % sS)
    e("v_and_b32 v%d, 63, v0" % vLane)
    e("v_lshrrev_b32 v%d, 6, v0" % T0)
    e("v_mul_u32_u24 v%d, 12, v%d" % (vOff12, vLane))
    e("v_readfirstlane_b32 s%d, v%d" % (sW, T0))
    e("v_lshrrev_b32 v%d, 5, v%d" % (vHalf, vLane))
    e("v_and_b32 v%d, 31, v%d" % (vC, vLane))
    e("s_mov_b32 s%d, 0x3fb8aa3b" % sLog2e)
    e("s_waitcnt lgkmcnt(0)")
    e("s_load_dword s%d, s[28:29], 0" % sT)
    def mksrd(b, p, n):
        e("s_mov_b32 s%d, s%d" % (b, p)); e("s_mov_b32 s%d, s%d" % (b+1, p+1))
        e("s_mov_b32 s%d, %d" % (b+2, n)); e("s_mov_b32 s%d, 0x00020000" % (b+3))
    mksrd(sX, 4, 1280)
    mksrd(sWQ, 10, 640*6144*2)
    e("s_lshr_b32 s%d, s%d, 4" % (sA, sJ))
    e("s_cmp_lt_u32 s%d, 8" % sA)
    e("s_cselect_b32 s%d, s16, s18" % sF)
    e("s_cselect_b32 s%d, s17, s19" % (sF+1))
    e("s_mov_b32 s%d, %d" % (sF+2, 640*1536*2)); e("s_mov_b32 s%d, 0x00020000" % (sF+3))
    mksrd(sK, 6, 402653184)
    mksrd(sV, 8, 402653184)
    mksrd(sWO, 12, 6144*640*2)
    mksrd(sWD, 20, 1536*640*2)
    mksrd(sGW, 22, 1280)
    mksrd(sOUT, 24, 1280)
    mksrd(sWS, 28, WS_END)

    e("s_mul_i32 s%d, s%d, 80" % (sA, sS))
    e("s_mul_i32 s%d, s%d, 10" % (sB, sW))
    e("s_add_u32 s%d, s%d, s%d" % (sA, sA, sB))
    e("s_lshl_b32 s%d, s%d, 1" % (sB, sA))
    e("v_lshlrev_b32 v%d, 1, v%d" % (T0, vHalf))
    for i in range(5):
        e("buffer_load_ushort v%d, v%d, %s, s%d offen offset:%d" % (vXq+i, T0, srd(sX), sB, 4*i))
    e("s_and_b32 s%d, s%d, 15" % (sC, sJ))
    e("s_mul_i32 s%d, s%d, 40" % (sC, sC))
    e("s_mul_i32 s%d, s%d, 5" % (sD, sW))
    e("s_add_u32 s%d, s%d, s%d" % (sC, sC, sD))
    e("s_lshl_b32 s%d, s%d, 1" % (sD, sC))
    for i in range(3):
        e("buffer_load_ushort v%d, v%d, %s, s%d offen offset:%d" % (vXf+i, T0, srd(sX), sD, 4*i))
    e("s_mul_i32 s%d, s%d, 12288" % (sA, sA))
    e("s_mul_i32 s%d, s%d, 384" % (sB, sH))
    e("s_add_u32 s%d, s%d, s%d" % (sA, sA, sB))
    e("v_mul_u32_u24 v%d, 12288, v%d" % (T1, vHalf))
    e("v_mul_u32_u24 v%d, 12, v%d" % (T2, vC))
    e("v_add_u32 v%d, v%d, v%d" % (T1, T1, T2))
    for i in range(5):
        e("buffer_load_dwordx3 v[%d:%d], v%d, %s, s%d offen%s" % (vWQd+4*i, vWQd+4*i+2, T1, srd(sWQ), sA, NT))
        if i < 4: e("s_add_u32 s%d, s%d, 24576" % (sA, sA))
    e("s_mul_i32 s%d, s%d, 3072" % (sC, sC))
    e("s_lshr_b32 s%d, s%d, 4" % (sB, sJ))
    e("s_and_b32 s%d, s%d, 7" % (sB, sB))
    e("s_mul_i32 s%d, s%d, 384" % (sB, sB))
    e("s_add_u32 s%d, s%d, s%d" % (sC, sC, sB))
    e("v_mul_u32_u24 v%d, 3072, v%d" % (T1, vHalf))
    e("v_add_u32 v%d, v%d, v%d" % (T1, T1, T2))
    for i in range(3):
        if i == 2: e("s_mov_b32 exec_hi, 0")
        e("buffer_load_dwordx3 v[%d:%d], v%d, %s, s%d offen%s" % (vFd+4*i, vFd+4*i+2, T1, srd(sF), sC, NT))
        if i < 2: e("s_add_u32 s%d, s%d, 6144" % (sC, sC))
    e("s_mov_b64 exec, -1")
    e("s_cmp_lg_u32 s%d, 3" % sW)
    e("s_cbranch_scc1 L_nog1")
    e("v_lshlrev_b32 v%d, 2, v%d" % (T0, vLane))
    for k in range(5):
        e("buffer_load_dword v%d, v%d, %s, 0 offen offset:%d" % (vGx+k, T0, srd(sX), 256*k))
        e("buffer_load_dword v%d, v%d, %s, 0 offen offset:%d" % (vGw+k, T0, srd(sGW), 256*k))
    g.lab("L_nog1")
    e("s_mul_i32 s%d, s%d, 12582912" % (sA, sH))
    e("s_lshl_b32 s%d, s%d, 9" % (sB, sS))
    e("s_lshl_b32 s%d, s%d, 6" % (sC, sW))
    e("s_add_u32 s%d, s%d, s%d" % (sB, sB, sC))
    e("s_add_u32 s%d, s%d, 28672" % (sB, sB))
    e("s_mul_i32 s%d, s%d, 384" % (sB, sB))
    e("s_add_u32 s%d, s%d, s%d" % (sKoff, sA, sB))
    e("s_mov_b32 s%d, s%d" % (sVoff, sKoff))
    def stream_load(i, reg, s_srd, soff):
        if i and i % 5 == 0:
            e("s_add_u32 s%d, s%d, 3840" % (soff, soff))
        e("buffer_load_dwordx3 v[%d:%d], v%d, %s, s%d offen offset:%d%s" % (reg, reg+2, vOff12, srd(s_srd), soff, (i%5)*768, NT))
    for i in range(32):
        stream_load(i, KS(i), sK, sKoff)

    e("s_waitcnt vmcnt(32)")
    def vecmat_step(acc, d, xl, xh, first):
        for k in range(3):
            c0 = "0" if first else "v%d" % (acc+2*k)
            c1 = "0" if first else "v%d" % (acc+2*k+1)
            e("v_dot2_f32_bf16 v%d, v%d, v%d, %s" % (acc+2*k, d+k, xl, c0))
            e("v_dot2_f32_bf16 v%d, v%d, v%d, %s" % (acc+2*k+1, d+k, xh, c1))
    for i in range(5):
        e("v_lshlrev_b32 v%d, 16, v%d" % (vTmp+i, vXq+i))
    for i in range(3):
        e("v_lshlrev_b32 v%d, 16, v%d" % (vTmp+5+i, vXf+i))
    for i in range(5):
        vecmat_step(vAcc, vWQd+4*i, vXq+i, vTmp+i, i == 0)
    for i in range(3):
        if i == 2: e("s_mov_b32 exec_hi, 0")
        vecmat_step(vAccF, vFd+4*i, vXf+i, vTmp+5+i, i == 0)
    e("s_mov_b64 exec, -1")
    e("s_lshl_b32 s%d, s%d, 1" % (sA, sW))
    e("v_add_u32 v%d, s%d, v%d" % (T0, sA, vHalf))
    e("v_mul_u32_u24 v%d, 1536, v%d" % (T0, T0))
    e("v_mul_u32_u24 v%d, 24, v%d" % (T1, vC))
    e("v_add_u32 v%d, v%d, v%d" % (T0, T0, T1))
    e("s_nop 1")
    for k in range(3):
        e("ds_write_b64 v%d, v[%d:%d] offset:%d" % (T0, vAcc+2*k, vAcc+2*k+1, L_QP + 8*k))
    for k in range(3):
        e("ds_write_b64 v%d, v[%d:%d] offset:%d" % (T0, vAccF+2*k, vAccF+2*k+1, L_QP + 768 + 8*k))
    e("s_cmp_lg_u32 s%d, 3" % sW)
    e("s_cbranch_scc1 L_nog2")
    t0, t1, t2, t3 = vTmp, vTmp+1, vTmp+2, vTmp+3
    e("v_mov_b32 v%d, 0" % t3)
    for k in range(5):
        e("v_lshlrev_b32 v%d, 16, v%d" % (t0, vGx+k))
        e("v_lshlrev_b32 v%d, 16, v%d" % (t1, vGw+k))
        e("v_mul_f32 v%d, v%d, v%d" % (t0, t0, t1))
        e("v_and_b32 v%d, 0xffff0000, v%d" % (t1, vGx+k))
        e("v_and_b32 v%d, 0xffff0000, v%d" % (t2, vGw+k))
        e("v_mul_f32 v%d, v%d, v%d" % (t1, t1, t2))
        e("v_cvt_pk_bf16_f32 v%d, v%d, v%d" % (t0, t0, t1))
        e("v_and_b32 v%d, 0xffff0000, v%d" % (t1, t0))
        e("v_lshlrev_b32 v%d, 16, v%d" % (t0, t0))
        e("v_add_f32 v%d, v%d, v%d" % (t3, t3, t0))
        e("v_add_f32 v%d, v%d, v%d" % (t3, t3, t1))
    def wave_reduce(op, v, t):
        e("s_nop 1")
        e("%s_dpp v%d, v%d, v%d quad_perm:[1,0,3,2] row_mask:0xf bank_mask:0xf" % (op, v, v, v))
        e("s_nop 1")
        e("%s_dpp v%d, v%d, v%d quad_perm:[2,3,0,1] row_mask:0xf bank_mask:0xf" % (op, v, v, v))
        e("s_nop 1")
        e("%s_dpp v%d, v%d, v%d row_half_mirror row_mask:0xf bank_mask:0xf" % (op, v, v, v))
        e("s_nop 1")
        e("%s_dpp v%d, v%d, v%d row_mirror row_mask:0xf bank_mask:0xf" % (op, v, v, v))
        e("v_mov_b32 v%d, v%d" % (t, v))
        e("s_nop 1")
        e("v_permlane16_swap_b32 v%d, v%d" % (v, t))
        e("s_nop 1")
        e("%s v%d, v%d, v%d" % (op, v, v, t))
        e("v_mov_b32 v%d, v%d" % (t, v))
        e("s_nop 1")
        e("v_permlane32_swap_b32 v%d, v%d" % (v, t))
        e("s_nop 1")
        e("%s v%d, v%d, v%d" % (op, v, v, t))
    wave_reduce("v_add_f32", t3, t0)
    def rne(v):
        e("v_cvt_pk_bf16_f32 v%d, v%d, v%d" % (v, v, v))
        e("v_and_b32 v%d, 0xffff0000, v%d" % (v, v))
    rne(t3)
    e("v_mul_f32 v%d, s%d, v%d" % (t3, sLog2e, t3))
    e("v_sub_f32 v%d, 0, v%d" % (t3, t3))
    e("v_exp_f32 v%d, v%d" % (t3, t3))
    e("s_nop 0")
    e("v_add_f32 v%d, 1.0, v%d" % (t3, t3))
    e("v_rcp_f32 v%d, v%d" % (t3, t3))
    e("s_nop 0")
    rne(t3)
    e("v_sub_f32 v%d, 1.0, v%d" % (t2, t3))
    rne(t2)
    e("v_mov_b32 v%d, v%d" % (t0, t3))
    e("v_mov_b32 v%d, v%d" % (t1, t2))
    e("v_mov_b32 v%d, %d" % (t3, L_GB))
    e("ds_write_b64 v%d, v[%d:%d]" % (t3, t0, t1))
    g.lab("L_nog2")
    e("s_waitcnt lgkmcnt(0)")
    e("s_barrier")
    e("s_add_u32 s%d, s%d, 1" % (sT, sT))
    e("s_cmp_ge_u32 s%d, 3" % sW)
    e("s_cbranch_scc1 L_nopub1")
    e("v_lshlrev_b32 v%d, 3, v%d" % (T0, vTid))
    for k in range(16):
        e("ds_read_b64 v[%d:%d], v%d offset:%d" % (vTmp+2*k, vTmp+2*k+1, T0, L_QP + 1536*k))
    for k in range(1, 16):
        e("s_waitcnt lgkmcnt(%d)" % (15-k))
        e("v_add_f32 v%d, v%d, v%d" % (vTmp, vTmp, vTmp+2*k))
        e("v_add_f32 v%d, v%d, v%d" % (vTmp+1, vTmp+1, vTmp+2*k+1))
    e("v_mov_b32 v%d, v%d" % (vTmp+2, vTmp+1))
    e("v_mov_b32 v%d, s%d" % (vTmp+1, sT))
    e("v_mov_b32 v%d, s%d" % (vTmp+3, sT))
    e("s_mul_i32 s%d, s%d, 3072" % (sA, sJ))
    e("s_add_u32 s%d, s%d, %d" % (sA, sA, WS_Q))
    e("v_lshlrev_b32 v%d, 4, v%d" % (T0, vTid))
    e("buffer_store_dwordx4 v[%d:%d], v%d, %s, s%d offen sc1" % (vTmp, vTmp+3, T0, srd(sWS), sA))
    g.lab("L_nopub1")
    e("s_cmp_lg_u32 s%d, 0" % sW)
    e("s_cbranch_scc1 L_vloads")
    PA = vTmp
    PB = 192
    PF = 224
    vA, vB_, vF_ = 52, 53, 54
    e("v_lshlrev_b32 v%d, 4, v%d" % (vA, vLane))
    e("v_lshlrev_b32 v%d, 4, v%d" % (vB_, vC))
    e("v_add_u32 v%d, 1024, v%d" % (vB_, vB_))
    e("v_bfe_u32 v%d, v%d, 4, 1" % (vF_, vLane))
    e("v_mul_u32_u24 v%d, %d, v%d" % (vF_, 8*16*3072, vF_))
    e("v_and_b32 v%d, 15, v%d" % (T0, vLane))
    e("v_mul_u32_u24 v%d, 3072, v%d" % (T0, T0))
    e("v_add_u32 v%d, v%d, v%d" % (vF_, vF_, T0))
    e("s_mul_i32 s%d, s%d, 3072" % (sA, sH))
    e("s_add_u32 s%d, s%d, %d" % (sA, sA, WS_Q))
    e("s_lshr_b32 s%d, s%d, 5" % (sB, sJ))
    e("s_mul_i32 s%d, s%d, %d" % (sB, sB, 16*3072))
    e("s_and_b32 s%d, s%d, 31" % (sC, sJ))
    e("s_mul_i32 s%d, s%d, 48" % (sC, sC))
    e("s_add_u32 s%d, s%d, s%d" % (sB, sB, sC))
    e("s_add_u32 s%d, s%d, %d" % (sB, sB, WS_Q + 1536))
    e("s_mov_b32 s%d, 0" % sCnt)
    g.lab("L_poll0")
    e("s_mov_b32 s%d, s%d" % (sC, sA))
    for n in range(8):
        e("buffer_load_dwordx4 v[%d:%d], v%d, %s, s%d offen sc1" % (PA+4*n, PA+4*n+3, vA, srd(sWS), sC))
        e("buffer_load_dwordx4 v[%d:%d], v%d, %s, s%d offen sc1" % (PB+4*n, PB+4*n+3, vB_, srd(sWS), sC))
        if n < 7: e("s_add_u32 s%d, s%d, %d" % (sC, sC, 32*3072))
    for n in range(3):
        e("buffer_load_dwordx4 v[%d:%d], v%d, %s, s%d offen offset:%d sc1" % (PF+4*n, PF+4*n+3, vF_, srd(sWS), sB, 16*n))
    e("s_waitcnt vmcnt(0)")
    def tagcheck(groups, vbad, vt):
        first = True
        for b in groups:
            for o in (1, 3):
                if first:
                    e("v_xor_b32 v%d, s%d, v%d" % (vbad, sT, b+o)); first = False
                else:
                    e("v_xor_b32 v%d, s%d, v%d" % (vt, sT, b+o))
                    e("v_or_b32 v%d, v%d, v%d" % (vbad, vbad, vt))
    tagcheck([PA+4*n for n in range(8)] + [PB+4*n for n in range(8)] + [PF+4*n for n in range(3)], T0, T1)
    def pollend(label, vbad):
        done = g.new("pd")
        e("v_cmp_ne_u32 vcc, 0, v%d" % vbad)
        e("s_nop 1")
        e("s_cmp_eq_u64 vcc, 0")
        e("s_cbranch_scc1 %s" % done)
        e("s_add_u32 s%d, s%d, 1" % (sCnt, sCnt))
        e("s_cmp_lt_u32 s%d, 200000" % sCnt)
        e("s_cbranch_scc0 %s" % done)
        e("s_sleep 1")
        e("s_branch %s" % label)
        g.lab(done)
    pollend("L_poll0", T0)
    for n in range(1, 8):
        e("v_add_f32 v%d, v%d, v%d" % (PA, PA, PA+4*n))
        e("v_add_f32 v%d, v%d, v%d" % (PA+2, PA+2, PA+4*n+2))
        e("v_add_f32 v%d, v%d, v%d" % (PB, PB, PB+4*n))
        e("v_add_f32 v%d, v%d, v%d" % (PB+2, PB+2, PB+4*n+2))
    e("v_cvt_pk_bf16_f32 v%d, v%d, v%d" % (PA, PA, PA+2))
    e("v_cvt_pk_bf16_f32 v%d, v%d, v%d" % (PB, PB, PB+2))
    e("v_lshlrev_b32 v%d, 2, v%d" % (T0, vLane))
    e("v_lshlrev_b32 v%d, 2, v%d" % (T1, vC))
    e("ds_write_b32 v%d, v%d offset:%d" % (T0, PA, L_QB))
    e("ds_write_b32 v%d, v%d offset:%d" % (T1, PB, L_QB + 256))
    vals = [PF+4*n+o for n in range(3) for o in (0, 2)]
    for mode in ("quad_perm:[1,0,3,2]", "quad_perm:[2,3,0,1]", "row_half_mirror", "row_mirror"):
        e("s_nop 1")
        for v in vals:
            e("v_add_f32_dpp v%d, v%d, v%d %s row_mask:0xf bank_mask:0xf" % (v, v, v, mode))
    ups = [PF+4*n+o for n in range(3) for o in (1, 3)]
    for v, u in zip(vals, ups):
        e("v_mov_b32 v%d, v%d" % (u, v))
    e("s_nop 1")
    for v, u in zip(vals, ups):
        e("v_permlane16_swap_b32 v%d, v%d" % (v, u))
    e("s_nop 1")
    for v, u in zip(vals, ups):
        rne(v); rne(u)
        e("v_max_f32 v%d, 0, v%d" % (v, v))
        e("v_mul_f32 v%d, v%d, v%d" % (v, v, u))
        rne(v)
    e("v_mov_b32 v%d, %d" % (T0, L_HB))
    for k, v in enumerate(vals):
        e("ds_write_b32 v%d, v%d offset:%d" % (T0, v, 4*k))
    e("v_mov_b32 v%d, 0" % (T1))
    e("ds_write_b32 v%d, v%d offset:24" % (T0, T1))
    e("ds_write_b32 v%d, v%d offset:28" % (T0, T1))
    e("s_waitcnt lgkmcnt(0)")
    g.lab("L_vloads")
    for i in range(16):
        stream_load(i, VS(i), sV, sVoff)
    e("s_waitcnt lgkmcnt(0)")
    e("s_barrier")
    vQ = vTmp
    e("v_mul_u32_u24 v%d, 12, v%d" % (T0, vC))
    for k in range(3):
        e("ds_read_b32 v%d, v%d offset:%d" % (vQ+k, T0, L_QB + 4*k))
    e("s_mul_i32 s%d, s%d, 9216" % (sA, sW))
    e("s_add_u32 s%d, s%d, %d" % (sA, sA, L_S))
    e("v_mul_u32_u24 v%d, 144, v%d" % (T0, vHalf))
    e("v_lshl_add_u32 v%d, v%d, 2, v%d" % (T0, vC, T0))
    e("v_add_u32 v%d, s%d, v%d" % (T0, sA, T0))
    e("s_waitcnt lgkmcnt(0)")
    vS = vTmp + 4
    for i in range(32):
        e("s_waitcnt vmcnt(%d)" % (47 if i < 16 else 63 - i))
        t = vS + (i % 8)
        k = KS(i)
        e("v_dot2_f32_bf16 v%d, v%d, v%d, 0" % (t, k, vQ))
        e("v_dot2_f32_bf16 v%d, v%d, v%d, v%d" % (t, k+1, vQ+1, t))
        e("v_dot2_f32_bf16 v%d, v%d, v%d, v%d" % (t, k+2, vQ+2, t))
        if i < 16:
            stream_load(16+i, VS(16+i), sV, sVoff)
        if i >= 1:
            tp = vS + ((i-1) % 8)
            e("ds_write_b32 v%d, v%d offset:%d" % (T0, tp, 288*(i-1)))
    e("s_nop 2")
    e("ds_write_b32 v%d, v%d offset:%d" % (T0, vS + 7, 288*31))
    vWO = 128
    e("s_cmp_ge_u32 s%d, 5" % sW)
    e("s_cbranch_scc1 L_nowo")
    e("v_lshrrev_b32 v%d, 4, v%d" % (T1, vLane))
    e("v_mul_u32_u24 v%d, 1280, v%d" % (T1, T1))
    e("v_and_b32 v%d, 15, v%d" % (T2, vLane))
    e("v_lshl_add_u32 v%d, v%d, 4, v%d" % (T1, T2, T1))
    e("s_mul_i32 s%d, s%d, 192" % (sB, sH))
    e("s_mul_i32 s%d, s%d, 24" % (sC, sS))
    e("s_add_u32 s%d, s%d, s%d" % (sB, sB, sC))
    e("s_mul_i32 s%d, s%d, 1280" % (sB, sB))
    e("s_lshl_b32 s%d, s%d, 8" % (sC, sW))
    e("s_add_u32 s%d, s%d, s%d" % (sB, sB, sC))
    for i in range(6):
        e("buffer_load_dwordx4 v[%d:%d], v%d, %s, s%d offen%s" % (vWO+4*i, vWO+4*i+3, T1, srd(sWO), sB, NT))
        if i < 5: e("s_add_u32 s%d, s%d, 5120" % (sB, sB))
    e("s_mul_i32 s%d, s%d, 7680" % (sB, sJ))
    e("s_add_u32 s%d, s%d, s%d" % (sB, sB, sC))
    e("buffer_load_dwordx4 v[%d:%d], v%d, %s, s%d offen%s" % (vWO+24, vWO+27, T1, srd(sWD), sB, NT))
    e("s_add_u32 s%d, s%d, 5120" % (sB, sB))
    e("s_mov_b32 exec_hi, 0")
    e("buffer_load_dwordx4 v[%d:%d], v%d, %s, s%d offen%s" % (vWO+28, vWO+31, T1, srd(sWD), sB, NT))
    e("s_mov_b64 exec, -1")
    g.lab("L_nowo")
    vR = 160
    e("v_mul_u32_u24 v%d, 144, v%d" % (T0, vLane))
    e("v_add_u32 v%d, s%d, v%d" % (T0, sA, T0))
    e("s_waitcnt lgkmcnt(0)")
    for k in range(8):
        e("ds_read_b128 v[%d:%d], v%d offset:%d" % (vR+4*k, vR+4*k+3, T0, 16*k))
    e("s_waitcnt lgkmcnt(0)")
    for st in (16, 8, 4, 2, 1):
        for k in range(st):
            e("v_add_f32 v%d, v%d, v%d" % (vR+k, vR+k, vR+k+st))
    sc, mx, pp, tt = vTmp, vTmp+1, vTmp+2, vTmp+3
    e("v_mov_b32 v%d, v%d" % (sc, vR))
    rne(sc)
    e("v_mul_f32 v%d, 0x3d93cd3a, v%d" % (sc, sc))
    rne(sc)
    e("v_mov_b32 v%d, v%d" % (mx, sc))
    wave_reduce("v_max_f32", mx, tt)
    e("v_sub_f32 v%d, v%d, v%d" % (pp, sc, mx))
    e("v_mul_f32 v%d, s%d, v%d" % (pp, sLog2e, pp))
    e("v_exp_f32 v%d, v%d" % (pp, pp))
    e("s_nop 0")
    e("v_mov_b32 v%d, v%d" % (sc, pp))
    rne(sc)
    e("v_and_b32 v%d, 1, v%d" % (tt, vLane))
    e("v_lshlrev_b32 v%d, 7, v%d" % (tt, tt))
    e("v_lshrrev_b32 v%d, 1, v%d" % (T0, vLane))
    e("v_lshl_add_u32 v%d, v%d, 2, v%d" % (tt, T0, tt))
    e("s_lshl_b32 s%d, s%d, 8" % (sA, sW))
    e("v_add_u32 v%d, s%d, v%d" % (tt, sA, tt))
    e("ds_write_b32 v%d, v%d offset:%d" % (tt, sc, L_PT))
    wave_reduce("v_add_f32", pp, tt)
    e("s_lshl_b32 s%d, s%d, 3" % (sA, sW))
    e("v_mov_b32 v%d, s%d" % (tt, sA))
    e("v_mov_b32 v%d, v%d" % (sc, mx))
    e("v_mov_b32 v%d, v%d" % (mx, pp))
    e("ds_write_b64 v%d, v[%d:%d] offset:%d" % (tt, sc, mx, L_ST))
    vP = 160
    e("s_lshl_b32 s%d, s%d, 8" % (sA, sW))
    e("v_lshlrev_b32 v%d, 7, v%d" % (T0, vHalf))
    e("v_add_u32 v%d, s%d, v%d" % (T0, sA, T0))
    e("s_waitcnt lgkmcnt(0)")
    for k in range(8):
        e("ds_read_b128 v[%d:%d], v%d offset:%d" % (vP+4*k, vP+4*k+3, T0, L_PT + 16*k))
    e("s_waitcnt lgkmcnt(0)")
    def pv(extra):
        for i in range(32):
            e("v_lshrrev_b32 v%d, 16, v%d" % (vTmp + (i % 4), vP+i))
            e("s_waitcnt vmcnt(%d)" % (31 - i + extra))
            vecmat_step(vAcc, VS(i), vTmp + (i % 4), vP+i, i == 0)
    e("s_cmp_ge_u32 s%d, 5" % sW)
    e("s_cbranch_scc1 L_pvB")
    pv(8)
    e("s_branch L_pvdone")
    g.lab("L_pvB")
    pv(0)
    g.lab("L_pvdone")
    e("s_lshl_b32 s%d, s%d, 1" % (sA, sW))
    e("v_add_u32 v%d, s%d, v%d" % (T0, sA, vHalf))
    e("v_mul_u32_u24 v%d, 768, v%d" % (T0, T0))
    e("v_mul_u32_u24 v%d, 24, v%d" % (T1, vC))
    e("v_add_u32 v%d, v%d, v%d" % (T0, T0, T1))
    for k in range(3):
        e("ds_write_b64 v%d, v[%d:%d] offset:%d" % (T0, vAcc+2*k, vAcc+2*k+1, L_QP + 8*k))
    e("s_waitcnt lgkmcnt(0)")
    e("s_barrier")
    e("s_cmp_ge_u32 s%d, 5" % sW)
    e("s_cbranch_scc1 L_end")
    e("s_cmp_ge_u32 s%d, 2" % sW)
    e("s_cbranch_scc1 L_nopub2")
    vST = vTmp
    vOP = 160
    e("v_mov_b32 v%d, 0" % T0)
    for k in range(4):
        e("ds_read_b128 v[%d:%d], v%d offset:%d" % (vST+4*k, vST+4*k+3, T0, L_ST + 16*k))
    e("v_lshlrev_b32 v%d, 3, v%d" % (T1, vTid))
    e("v_min_u32 v%d, 760, v%d" % (T1, T1))
    for k in range(16):
        e("ds_read_b64 v[%d:%d], v%d offset:%d" % (vOP+2*k, vOP+2*k+1, T1, L_QP + 768*k))
    e("s_waitcnt lgkmcnt(0)")
    M = 36; Lr = 37; a0 = 40
    e("v_max_f32 v%d, v%d, v%d" % (M, vST, vST+2))
    for w in range(2, 8):
        e("v_max_f32 v%d, v%d, v%d" % (M, M, vST+2*w))
    for w in range(8):
        e("v_sub_f32 v%d, v%d, v%d" % (vST+2*w, vST+2*w, M))
        e("v_mul_f32 v%d, s%d, v%d" % (vST+2*w, sLog2e, vST+2*w))
        e("v_exp_f32 v%d, v%d" % (vST+2*w, vST+2*w))
    e("s_nop 0")
    e("v_mul_f32 v%d, v%d, v%d" % (Lr, vST, vST+1))
    for w in range(1, 8):
        e("v_fmac_f32 v%d, v%d, v%d" % (Lr, vST+2*w, vST+2*w+1))
    e("v_mov_b32 v%d, 0" % a0)
    e("v_mov_b32 v%d, 0" % (a0+2))
    for w in range(8):
        for hf in range(2):
            k = 2*w + hf
            e("v_fmac_f32 v%d, v%d, v%d" % (a0, vST+2*w, vOP+2*k))
            e("v_fmac_f32 v%d, v%d, v%d" % (a0+2, vST+2*w, vOP+2*k+1))
    e("v_cmp_eq_u32 vcc, 96, v%d" % vTid)
    e("s_nop 1")
    e("v_cndmask_b32 v%d, v%d, v%d, vcc" % (a0, a0, M))
    e("v_cndmask_b32 v%d, v%d, v%d, vcc" % (a0+2, a0+2, Lr))
    e("v_mov_b32 v%d, s%d" % (a0+1, sT))
    e("v_mov_b32 v%d, s%d" % (a0+3, sT))
    e("s_lshl_b32 s%d, s%d, 11" % (sA, sJ))
    e("s_add_u32 s%d, s%d, %d" % (sA, sA, WS_O))
    e("v_lshlrev_b32 v%d, 4, v%d" % (T0, vTid))
    e("v_cmp_gt_u32 vcc, 97, v%d" % vTid)
    e("s_and_saveexec_b64 s[88:89], vcc")
    e("buffer_store_dwordx4 v[%d:%d], v%d, %s, s%d offen sc1" % (a0, a0+3, T0, srd(sWS), sA))
    e("s_mov_b64 exec, s[88:89]")
    g.lab("L_nopub2")
    G1, G2, G3 = 20, 24, 28
    a1, a2, a3 = 32, 33, 34
    e("v_lshrrev_b32 v%d, 3, v%d" % (a3, vLane))
    e("v_lshlrev_b32 v%d, 16, v%d" % (a3, a3))
    e("v_and_b32 v%d, 7, v%d" % (T1, vLane))
    e("v_lshl_add_u32 v%d, v%d, 4, v%d" % (a1, T1, a3))
    e("v_and_b32 v%d, 3, v%d" % (T1, vLane))
    e("v_lshl_add_u32 v%d, v%d, 4, v%d" % (a2, T1, a3))
    e("s_lshl_b32 s%d, s%d, 11" % (sA, sH))
    e("s_add_u32 s%d, s%d, %d" % (sA, sA, WS_O))
    e("s_mul_i32 s%d, s%d, 192" % (sB, sS))
    e("s_add_u32 s%d, s%d, s%d" % (sB, sB, sA))
    e("s_mov_b32 s%d, 0" % sCnt)
    g.lab("L_poll1")
    e("buffer_load_dwordx4 v[%d:%d], v%d, %s, s%d offen sc1" % (G1, G1+3, a1, srd(sWS), sB))
    e("buffer_load_dwordx4 v[%d:%d], v%d, %s, s%d offen offset:128 sc1" % (G2, G2+3, a2, srd(sWS), sB))
    e("buffer_load_dwordx4 v[%d:%d], v%d, %s, s%d offen offset:1536 sc1" % (G3, G3+3, a3, srd(sWS), sA))
    e("s_waitcnt vmcnt(0)")
    tagcheck([G1, G2, G3], T1, T2)
    pollend("L_poll1", T1)
    def red345(op, regs, tmps):
        e("s_nop 1")
        for v in regs:
            e("%s_dpp v%d, v%d, v%d row_ror:8 row_mask:0xf bank_mask:0xf" % (op, v, v, v))
        for swap in ("v_permlane16_swap_b32", "v_permlane32_swap_b32"):
            for v, t in zip(regs, tmps):
                e("v_mov_b32 v%d, v%d" % (t, v))
            e("s_nop 1")
            for v, t in zip(regs, tmps):
                e("%s v%d, v%d" % (swap, v, t))
            e("s_nop 1")
            for v, t in zip(regs, tmps):
                e("%s v%d, v%d, v%d" % (op, v, v, t))
    Mx = 36
    e("v_mov_b32 v%d, v%d" % (Mx, G3))
    red345("v_max_f32", [Mx], [40])
    e("v_sub_f32 v%d, v%d, v%d" % (Mx, G3, Mx))
    e("v_mul_f32 v%d, s%d, v%d" % (Mx, sLog2e, Mx))
    e("v_exp_f32 v%d, v%d" % (Mx, Mx))
    e("s_nop 0")
    rr = [G1, G1+2, G2, G2+2, G3+2]
    for v in rr:
        e("v_mul_f32 v%d, v%d, v%d" % (v, v, Mx))
    red345("v_add_f32", rr, [40, 41, 42, 43, 44])
    e("v_rcp_f32 v%d, v%d" % (Mx, G3+2))
    e("s_nop 0")
    for v in rr[:4]:
        e("v_mul_f32 v%d, v%d, v%d" % (v, v, Mx))
        rne(v)
    e("s_lshl_b32 s%d, s%d, 7" % (sA, sW))
    e("v_and_b32 v%d, 7, v%d" % (T0, vLane))
    e("v_lshlrev_b32 v%d, 3, v%d" % (T0, T0))
    e("v_add_u32 v%d, s%d, v%d" % (T0, sA, T0))
    e("v_and_b32 v%d, 3, v%d" % (T1, vLane))
    e("v_lshlrev_b32 v%d, 3, v%d" % (T1, T1))
    e("v_add_u32 v%d, s%d, v%d" % (T1, sA, T1))
    e("v_mov_b32 v%d, v%d" % (G1+1, G1+2))
    e("v_mov_b32 v%d, v%d" % (G2+1, G2+2))
    e("ds_write_b64 v%d, v[%d:%d] offset:%d" % (T0, G1, G1+1, L_WB))
    e("ds_write_b64 v%d, v[%d:%d] offset:%d" % (T1, G2, G2+1, L_WB + 64))
    vWt = 40
    e("v_lshrrev_b32 v%d, 4, v%d" % (T0, vLane))
    e("v_lshlrev_b32 v%d, 2, v%d" % (T0, T0))
    e("v_add_u32 v%d, s%d, v%d" % (T1, sA, T0))
    e("v_mov_b32 v%d, %d" % (T2, L_GB))
    e("s_waitcnt lgkmcnt(0)")
    for i in range(6):
        e("ds_read_b32 v%d, v%d offset:%d" % (vWt+i, T1, L_WB + 16*i))
    for i in range(2):
        e("ds_read_b32 v%d, v%d offset:%d" % (vWt+6+i, T0, L_HB + 16*i))
    e("ds_read_b64 v[%d:%d], v%d" % (36, 37, T2))
    e("s_waitcnt lgkmcnt(0)")
    aA, aB = 48, 56
    for i in range(8):
        if i == 7: e("s_mov_b32 exec_hi, 0")
        acc = aA if i < 6 else aB
        first = i in (0, 6)
        e("v_lshrrev_b32 v%d, 16, v%d" % (T0, vWt+i))
        for k in range(4):
            c0 = "0" if first else "v%d" % (acc+2*k)
            c1 = "0" if first else "v%d" % (acc+2*k+1)
            e("v_dot2_f32_bf16 v%d, v%d, v%d, %s" % (acc+2*k, vWO+4*i+k, T0, c0))
            e("v_dot2_f32_bf16 v%d, v%d, v%d, %s" % (acc+2*k+1, vWO+4*i+k, vWt+i, c1))
    e("s_mov_b64 exec, -1")
    e("s_nop 2")
    for k in range(8):
        e("v_mul_f32 v%d, v%d, v%d" % (aA+k, aA+k, 36))
    for k in range(8):
        e("v_fmac_f32 v%d, v%d, v%d" % (aA+k, aB+k, 37))
    e("s_nop 1")
    for k in range(4):
        e("v_permlane32_swap_b32 v%d, v%d" % (aA+k, aA+k+4))
    e("s_nop 1")
    for k in range(4):
        e("v_add_f32 v%d, v%d, v%d" % (aA+k, aA+k, aA+k+4))
    e("s_nop 1")
    for k in range(2):
        e("v_permlane16_swap_b32 v%d, v%d" % (aA+k, aA+k+2))
    e("s_nop 1")
    e("v_add_f32 v%d, v%d, v%d" % (aB, aA, aA+2))
    e("v_add_f32 v%d, v%d, v%d" % (aB+2, aA+1, aA+3))
    e("v_mov_b32 v%d, s%d" % (aB+1, sT))
    e("v_mov_b32 v%d, s%d" % (aB+3, sT))
    e("s_mul_i32 s%d, s%d, 5120" % (sA, sJ))
    e("s_lshl_b32 s%d, s%d, 10" % (sB, sW))
    e("s_add_u32 s%d, s%d, s%d" % (sA, sA, sB))
    e("s_add_u32 s%d, s%d, %d" % (sA, sA, WS_R))
    e("v_and_b32 v%d, 15, v%d" % (T0, vLane))
    e("v_lshlrev_b32 v%d, 6, v%d" % (T0, T0))
    e("v_lshrrev_b32 v%d, 4, v%d" % (T1, vLane))
    e("v_lshl_add_u32 v%d, v%d, 4, v%d" % (T0, T1, T0))
    e("buffer_store_dwordx4 v[%d:%d], v%d, %s, s%d offen sc1" % (aB, aB+3, T0, srd(sWS), sA))
    e("s_cmp_lg_u32 s%d, 0" % sW)
    e("s_cbranch_scc1 L_end")
    e("s_cmp_ge_u32 s%d, 160" % sJ)
    e("s_cbranch_scc1 L_end")
    FR = 64
    e("v_lshrrev_b32 v%d, 1, v%d" % (T0, vLane))
    e("v_mul_u32_u24 v%d, 5120, v%d" % (T0, T0))
    e("v_and_b32 v%d, 1, v%d" % (T1, vLane))
    e("v_lshl_add_u32 v%d, v%d, 4, v%d" % (T0, T1, T0))
    e("s_lshl_b32 s%d, s%d, 5" % (sA, sJ))
    e("s_add_u32 s%d, s%d, %d" % (sA, sA, WS_R))
    e("s_mov_b32 s%d, 0" % sCnt)
    g.lab("L_poll2")
    e("s_mov_b32 s%d, s%d" % (sB, sA))
    for n in range(8):
        e("buffer_load_dwordx4 v[%d:%d], v%d, %s, s%d offen sc1" % (FR+4*n, FR+4*n+3, T0, srd(sWS), sB))
        if n < 7: e("s_add_u32 s%d, s%d, %d" % (sB, sB, 32*5120))
    e("s_waitcnt vmcnt(0)")
    tagcheck([FR+4*n for n in range(8)], T1, T2)
    pollend("L_poll2", T1)
    for n in range(1, 8):
        e("v_add_f32 v%d, v%d, v%d" % (FR, FR, FR+4*n))
        e("v_add_f32 v%d, v%d, v%d" % (FR+2, FR+2, FR+4*n+2))
    for mode in ("quad_perm:[2,3,0,1]", "row_ror:4", "row_ror:8"):
        e("s_nop 1")
        for v in (FR, FR+2):
            e("v_add_f32_dpp v%d, v%d, v%d %s row_mask:0xf bank_mask:0xf" % (v, v, v, mode))
    for swap in ("v_permlane16_swap_b32", "v_permlane32_swap_b32"):
        e("v_mov_b32 v%d, v%d" % (FR+1, FR))
        e("v_mov_b32 v%d, v%d" % (FR+3, FR+2))
        e("s_nop 1")
        e("%s v%d, v%d" % (swap, FR, FR+1))
        e("%s v%d, v%d" % (swap, FR+2, FR+3))
        e("s_nop 1")
        e("v_add_f32 v%d, v%d, v%d" % (FR, FR, FR+1))
        e("v_add_f32 v%d, v%d, v%d" % (FR+2, FR+2, FR+3))
    e("v_cvt_pk_bf16_f32 v%d, v%d, v%d" % (FR, FR, FR+2))
    e("v_lshlrev_b32 v%d, 2, v%d" % (T0, vLane))
    e("s_lshl_b32 s%d, s%d, 3" % (sA, sJ))
    e("s_mov_b64 exec, 3")
    e("buffer_store_dword v%d, v%d, %s, s%d offen" % (FR, T0, srd(sOUT), sA))
    e("s_cmp_lg_u32 s%d, 0" % sJ)
    e("s_cbranch_scc1 L_end")
    e("s_mov_b64 exec, 1")
    e("v_mov_b32 v%d, s%d" % (T0, sT))
    e("v_mov_b32 v%d, 0" % (T1))
    e("buffer_store_dword v%d, v%d, %s, 0 offen" % (T0, T1, srd(sWS)))
    g.lab("L_end")
    e("s_endpgm")
    out += g.L
    out += ['.section .rodata,"a"', ".p2align 6", ".amdhsa_kernel %s_kernel" % KN,
        "  .amdhsa_next_free_vgpr 256", "  .amdhsa_next_free_sgpr 102", "  .amdhsa_accum_offset 256",
        "  .amdhsa_group_segment_fixed_size 0", "  .amdhsa_kernarg_size 104", "  .amdhsa_user_sgpr_count 2",
        "  .amdhsa_user_sgpr_kernarg_segment_ptr 1", "  .amdhsa_system_sgpr_workgroup_id_x 1", ".end_amdhsa_kernel", ""]
    return "\n".join(out)

if __name__ == "__main__":
    opt = {}
    outp = sys.argv[1]
    for a in sys.argv[2:]:
        k, v = a.split("=")
        opt[k] = int(v)
    open(outp, "w").write(gen(opt))
```

```python
import sys

KN = "gated_mix__sliding_block_cached__glu_gated_reglu__decode"

class G:
    def __init__(self):
        self.L = []
        self.uid = 0
    def e(self, s):
        self.L.append("    " + s)
    def lab(self, s):
        self.L.append(s + ":")
    def new(self, p):
        self.uid += 1
        return "L_%s_%d" % (p, self.uid)

def gen(opt):
    g = G()
    e = g.e
    NT = " nt" if opt.get("nt", 0) else ""
    sK, sV, sWQ, sWO, sF, sWD, sX, sGW, sOUT, sWS = [32 + 4*i for i in range(10)]
    def srd(b): return "s[%d:%d]" % (b, b+3)
    sH, sS, sW, sT, sJ = 72, 73, 74, 75, 76
    sA, sB, sC, sD = 77, 78, 79, 80
    sCnt = 81
    sLog2e = 82
    sKoff, sVoff = 83, 84
    WS_Q = 4096
    WS_O = WS_Q + 256*3072
    WS_R = WS_O + 256*2048
    WS_P = WS_R + 256*5120
    WS_END = WS_P + 256*8*64
    PROF = opt.get("prof", 0)
    def stamp(k):
        if not PROF: return
        e("s_memrealtime s[100:101]")
        e("s_waitcnt lgkmcnt(0)")
        e("s_mov_b32 s%d, s100" % (90+k))
    def stamp_flush():
        if not PROF: return
        e("s_mov_b64 exec, 1")
        for k in range(10):
            e("v_mov_b32 v%d, s%d" % (64+k, 90+k))
        e("s_lshl_b32 s%d, s%d, 3" % (sA, sJ))
        e("s_add_u32 s%d, s%d, s%d" % (sA, sA, sW))
        e("s_lshl_b32 s%d, s%d, 6" % (sA, sA))
        e("s_add_u32 s%d, s%d, %d" % (sA, sA, WS_P))
        e("v_mov_b32 v%d, 0" % T0)
        e("buffer_store_dwordx4 v[64:67], v%d, %s, s%d offen" % (T0, srd(sWS), sA))
        e("buffer_store_dwordx4 v[68:71], v%d, %s, s%d offen offset:16" % (T0, srd(sWS), sA))
        e("buffer_store_dwordx2 v[72:73], v%d, %s, s%d offen offset:32" % (T0, srd(sWS), sA))
        e("s_mov_b32 s88, s26"); e("s_mov_b32 s89, s27"); e("s_mov_b32 s90, 256"); e("s_mov_b32 s91, 0x00020000")
        e("v_not_b32 v74, v64")
        for k in range(10):
            e("buffer_atomic_umax v%d, v%d, s[88:91], 0 offen offset:%d" % (64+k, T0, 4*k))
        e("buffer_atomic_umax v74, v%d, s[88:91], 0 offen offset:40" % T0)
    L_QP = 0
    L_PT = 24576
    L_QB = L_PT + 2048
    L_HB = L_QB + 512
    L_GB = L_HB + 64
    L_ST = L_GB + 64
    L_WB = L_ST + 64
    L_S = 32768
    L_END = L_S + 73728
    LDS = (L_END + 255)//256*256
    vTid, vLane, vOff12, vHalf, vC = 0, 1, 2, 3, 4
    T0, T1, T2 = 5, 6, 7
    vAcc = 8
    vAccF = 14
    vTmp = 20
    def KS(i): return 64 + 4*i
    def VS(i): return (192 + 4*i) if i < 16 else (64 + 4*(i-16))
    vWQd = 192
    vFd = 212
    vXq = 224
    vXf = 230
    vGx = 234
    vGw = 240

    hdr = open("cdna_kernels/%s.s.ref" % KN).read().split("\n")
    top = []
    for ln in hdr:
        if ln.startswith("; @launch"): break
        top.append(ln)
    out = top + ["; @launch grid=(256,1,1) block=(512,1,1) lds=%d" % LDS,
        '.amdgcn_target "amdgcn-amd-amdhsa--gfx950"', ".text", ".globl %s_kernel" % KN, ".p2align 8",
        ".type %s_kernel,@function" % KN, "%s_kernel:" % KN]

    e("s_cmp_ge_u32 s2, 256")
    e("s_cbranch_scc1 L_end")
    if PROF:
        for k in range(10): e("s_mov_b32 s%d, 0" % (90+k))
    stamp(0)
    e("s_load_dwordx16 s[4:19], s[0:1], 0")
    e("s_load_dwordx8 s[20:27], s[0:1], 64")
    e("s_load_dwordx2 s[28:29], s[0:1], 96")
    e("s_mov_b32 s%d, s2" % sJ)
    e("s_and_b32 s%d, s2, 31" % sH)
    e("s_lshr_b32 s%d, s2, 5" % sS)
    e("v_and_b32 v%d, 63, v0" % vLane)
    e("v_lshrrev_b32 v%d, 6, v0" % T0)
    e("v_mul_u32_u24 v%d, 12, v%d" % (vOff12, vLane))
    e("v_readfirstlane_b32 s%d, v%d" % (sW, T0))
    e("v_lshrrev_b32 v%d, 5, v%d" % (vHalf, vLane))
    e("v_and_b32 v%d, 31, v%d" % (vC, vLane))
    e("s_mov_b32 s%d, 0x3fb8aa3b" % sLog2e)
    e("s_waitcnt lgkmcnt(0)")
    e("s_load_dword s%d, s[28:29], 0" % sT)
    def mksrd(b, p, n):
        e("s_mov_b32 s%d, s%d" % (b, p)); e("s_mov_b32 s%d, s%d" % (b+1, p+1))
        e("s_mov_b32 s%d, %d" % (b+2, n)); e("s_mov_b32 s%d, 0x00020000" % (b+3))
    mksrd(sX, 4, 1280)
    mksrd(sWQ, 10, 640*6144*2)
    e("s_lshr_b32 s%d, s%d, 4" % (sA, sJ))
    e("s_cmp_lt_u32 s%d, 8" % sA)
    e("s_cselect_b32 s%d, s16, s18" % sF)
    e("s_cselect_b32 s%d, s17, s19" % (sF+1))
    e("s_mov_b32 s%d, %d" % (sF+2, 640*1536*2)); e("s_mov_b32 s%d, 0x00020000" % (sF+3))
    mksrd(sK, 6, 402653184)
    mksrd(sV, 8, 402653184)
    mksrd(sWO, 12, 6144*640*2)
    mksrd(sWD, 20, 1536*640*2)
    mksrd(sGW, 22, 1280)
    mksrd(sOUT, 24, 1280)
    mksrd(sWS, 28, WS_END)

    e("s_mul_i32 s%d, s%d, 80" % (sA, sS))
    e("s_mul_i32 s%d, s%d, 10" % (sB, sW))
    e("s_add_u32 s%d, s%d, s%d" % (sA, sA, sB))
    e("s_lshl_b32 s%d, s%d, 1" % (sB, sA))
    e("v_lshlrev_b32 v%d, 1, v%d" % (T0, vHalf))
    for i in range(5):
        e("buffer_load_ushort v%d, v%d, %s, s%d offen offset:%d" % (vXq+i, T0, srd(sX), sB, 4*i))
    e("s_and_b32 s%d, s%d, 15" % (sC, sJ))
    e("s_mul_i32 s%d, s%d, 40" % (sC, sC))
    e("s_mul_i32 s%d, s%d, 5" % (sD, sW))
    e("s_add_u32 s%d, s%d, s%d" % (sC, sC, sD))
    e("s_lshl_b32 s%d, s%d, 1" % (sD, sC))
    for i in range(3):
        e("buffer_load_ushort v%d, v%d, %s, s%d offen offset:%d" % (vXf+i, T0, srd(sX), sD, 4*i))
    e("s_mul_i32 s%d, s%d, 12288" % (sA, sA))
    e("s_mul_i32 s%d, s%d, 384" % (sB, sH))
    e("s_add_u32 s%d, s%d, s%d" % (sA, sA, sB))
    e("v_mul_u32_u24 v%d, 12288, v%d" % (T1, vHalf))
    e("v_mul_u32_u24 v%d, 12, v%d" % (T2, vC))
    e("v_add_u32 v%d, v%d, v%d" % (T1, T1, T2))
    for i in range(5):
        e("buffer_load_dwordx3 v[%d:%d], v%d, %s, s%d offen%s" % (vWQd+4*i, vWQd+4*i+2, T1, srd(sWQ), sA, NT))
        if i < 4: e("s_add_u32 s%d, s%d, 24576" % (sA, sA))
    e("s_mul_i32 s%d, s%d, 3072" % (sC, sC))
    e("s_lshr_b32 s%d, s%d, 4" % (sB, sJ))
    e("s_and_b32 s%d, s%d, 7" % (sB, sB))
    e("s_mul_i32 s%d, s%d, 384" % (sB, sB))
    e("s_add_u32 s%d, s%d, s%d" % (sC, sC, sB))
    e("v_mul_u32_u24 v%d, 3072, v%d" % (T1, vHalf))
    e("v_add_u32 v%d, v%d, v%d" % (T1, T1, T2))
    for i in range(3):
        if i == 2: e("s_mov_b32 exec_hi, 0")
        e("buffer_load_dwordx3 v[%d:%d], v%d, %s, s%d offen%s" % (vFd+4*i, vFd+4*i+2, T1, srd(sF), sC, NT))
        if i < 2: e("s_add_u32 s%d, s%d, 6144" % (sC, sC))
    e("s_mov_b64 exec, -1")
    e("s_cmp_lg_u32 s%d, 3" % sW)
    e("s_cbranch_scc1 L_nog1")
    e("v_lshlrev_b32 v%d, 2, v%d" % (T0, vLane))
    for k in range(5):
        e("buffer_load_dword v%d, v%d, %s, 0 offen offset:%d" % (vGx+k, T0, srd(sX), 256*k))
        e("buffer_load_dword v%d, v%d, %s, 0 offen offset:%d" % (vGw+k, T0, srd(sGW), 256*k))
    g.lab("L_nog1")
    e("s_mul_i32 s%d, s%d, 12582912" % (sA, sH))
    e("s_lshl_b32 s%d, s%d, 9" % (sB, sS))
    e("s_lshl_b32 s%d, s%d, 6" % (sC, sW))
    e("s_add_u32 s%d, s%d, s%d" % (sB, sB, sC))
    e("s_add_u32 s%d, s%d, 28672" % (sB, sB))
    e("s_mul_i32 s%d, s%d, 384" % (sB, sB))
    e("s_add_u32 s%d, s%d, s%d" % (sKoff, sA, sB))
    e("s_mov_b32 s%d, s%d" % (sVoff, sKoff))
    def stream_load(i, reg, s_srd, soff):
        if i and i % 5 == 0:
            e("s_add_u32 s%d, s%d, 3840" % (soff, soff))
        e("buffer_load_dwordx3 v[%d:%d], v%d, %s, s%d offen offset:%d%s" % (reg, reg+2, vOff12, srd(s_srd), soff, (i%5)*768, NT))
    for i in range(32):
        stream_load(i, KS(i), sK, sKoff)

    stamp(1)
    e("s_waitcnt vmcnt(32)")
    stamp(2)
    def vecmat_step(acc, d, xl, xh, first):
        for k in range(3):
            c0 = "0" if first else "v%d" % (acc+2*k)
            c1 = "0" if first else "v%d" % (acc+2*k+1)
            e("v_dot2_f32_bf16 v%d, v%d, v%d, %s" % (acc+2*k, d+k, xl, c0))
            e("v_dot2_f32_bf16 v%d, v%d, v%d, %s" % (acc+2*k+1, d+k, xh, c1))
    for i in range(5):
        e("v_lshlrev_b32 v%d, 16, v%d" % (vTmp+i, vXq+i))
    for i in range(3):
        e("v_lshlrev_b32 v%d, 16, v%d" % (vTmp+5+i, vXf+i))
    for i in range(5):
        vecmat_step(vAcc, vWQd+4*i, vXq+i, vTmp+i, i == 0)
    for i in range(3):
        if i == 2: e("s_mov_b32 exec_hi, 0")
        vecmat_step(vAccF, vFd+4*i, vXf+i, vTmp+5+i, i == 0)
    e("s_mov_b64 exec, -1")
    e("s_lshl_b32 s%d, s%d, 1" % (sA, sW))
    e("v_add_u32 v%d, s%d, v%d" % (T0, sA, vHalf))
    e("v_mul_u32_u24 v%d, 1536, v%d" % (T0, T0))
    e("v_mul_u32_u24 v%d, 24, v%d" % (T1, vC))
    e("v_add_u32 v%d, v%d, v%d" % (T0, T0, T1))
    e("s_nop 1")
    for k in range(3):
        e("ds_write_b64 v%d, v[%d:%d] offset:%d" % (T0, vAcc+2*k, vAcc+2*k+1, L_QP + 8*k))
    for k in range(3):
        e("ds_write_b64 v%d, v[%d:%d] offset:%d" % (T0, vAccF+2*k, vAccF+2*k+1, L_QP + 768 + 8*k))
    e("s_cmp_lg_u32 s%d, 3" % sW)
    e("s_cbranch_scc1 L_nog2")
    t0, t1, t2, t3 = vTmp, vTmp+1, vTmp+2, vTmp+3
    e("v_mov_b32 v%d, 0" % t3)
    for k in range(5):
        e("v_lshlrev_b32 v%d, 16, v%d" % (t0, vGx+k))
        e("v_lshlrev_b32 v%d, 16, v%d" % (t1, vGw+k))
        e("v_mul_f32 v%d, v%d, v%d" % (t0, t0, t1))
        e("v_and_b32 v%d, 0xffff0000, v%d" % (t1, vGx+k))
        e("v_and_b32 v%d, 0xffff0000, v%d" % (t2, vGw+k))
        e("v_mul_f32 v%d, v%d, v%d" % (t1, t1, t2))
        e("v_cvt_pk_bf16_f32 v%d, v%d, v%d" % (t0, t0, t1))
        e("v_and_b32 v%d, 0xffff0000, v%d" % (t1, t0))
        e("v_lshlrev_b32 v%d, 16, v%d" % (t0, t0))
        e("v_add_f32 v%d, v%d, v%d" % (t3, t3, t0))
        e("v_add_f32 v%d, v%d, v%d" % (t3, t3, t1))
    def wave_reduce(op, v, t):
        e("s_nop 1")
        e("%s_dpp v%d, v%d, v%d quad_perm:[1,0,3,2] row_mask:0xf bank_mask:0xf" % (op, v, v, v))
        e("s_nop 1")
        e("%s_dpp v%d, v%d, v%d quad_perm:[2,3,0,1] row_mask:0xf bank_mask:0xf" % (op, v, v, v))
        e("s_nop 1")
        e("%s_dpp v%d, v%d, v%d row_half_mirror row_mask:0xf bank_mask:0xf" % (op, v, v, v))
        e("s_nop 1")
        e("%s_dpp v%d, v%d, v%d row_mirror row_mask:0xf bank_mask:0xf" % (op, v, v, v))
        e("v_mov_b32 v%d, v%d" % (t, v))
        e("s_nop 1")
        e("v_permlane16_swap_b32 v%d, v%d" % (v, t))
        e("s_nop 1")
        e("%s v%d, v%d, v%d" % (op, v, v, t))
        e("v_mov_b32 v%d, v%d" % (t, v))
        e("s_nop 1")
        e("v_permlane32_swap_b32 v%d, v%d" % (v, t))
        e("s_nop 1")
        e("%s v%d, v%d, v%d" % (op, v, v, t))
    wave_reduce("v_add_f32", t3, t0)
    def rne(v):
        e("v_cvt_pk_bf16_f32 v%d, v%d, v%d" % (v, v, v))
        e("v_and_b32 v%d, 0xffff0000, v%d" % (v, v))
    rne(t3)
    e("v_mul_f32 v%d, s%d, v%d" % (t3, sLog2e, t3))
    e("v_sub_f32 v%d, 0, v%d" % (t3, t3))
    e("v_exp_f32 v%d, v%d" % (t3, t3))
    e("s_nop 0")
    e("v_add_f32 v%d, 1.0, v%d" % (t3, t3))
    e("v_rcp_f32 v%d, v%d" % (t3, t3))
    e("s_nop 0")
    rne(t3)
    e("v_sub_f32 v%d, 1.0, v%d" % (t2, t3))
    rne(t2)
    e("v_mov_b32 v%d, v%d" % (t0, t3))
    e("v_mov_b32 v%d, v%d" % (t1, t2))
    e("v_mov_b32 v%d, %d" % (t3, L_GB))
    e("ds_write_b64 v%d, v[%d:%d]" % (t3, t0, t1))
    g.lab("L_nog2")
    e("s_waitcnt lgkmcnt(0)")
    e("s_barrier")
    e("s_add_u32 s%d, s%d, 1" % (sT, sT))
    e("s_cmp_ge_u32 s%d, 3" % sW)
    e("s_cbranch_scc1 L_nopub1")
    e("v_lshlrev_b32 v%d, 3, v%d" % (T0, vTid))
    for k in range(16):
        e("ds_read_b64 v[%d:%d], v%d offset:%d" % (vTmp+2*k, vTmp+2*k+1, T0, L_QP + 1536*k))
    for k in range(1, 16):
        e("s_waitcnt lgkmcnt(%d)" % (15-k))
        e("v_add_f32 v%d, v%d, v%d" % (vTmp, vTmp, vTmp+2*k))
        e("v_add_f32 v%d, v%d, v%d" % (vTmp+1, vTmp+1, vTmp+2*k+1))
    e("v_mov_b32 v%d, v%d" % (vTmp+2, vTmp+1))
    e("v_mov_b32 v%d, s%d" % (vTmp+1, sT))
    e("v_mov_b32 v%d, s%d" % (vTmp+3, sT))
    e("s_mul_i32 s%d, s%d, 3072" % (sA, sJ))
    e("s_add_u32 s%d, s%d, %d" % (sA, sA, WS_Q))
    e("v_lshlrev_b32 v%d, 4, v%d" % (T0, vTid))
    e("buffer_store_dwordx4 v[%d:%d], v%d, %s, s%d offen sc1" % (vTmp, vTmp+3, T0, srd(sWS), sA))
    g.lab("L_nopub1")
    e("s_cmp_lg_u32 s%d, 0" % sW)
    e("s_cbranch_scc1 L_vloads")
    PA = vTmp
    PB = 192
    PF = 224
    vA, vB_, vF_ = 52, 53, 54
    e("v_lshlrev_b32 v%d, 4, v%d" % (vA, vLane))
    e("v_lshlrev_b32 v%d, 4, v%d" % (vB_, vC))
    e("v_add_u32 v%d, 1024, v%d" % (vB_, vB_))
    e("v_bfe_u32 v%d, v%d, 4, 1" % (vF_, vLane))
    e("v_mul_u32_u24 v%d, %d, v%d" % (vF_, 8*16*3072, vF_))
    e("v_and_b32 v%d, 15, v%d" % (T0, vLane))
    e("v_mul_u32_u24 v%d, 3072, v%d" % (T0, T0))
    e("v_add_u32 v%d, v%d, v%d" % (vF_, vF_, T0))
    e("s_mul_i32 s%d, s%d, 3072" % (sA, sH))
    e("s_add_u32 s%d, s%d, %d" % (sA, sA, WS_Q))
    e("s_lshr_b32 s%d, s%d, 5" % (sB, sJ))
    e("s_mul_i32 s%d, s%d, %d" % (sB, sB, 16*3072))
    e("s_and_b32 s%d, s%d, 31" % (sC, sJ))
    e("s_mul_i32 s%d, s%d, 48" % (sC, sC))
    e("s_add_u32 s%d, s%d, s%d" % (sB, sB, sC))
    e("s_add_u32 s%d, s%d, %d" % (sB, sB, WS_Q + 1536))
    e("s_mov_b32 s%d, 0" % sCnt)
    g.lab("L_poll0")
    e("s_mov_b32 s%d, s%d" % (sC, sA))
    for n in range(8):
        e("buffer_load_dwordx4 v[%d:%d], v%d, %s, s%d offen sc1" % (PA+4*n, PA+4*n+3, vA, srd(sWS), sC))
        e("buffer_load_dwordx4 v[%d:%d], v%d, %s, s%d offen sc1" % (PB+4*n, PB+4*n+3, vB_, srd(sWS), sC))
        if n < 7: e("s_add_u32 s%d, s%d, %d" % (sC, sC, 32*3072))
    for n in range(3):
        e("buffer_load_dwordx4 v[%d:%d], v%d, %s, s%d offen offset:%d sc1" % (PF+4*n, PF+4*n+3, vF_, srd(sWS), sB, 16*n))
    e("s_waitcnt vmcnt(0)")
    def tagcheck(groups, vbad, vt):
        first = True
        for b in groups:
            for o in (1, 3):
                if first:
                    e("v_xor_b32 v%d, s%d, v%d" % (vbad, sT, b+o)); first = False
                else:
                    e("v_xor_b32 v%d, s%d, v%d" % (vt, sT, b+o))
                    e("v_or_b32 v%d, v%d, v%d" % (vbad, vbad, vt))
    tagcheck([PA+4*n for n in range(8)] + [PB+4*n for n in range(8)] + [PF+4*n for n in range(3)], T0, T1)
    def pollend(label, vbad):
        done = g.new("pd")
        e("v_cmp_ne_u32 vcc, 0, v%d" % vbad)
        e("s_nop 1")
        e("s_cmp_eq_u64 vcc, 0")
        e("s_cbranch_scc1 %s" % done)
        e("s_add_u32 s%d, s%d, 1" % (sCnt, sCnt))
        e("s_cmp_lt_u32 s%d, 200000" % sCnt)
        e("s_cbranch_scc0 %s" % done)
        e("s_sleep 1")
        e("s_branch %s" % label)
        g.lab(done)
    pollend("L_poll0", T0)
    for n in range(1, 8):
        e("v_add_f32 v%d, v%d, v%d" % (PA, PA, PA+4*n))
        e("v_add_f32 v%d, v%d, v%d" % (PA+2, PA+2, PA+4*n+2))
        e("v_add_f32 v%d, v%d, v%d" % (PB, PB, PB+4*n))
        e("v_add_f32 v%d, v%d, v%d" % (PB+2, PB+2, PB+4*n+2))
    e("v_cvt_pk_bf16_f32 v%d, v%d, v%d" % (PA, PA, PA+2))
    e("v_cvt_pk_bf16_f32 v%d, v%d, v%d" % (PB, PB, PB+2))
    e("v_lshlrev_b32 v%d, 2, v%d" % (T0, vLane))
    e("v_lshlrev_b32 v%d, 2, v%d" % (T1, vC))
    e("ds_write_b32 v%d, v%d offset:%d" % (T0, PA, L_QB))
    e("ds_write_b32 v%d, v%d offset:%d" % (T1, PB, L_QB + 256))
    vals = [PF+4*n+o for n in range(3) for o in (0, 2)]
    for mode in ("quad_perm:[1,0,3,2]", "quad_perm:[2,3,0,1]", "row_half_mirror", "row_mirror"):
        e("s_nop 1")
        for v in vals:
            e("v_add_f32_dpp v%d, v%d, v%d %s row_mask:0xf bank_mask:0xf" % (v, v, v, mode))
    ups = [PF+4*n+o for n in range(3) for o in (1, 3)]
    for v, u in zip(vals, ups):
        e("v_mov_b32 v%d, v%d" % (u, v))
    e("s_nop 1")
    for v, u in zip(vals, ups):
        e("v_permlane16_swap_b32 v%d, v%d" % (v, u))
    e("s_nop 1")
    for v, u in zip(vals, ups):
        rne(v); rne(u)
        e("v_max_f32 v%d, 0, v%d" % (v, v))
        e("v_mul_f32 v%d, v%d, v%d" % (v, v, u))
        rne(v)
    e("v_mov_b32 v%d, %d" % (T0, L_HB))
    for k, v in enumerate(vals):
        e("ds_write_b32 v%d, v%d offset:%d" % (T0, v, 4*k))
    e("v_mov_b32 v%d, 0" % (T1))
    e("ds_write_b32 v%d, v%d offset:24" % (T0, T1))
    e("ds_write_b32 v%d, v%d offset:28" % (T0, T1))
    e("s_waitcnt lgkmcnt(0)")
    g.lab("L_vloads")
    for i in range(16):
        stream_load(i, VS(i), sV, sVoff)
    e("s_waitcnt lgkmcnt(0)")
    e("s_barrier")
    stamp(3)
    vQ = vTmp
    e("v_mul_u32_u24 v%d, 12, v%d" % (T0, vC))
    for k in range(3):
        e("ds_read_b32 v%d, v%d offset:%d" % (vQ+k, T0, L_QB + 4*k))
    e("s_mul_i32 s%d, s%d, 9216" % (sA, sW))
    e("s_add_u32 s%d, s%d, %d" % (sA, sA, L_S))
    e("v_mul_u32_u24 v%d, 144, v%d" % (T0, vHalf))
    e("v_lshl_add_u32 v%d, v%d, 2, v%d" % (T0, vC, T0))
    e("v_add_u32 v%d, s%d, v%d" % (T0, sA, T0))
    e("s_waitcnt lgkmcnt(0)")
    vS = vTmp + 4
    for i in range(32):
        e("s_waitcnt vmcnt(%d)" % (47 if i < 16 else 63 - i))
        t = vS + (i % 8)
        k = KS(i)
        e("v_dot2_f32_bf16 v%d, v%d, v%d, 0" % (t, k, vQ))
        e("v_dot2_f32_bf16 v%d, v%d, v%d, v%d" % (t, k+1, vQ+1, t))
        e("v_dot2_f32_bf16 v%d, v%d, v%d, v%d" % (t, k+2, vQ+2, t))
        if i < 16:
            stream_load(16+i, VS(16+i), sV, sVoff)
        if i >= 1:
            tp = vS + ((i-1) % 8)
            e("ds_write_b32 v%d, v%d offset:%d" % (T0, tp, 288*(i-1)))
    e("s_nop 2")
    e("ds_write_b32 v%d, v%d offset:%d" % (T0, vS + 7, 288*31))
    stamp(4)
    vWO = 128
    e("s_cmp_ge_u32 s%d, 5" % sW)
    e("s_cbranch_scc1 L_nowo")
    e("v_lshrrev_b32 v%d, 4, v%d" % (T1, vLane))
    e("v_mul_u32_u24 v%d, 1280, v%d" % (T1, T1))
    e("v_and_b32 v%d, 15, v%d" % (T2, vLane))
    e("v_lshl_add_u32 v%d, v%d, 4, v%d" % (T1, T2, T1))
    e("s_mul_i32 s%d, s%d, 192" % (sB, sH))
    e("s_mul_i32 s%d, s%d, 24" % (sC, sS))
    e("s_add_u32 s%d, s%d, s%d" % (sB, sB, sC))
    e("s_mul_i32 s%d, s%d, 1280" % (sB, sB))
    e("s_lshl_b32 s%d, s%d, 8" % (sC, sW))
    e("s_add_u32 s%d, s%d, s%d" % (sB, sB, sC))
    for i in range(6):
        e("buffer_load_dwordx4 v[%d:%d], v%d, %s, s%d offen%s" % (vWO+4*i, vWO+4*i+3, T1, srd(sWO), sB, NT))
        if i < 5: e("s_add_u32 s%d, s%d, 5120" % (sB, sB))
    e("s_mul_i32 s%d, s%d, 7680" % (sB, sJ))
    e("s_add_u32 s%d, s%d, s%d" % (sB, sB, sC))
    e("buffer_load_dwordx4 v[%d:%d], v%d, %s, s%d offen%s" % (vWO+24, vWO+27, T1, srd(sWD), sB, NT))
    e("s_add_u32 s%d, s%d, 5120" % (sB, sB))
    e("s_mov_b32 exec_hi, 0")
    e("buffer_load_dwordx4 v[%d:%d], v%d, %s, s%d offen%s" % (vWO+28, vWO+31, T1, srd(sWD), sB, NT))
    e("s_mov_b64 exec, -1")
    g.lab("L_nowo")
    vR = 160
    e("v_mul_u32_u24 v%d, 144, v%d" % (T0, vLane))
    e("v_add_u32 v%d, s%d, v%d" % (T0, sA, T0))
    e("s_waitcnt lgkmcnt(0)")
    for k in range(8):
        e("ds_read_b128 v[%d:%d], v%d offset:%d" % (vR+4*k, vR+4*k+3, T0, 16*k))
    e("s_waitcnt lgkmcnt(0)")
    for st in (16, 8, 4, 2, 1):
        for k in range(st):
            e("v_add_f32 v%d, v%d, v%d" % (vR+k, vR+k, vR+k+st))
    sc, mx, pp, tt = vTmp, vTmp+1, vTmp+2, vTmp+3
    e("v_mov_b32 v%d, v%d" % (sc, vR))
    rne(sc)
    e("v_mul_f32 v%d, 0x3d93cd3a, v%d" % (sc, sc))
    rne(sc)
    e("v_mov_b32 v%d, v%d" % (mx, sc))
    wave_reduce("v_max_f32", mx, tt)
    e("v_sub_f32 v%d, v%d, v%d" % (pp, sc, mx))
    e("v_mul_f32 v%d, s%d, v%d" % (pp, sLog2e, pp))
    e("v_exp_f32 v%d, v%d" % (pp, pp))
    e("s_nop 0")
    e("v_mov_b32 v%d, v%d" % (sc, pp))
    rne(sc)
    e("v_and_b32 v%d, 1, v%d" % (tt, vLane))
    e("v_lshlrev_b32 v%d, 7, v%d" % (tt, tt))
    e("v_lshrrev_b32 v%d, 1, v%d" % (T0, vLane))
    e("v_lshl_add_u32 v%d, v%d, 2, v%d" % (tt, T0, tt))
    e("s_lshl_b32 s%d, s%d, 8" % (sA, sW))
    e("v_add_u32 v%d, s%d, v%d" % (tt, sA, tt))
    e("ds_write_b32 v%d, v%d offset:%d" % (tt, sc, L_PT))
    wave_reduce("v_add_f32", pp, tt)
    e("s_lshl_b32 s%d, s%d, 3" % (sA, sW))
    e("v_mov_b32 v%d, s%d" % (tt, sA))
    e("v_mov_b32 v%d, v%d" % (sc, mx))
    e("v_mov_b32 v%d, v%d" % (mx, pp))
    e("ds_write_b64 v%d, v[%d:%d] offset:%d" % (tt, sc, mx, L_ST))
    vP = 160
    e("s_lshl_b32 s%d, s%d, 8" % (sA, sW))
    e("v_lshlrev_b32 v%d, 7, v%d" % (T0, vHalf))
    e("v_add_u32 v%d, s%d, v%d" % (T0, sA, T0))
    e("s_waitcnt lgkmcnt(0)")
    for k in range(8):
        e("ds_read_b128 v[%d:%d], v%d offset:%d" % (vP+4*k, vP+4*k+3, T0, L_PT + 16*k))
    e("s_waitcnt lgkmcnt(0)")
    def pv(extra):
        for i in range(32):
            e("v_lshrrev_b32 v%d, 16, v%d" % (vTmp + (i % 4), vP+i))
            e("s_waitcnt vmcnt(%d)" % (31 - i + extra))
            vecmat_step(vAcc, VS(i), vTmp + (i % 4), vP+i, i == 0)
    e("s_cmp_ge_u32 s%d, 5" % sW)
    e("s_cbranch_scc1 L_pvB")
    pv(8)
    e("s_branch L_pvdone")
    g.lab("L_pvB")
    pv(0)
    g.lab("L_pvdone")
    e("s_lshl_b32 s%d, s%d, 1" % (sA, sW))
    e("v_add_u32 v%d, s%d, v%d" % (T0, sA, vHalf))
    e("v_mul_u32_u24 v%d, 768, v%d" % (T0, T0))
    e("v_mul_u32_u24 v%d, 24, v%d" % (T1, vC))
    e("v_add_u32 v%d, v%d, v%d" % (T0, T0, T1))
    for k in range(3):
        e("ds_write_b64 v%d, v[%d:%d] offset:%d" % (T0, vAcc+2*k, vAcc+2*k+1, L_QP + 8*k))
    e("s_waitcnt lgkmcnt(0)")
    stamp(5)
    e("s_barrier")
    stamp(6)
    e("s_cmp_ge_u32 s%d, 5" % sW)
    e("s_cbranch_scc1 L_fin")
    e("s_cmp_ge_u32 s%d, 2" % sW)
    e("s_cbranch_scc1 L_nopub2")
    vST = vTmp
    vOP = 160
    e("v_mov_b32 v%d, 0" % T0)
    for k in range(4):
        e("ds_read_b128 v[%d:%d], v%d offset:%d" % (vST+4*k, vST+4*k+3, T0, L_ST + 16*k))
    e("v_lshlrev_b32 v%d, 3, v%d" % (T1, vTid))
    e("v_min_u32 v%d, 760, v%d" % (T1, T1))
    for k in range(16):
        e("ds_read_b64 v[%d:%d], v%d offset:%d" % (vOP+2*k, vOP+2*k+1, T1, L_QP + 768*k))
    e("s_waitcnt lgkmcnt(0)")
    M = 36; Lr = 37; a0 = 40
    e("v_max_f32 v%d, v%d, v%d" % (M, vST, vST+2))
    for w in range(2, 8):
        e("v_max_f32 v%d, v%d, v%d" % (M, M, vST+2*w))
    for w in range(8):
        e("v_sub_f32 v%d, v%d, v%d" % (vST+2*w, vST+2*w, M))
        e("v_mul_f32 v%d, s%d, v%d" % (vST+2*w, sLog2e, vST+2*w))
        e("v_exp_f32 v%d, v%d" % (vST+2*w, vST+2*w))
    e("s_nop 0")
    e("v_mul_f32 v%d, v%d, v%d" % (Lr, vST, vST+1))
    for w in range(1, 8):
        e("v_fmac_f32 v%d, v%d, v%d" % (Lr, vST+2*w, vST+2*w+1))
    e("v_mov_b32 v%d, 0" % a0)
    e("v_mov_b32 v%d, 0" % (a0+2))
    for w in range(8):
        for hf in range(2):
            k = 2*w + hf
            e("v_fmac_f32 v%d, v%d, v%d" % (a0, vST+2*w, vOP+2*k))
            e("v_fmac_f32 v%d, v%d, v%d" % (a0+2, vST+2*w, vOP+2*k+1))
    e("v_cmp_eq_u32 vcc, 96, v%d" % vTid)
    e("s_nop 1")
    e("v_cndmask_b32 v%d, v%d, v%d, vcc" % (a0, a0, M))
    e("v_cndmask_b32 v%d, v%d, v%d, vcc" % (a0+2, a0+2, Lr))
    e("v_mov_b32 v%d, s%d" % (a0+1, sT))
    e("v_mov_b32 v%d, s%d" % (a0+3, sT))
    e("s_lshl_b32 s%d, s%d, 11" % (sA, sJ))
    e("s_add_u32 s%d, s%d, %d" % (sA, sA, WS_O))
    e("v_lshlrev_b32 v%d, 4, v%d" % (T0, vTid))
    e("v_cmp_gt_u32 vcc, 97, v%d" % vTid)
    e("s_and_saveexec_b64 s[88:89], vcc")
    e("buffer_store_dwordx4 v[%d:%d], v%d, %s, s%d offen sc1" % (a0, a0+3, T0, srd(sWS), sA))
    e("s_mov_b64 exec, s[88:89]")
    g.lab("L_nopub2")
    G1, G2, G3 = 20, 24, 28
    a1, a2, a3 = 32, 33, 34
    e("v_lshrrev_b32 v%d, 3, v%d" % (a3, vLane))
    e("v_lshlrev_b32 v%d, 16, v%d" % (a3, a3))
    e("v_and_b32 v%d, 7, v%d" % (T1, vLane))
    e("v_lshl_add_u32 v%d, v%d, 4, v%d" % (a1, T1, a3))
    e("v_and_b32 v%d, 3, v%d" % (T1, vLane))
    e("v_lshl_add_u32 v%d, v%d, 4, v%d" % (a2, T1, a3))
    e("s_lshl_b32 s%d, s%d, 11" % (sA, sH))
    e("s_add_u32 s%d, s%d, %d" % (sA, sA, WS_O))
    e("s_mul_i32 s%d, s%d, 192" % (sB, sS))
    e("s_add_u32 s%d, s%d, s%d" % (sB, sB, sA))
    e("s_mov_b32 s%d, 0" % sCnt)
    g.lab("L_poll1")
    e("buffer_load_dwordx4 v[%d:%d], v%d, %s, s%d offen sc1" % (G1, G1+3, a1, srd(sWS), sB))
    e("buffer_load_dwordx4 v[%d:%d], v%d, %s, s%d offen offset:128 sc1" % (G2, G2+3, a2, srd(sWS), sB))
    e("buffer_load_dwordx4 v[%d:%d], v%d, %s, s%d offen offset:1536 sc1" % (G3, G3+3, a3, srd(sWS), sA))
    e("s_waitcnt vmcnt(0)")
    tagcheck([G1, G2, G3], T1, T2)
    pollend("L_poll1", T1)
    stamp(7)
    def red345(op, regs, tmps):
        e("s_nop 1")
        for v in regs:
            e("%s_dpp v%d, v%d, v%d row_ror:8 row_mask:0xf bank_mask:0xf" % (op, v, v, v))
        for swap in ("v_permlane16_swap_b32", "v_permlane32_swap_b32"):
            for v, t in zip(regs, tmps):
                e("v_mov_b32 v%d, v%d" % (t, v))
            e("s_nop 1")
            for v, t in zip(regs, tmps):
                e("%s v%d, v%d" % (swap, v, t))
            e("s_nop 1")
            for v, t in zip(regs, tmps):
                e("%s v%d, v%d, v%d" % (op, v, v, t))
    Mx = 36
    e("v_mov_b32 v%d, v%d" % (Mx, G3))
    red345("v_max_f32", [Mx], [40])
    e("v_sub_f32 v%d, v%d, v%d" % (Mx, G3, Mx))
    e("v_mul_f32 v%d, s%d, v%d" % (Mx, sLog2e, Mx))
    e("v_exp_f32 v%d, v%d" % (Mx, Mx))
    e("s_nop 0")
    rr = [G1, G1+2, G2, G2+2, G3+2]
    for v in rr:
        e("v_mul_f32 v%d, v%d, v%d" % (v, v, Mx))
    red345("v_add_f32", rr, [40, 41, 42, 43, 44])
    e("v_rcp_f32 v%d, v%d" % (Mx, G3+2))
    e("s_nop 0")
    for v in rr[:4]:
        e("v_mul_f32 v%d, v%d, v%d" % (v, v, Mx))
        rne(v)
    e("s_lshl_b32 s%d, s%d, 7" % (sA, sW))
    e("v_and_b32 v%d, 7, v%d" % (T0, vLane))
    e("v_lshlrev_b32 v%d, 3, v%d" % (T0, T0))
    e("v_add_u32 v%d, s%d, v%d" % (T0, sA, T0))
    e("v_and_b32 v%d, 3, v%d" % (T1, vLane))
    e("v_lshlrev_b32 v%d, 3, v%d" % (T1, T1))
    e("v_add_u32 v%d, s%d, v%d" % (T1, sA, T1))
    e("v_mov_b32 v%d, v%d" % (G1+1, G1+2))
    e("v_mov_b32 v%d, v%d" % (G2+1, G2+2))
    e("ds_write_b64 v%d, v[%d:%d] offset:%d" % (T0, G1, G1+1, L_WB))
    e("ds_write_b64 v%d, v[%d:%d] offset:%d" % (T1, G2, G2+1, L_WB + 64))
    vWt = 40
    e("v_lshrrev_b32 v%d, 4, v%d" % (T0, vLane))
    e("v_lshlrev_b32 v%d, 2, v%d" % (T0, T0))
    e("v_add_u32 v%d, s%d, v%d" % (T1, sA, T0))
    e("v_mov_b32 v%d, %d" % (T2, L_GB))
    e("s_waitcnt lgkmcnt(0)")
    for i in range(6):
        e("ds_read_b32 v%d, v%d offset:%d" % (vWt+i, T1, L_WB + 16*i))
    for i in range(2):
        e("ds_read_b32 v%d, v%d offset:%d" % (vWt+6+i, T0, L_HB + 16*i))
    e("ds_read_b64 v[%d:%d], v%d" % (36, 37, T2))
    e("s_waitcnt lgkmcnt(0)")
    aA, aB = 48, 56
    for i in range(8):
        if i == 7: e("s_mov_b32 exec_hi, 0")
        acc = aA if i < 6 else aB
        first = i in (0, 6)
        e("v_lshrrev_b32 v%d, 16, v%d" % (T0, vWt+i))
        for k in range(4):
            c0 = "0" if first else "v%d" % (acc+2*k)
            c1 = "0" if first else "v%d" % (acc+2*k+1)
            e("v_dot2_f32_bf16 v%d, v%d, v%d, %s" % (acc+2*k, vWO+4*i+k, T0, c0))
            e("v_dot2_f32_bf16 v%d, v%d, v%d, %s" % (acc+2*k+1, vWO+4*i+k, vWt+i, c1))
    e("s_mov_b64 exec, -1")
    e("s_nop 2")
    for k in range(8):
        e("v_mul_f32 v%d, v%d, v%d" % (aA+k, aA+k, 36))
    for k in range(8):
        e("v_fmac_f32 v%d, v%d, v%d" % (aA+k, aB+k, 37))
    e("s_nop 1")
    for k in range(4):
        e("v_permlane32_swap_b32 v%d, v%d" % (aA+k, aA+k+4))
    e("s_nop 1")
    for k in range(4):
        e("v_add_f32 v%d, v%d, v%d" % (aA+k, aA+k, aA+k+4))
    e("s_nop 1")
    for k in range(2):
        e("v_permlane16_swap_b32 v%d, v%d" % (aA+k, aA+k+2))
    e("s_nop 1")
    e("v_add_f32 v%d, v%d, v%d" % (aB, aA, aA+2))
    e("v_add_f32 v%d, v%d, v%d" % (aB+2, aA+1, aA+3))
    e("v_mov_b32 v%d, s%d" % (aB+1, sT))
    e("v_mov_b32 v%d, s%d" % (aB+3, sT))
    e("s_mul_i32 s%d, s%d, 5120" % (sA, sJ))
    e("s_lshl_b32 s%d, s%d, 10" % (sB, sW))
    e("s_add_u32 s%d, s%d, s%d" % (sA, sA, sB))
    e("s_add_u32 s%d, s%d, %d" % (sA, sA, WS_R))
    e("v_and_b32 v%d, 15, v%d" % (T0, vLane))
    e("v_lshlrev_b32 v%d, 6, v%d" % (T0, T0))
    e("v_lshrrev_b32 v%d, 4, v%d" % (T1, vLane))
    e("v_lshl_add_u32 v%d, v%d, 4, v%d" % (T0, T1, T0))
    e("buffer_store_dwordx4 v[%d:%d], v%d, %s, s%d offen sc1" % (aB, aB+3, T0, srd(sWS), sA))
    stamp(8)
    e("s_cmp_lg_u32 s%d, 0" % sW)
    e("s_cbranch_scc1 L_fin")
    e("s_cmp_ge_u32 s%d, 160" % sJ)
    e("s_cbranch_scc1 L_fin")
    FR = 64
    e("v_lshrrev_b32 v%d, 1, v%d" % (T0, vLane))
    e("v_mul_u32_u24 v%d, 5120, v%d" % (T0, T0))
    e("v_and_b32 v%d, 1, v%d" % (T1, vLane))
    e("v_lshl_add_u32 v%d, v%d, 4, v%d" % (T0, T1, T0))
    e("s_lshl_b32 s%d, s%d, 5" % (sA, sJ))
    e("s_add_u32 s%d, s%d, %d" % (sA, sA, WS_R))
    e("s_mov_b32 s%d, 0" % sCnt)
    g.lab("L_poll2")
    e("s_mov_b32 s%d, s%d" % (sB, sA))
    for n in range(8):
        e("buffer_load_dwordx4 v[%d:%d], v%d, %s, s%d offen sc1" % (FR+4*n, FR+4*n+3, T0, srd(sWS), sB))
        if n < 7: e("s_add_u32 s%d, s%d, %d" % (sB, sB, 32*5120))
    e("s_waitcnt vmcnt(0)")
    tagcheck([FR+4*n for n in range(8)], T1, T2)
    pollend("L_poll2", T1)
    for n in range(1, 8):
        e("v_add_f32 v%d, v%d, v%d" % (FR, FR, FR+4*n))
        e("v_add_f32 v%d, v%d, v%d" % (FR+2, FR+2, FR+4*n+2))
    for mode in ("quad_perm:[2,3,0,1]", "row_ror:4", "row_ror:8"):
        e("s_nop 1")
        for v in (FR, FR+2):
            e("v_add_f32_dpp v%d, v%d, v%d %s row_mask:0xf bank_mask:0xf" % (v, v, v, mode))
    for swap in ("v_permlane16_swap_b32", "v_permlane32_swap_b32"):
        e("v_mov_b32 v%d, v%d" % (FR+1, FR))
        e("v_mov_b32 v%d, v%d" % (FR+3, FR+2))
        e("s_nop 1")
        e("%s v%d, v%d" % (swap, FR, FR+1))
        e("%s v%d, v%d" % (swap, FR+2, FR+3))
        e("s_nop 1")
        e("v_add_f32 v%d, v%d, v%d" % (FR, FR, FR+1))
        e("v_add_f32 v%d, v%d, v%d" % (FR+2, FR+2, FR+3))
    e("v_cvt_pk_bf16_f32 v%d, v%d, v%d" % (FR, FR, FR+2))
    e("v_lshlrev_b32 v%d, 2, v%d" % (T0, vLane))
    e("s_lshl_b32 s%d, s%d, 3" % (sA, sJ))
    e("s_mov_b64 exec, 3")
    e("buffer_store_dword v%d, v%d, %s, s%d offen" % (FR, T0, srd(sOUT), sA))
    e("s_cmp_lg_u32 s%d, 0" % sJ)
    e("s_cbranch_scc1 L_fin")
    e("s_mov_b64 exec, 1")
    e("v_mov_b32 v%d, s%d" % (T0, sT))
    e("v_mov_b32 v%d, 0" % (T1))
    e("buffer_store_dword v%d, v%d, %s, 0 offen" % (T0, T1, srd(sWS)))
    g.lab("L_fin")
    stamp(9)
    stamp_flush()
    g.lab("L_end")
    e("s_endpgm")
    out += g.L
    out += ['.section .rodata,"a"', ".p2align 6", ".amdhsa_kernel %s_kernel" % KN,
        "  .amdhsa_next_free_vgpr 256", "  .amdhsa_next_free_sgpr 102", "  .amdhsa_accum_offset 256",
        "  .amdhsa_group_segment_fixed_size 0", "  .amdhsa_kernarg_size 104", "  .amdhsa_user_sgpr_count 2",
        "  .amdhsa_user_sgpr_kernarg_segment_ptr 1", "  .amdhsa_system_sgpr_workgroup_id_x 1", ".end_amdhsa_kernel", ""]
    return "\n".join(out)

if __name__ == "__main__":
    opt = {}
    outp = sys.argv[1]
    for a in sys.argv[2:]:
        k, v = a.split("=")
        opt[k] = int(v)
    open(outp, "w").write(gen(opt))
```

```python
import sys

KN = "gated_mix__sliding_block_cached__glu_gated_reglu__decode"

class G:
    def __init__(self):
        self.L = []
        self.uid = 0
    def e(self, s):
        self.L.append("    " + s)
    def lab(self, s):
        self.L.append(s + ":")
    def new(self, p):
        self.uid += 1
        return "L_%s_%d" % (p, self.uid)

def gen(opt):
    g = G()
    e = g.e
    NT = " nt" if opt.get("nt", 0) else ""
    sK, sV, sWQ, sWO, sF, sWD, sX, sGW, sOUT, sWS = [32 + 4*i for i in range(10)]
    def srd(b): return "s[%d:%d]" % (b, b+3)
    sH, sS, sW, sT, sJ = 72, 73, 74, 75, 76
    sA, sB, sC, sD = 77, 78, 79, 80
    sCnt = 81
    sLog2e = 82
    sKoff, sVoff = 83, 84
    WS_Q = 4096
    WS_O = WS_Q + 256*3072
    WS_R = WS_O + 256*2048
    WS_P = WS_R + 256*5120
    WS_END = WS_P + 256*8*64
    PROF = opt.get("prof", 0)
    def stamp(k):
        if not PROF: return
        e("s_memrealtime s[100:101]")
        e("s_waitcnt lgkmcnt(0)")
        e("s_mov_b32 s%d, s100" % (90+k))
    def stamp_flush():
        if not PROF: return
        e("s_mov_b64 exec, 1")
        for k in range(10):
            e("v_mov_b32 v%d, s%d" % (64+k, 90+k))
        e("s_lshl_b32 s%d, s%d, 3" % (sA, sJ))
        e("s_add_u32 s%d, s%d, s%d" % (sA, sA, sW))
        e("s_lshl_b32 s%d, s%d, 6" % (sA, sA))
        e("s_add_u32 s%d, s%d, %d" % (sA, sA, WS_P))
        e("v_mov_b32 v%d, 0" % T0)
        e("buffer_store_dwordx4 v[64:67], v%d, %s, s%d offen" % (T0, srd(sWS), sA))
        e("buffer_store_dwordx4 v[68:71], v%d, %s, s%d offen offset:16" % (T0, srd(sWS), sA))
        e("buffer_store_dwordx2 v[72:73], v%d, %s, s%d offen offset:32" % (T0, srd(sWS), sA))
        skip = g.new("dbgskip")
        e("s_cmp_lg_u32 s%d, 0" % sW)
        e("s_cbranch_scc1 %s" % skip)
        e("s_mov_b32 s%d, 0" % sA)
        e("s_cmp_eq_u32 s%d, 0" % sJ)
        e("s_cbranch_scc1 %s_w" % skip)
        e("s_mov_b32 s%d, 32" % sA)
        e("s_cmp_lg_u32 s%d, 159" % sJ)
        e("s_cbranch_scc1 %s" % skip)
        g.lab(skip + "_w")
        e("s_mov_b32 s84, s26"); e("s_mov_b32 s85, s27"); e("s_mov_b32 s86, 256"); e("s_mov_b32 s87, 0x00020000")
        for n, k in enumerate([0,2,3,5,6,7,8,9]):
            e("v_mov_b32 v%d, s%d" % (76+n, 90+k))
        e("buffer_store_dwordx4 v[76:79], v%d, s[84:87], s%d offen" % (T0, sA))
        e("buffer_store_dwordx4 v[80:83], v%d, s[84:87], s%d offen offset:16" % (T0, sA))
        g.lab(skip)
    L_QP = 0
    L_PT = 24576
    L_QB = L_PT + 2048
    L_HB = L_QB + 512
    L_GB = L_HB + 64
    L_ST = L_GB + 64
    L_WB = L_ST + 64
    L_S = 32768
    L_END = L_S + 73728
    LDS = (L_END + 255)//256*256
    vTid, vLane, vOff12, vHalf, vC = 0, 1, 2, 3, 4
    T0, T1, T2 = 5, 6, 7
    vAcc = 8
    vAccF = 14
    vTmp = 20
    def KS(i): return 64 + 4*i
    def VS(i): return (192 + 4*i) if i < 16 else (64 + 4*(i-16))
    vWQd = 192
    vFd = 212
    vXq = 224
    vXf = 230
    vGx = 234
    vGw = 240

    hdr = open("cdna_kernels/%s.s.ref" % KN).read().split("\n")
    top = []
    for ln in hdr:
        if ln.startswith("; @launch"): break
        top.append(ln)
    out = top + ["; @launch grid=(256,1,1) block=(512,1,1) lds=%d" % LDS,
        '.amdgcn_target "amdgcn-amd-amdhsa--gfx950"', ".text", ".globl %s_kernel" % KN, ".p2align 8",
        ".type %s_kernel,@function" % KN, "%s_kernel:" % KN]

    e("s_cmp_ge_u32 s2, 256")
    e("s_cbranch_scc1 L_end")
    if PROF:
        for k in range(10): e("s_mov_b32 s%d, 0" % (90+k))
    stamp(0)
    e("s_load_dwordx16 s[4:19], s[0:1], 0")
    e("s_load_dwordx8 s[20:27], s[0:1], 64")
    e("s_load_dwordx2 s[28:29], s[0:1], 96")
    e("s_mov_b32 s%d, s2" % sJ)
    e("s_and_b32 s%d, s2, 31" % sH)
    e("s_lshr_b32 s%d, s2, 5" % sS)
    e("v_and_b32 v%d, 63, v0" % vLane)
    e("v_lshrrev_b32 v%d, 6, v0" % T0)
    e("v_mul_u32_u24 v%d, 12, v%d" % (vOff12, vLane))
    e("v_readfirstlane_b32 s%d, v%d" % (sW, T0))
    e("v_lshrrev_b32 v%d, 5, v%d" % (vHalf, vLane))
    e("v_and_b32 v%d, 31, v%d" % (vC, vLane))
    e("s_mov_b32 s%d, 0x3fb8aa3b" % sLog2e)
    e("s_waitcnt lgkmcnt(0)")
    e("s_load_dword s%d, s[28:29], 0" % sT)
    def mksrd(b, p, n):
        e("s_mov_b32 s%d, s%d" % (b, p)); e("s_mov_b32 s%d, s%d" % (b+1, p+1))
        e("s_mov_b32 s%d, %d" % (b+2, n)); e("s_mov_b32 s%d, 0x00020000" % (b+3))
    mksrd(sX, 4, 1280)
    mksrd(sWQ, 10, 640*6144*2)
    e("s_lshr_b32 s%d, s%d, 4" % (sA, sJ))
    e("s_cmp_lt_u32 s%d, 8" % sA)
    e("s_cselect_b32 s%d, s16, s18" % sF)
    e("s_cselect_b32 s%d, s17, s19" % (sF+1))
    e("s_mov_b32 s%d, %d" % (sF+2, 640*1536*2)); e("s_mov_b32 s%d, 0x00020000" % (sF+3))
    mksrd(sK, 6, 402653184)
    mksrd(sV, 8, 402653184)
    mksrd(sWO, 12, 6144*640*2)
    mksrd(sWD, 20, 1536*640*2)
    mksrd(sGW, 22, 1280)
    mksrd(sOUT, 24, 1280)
    mksrd(sWS, 28, WS_END)

    e("s_mul_i32 s%d, s%d, 80" % (sA, sS))
    e("s_mul_i32 s%d, s%d, 10" % (sB, sW))
    e("s_add_u32 s%d, s%d, s%d" % (sA, sA, sB))
    e("s_lshl_b32 s%d, s%d, 1" % (sB, sA))
    e("v_lshlrev_b32 v%d, 1, v%d" % (T0, vHalf))
    for i in range(5):
        e("buffer_load_ushort v%d, v%d, %s, s%d offen offset:%d" % (vXq+i, T0, srd(sX), sB, 4*i))
    e("s_and_b32 s%d, s%d, 15" % (sC, sJ))
    e("s_mul_i32 s%d, s%d, 40" % (sC, sC))
    e("s_mul_i32 s%d, s%d, 5" % (sD, sW))
    e("s_add_u32 s%d, s%d, s%d" % (sC, sC, sD))
    e("s_lshl_b32 s%d, s%d, 1" % (sD, sC))
    for i in range(3):
        e("buffer_load_ushort v%d, v%d, %s, s%d offen offset:%d" % (vXf+i, T0, srd(sX), sD, 4*i))
    e("s_mul_i32 s%d, s%d, 12288" % (sA, sA))
    e("s_mul_i32 s%d, s%d, 384" % (sB, sH))
    e("s_add_u32 s%d, s%d, s%d" % (sA, sA, sB))
    e("v_mul_u32_u24 v%d, 12288, v%d" % (T1, vHalf))
    e("v_mul_u32_u24 v%d, 12, v%d" % (T2, vC))
    e("v_add_u32 v%d, v%d, v%d" % (T1, T1, T2))
    for i in range(5):
        e("buffer_load_dwordx3 v[%d:%d], v%d, %s, s%d offen%s" % (vWQd+4*i, vWQd+4*i+2, T1, srd(sWQ), sA, NT))
        if i < 4: e("s_add_u32 s%d, s%d, 24576" % (sA, sA))
    e("s_mul_i32 s%d, s%d, 3072" % (sC, sC))
    e("s_lshr_b32 s%d, s%d, 4" % (sB, sJ))
    e("s_and_b32 s%d, s%d, 7" % (sB, sB))
    e("s_mul_i32 s%d, s%d, 384" % (sB, sB))
    e("s_add_u32 s%d, s%d, s%d" % (sC, sC, sB))
    e("v_mul_u32_u24 v%d, 3072, v%d" % (T1, vHalf))
    e("v_add_u32 v%d, v%d, v%d" % (T1, T1, T2))
    for i in range(3):
        if i == 2: e("s_mov_b32 exec_hi, 0")
        e("buffer_load_dwordx3 v[%d:%d], v%d, %s, s%d offen%s" % (vFd+4*i, vFd+4*i+2, T1, srd(sF), sC, NT))
        if i < 2: e("s_add_u32 s%d, s%d, 6144" % (sC, sC))
    e("s_mov_b64 exec, -1")
    e("s_cmp_lg_u32 s%d, 3" % sW)
    e("s_cbranch_scc1 L_nog1")
    e("v_lshlrev_b32 v%d, 2, v%d" % (T0, vLane))
    for k in range(5):
        e("buffer_load_dword v%d, v%d, %s, 0 offen offset:%d" % (vGx+k, T0, srd(sX), 256*k))
        e("buffer_load_dword v%d, v%d, %s, 0 offen offset:%d" % (vGw+k, T0, srd(sGW), 256*k))
    g.lab("L_nog1")
    e("s_mul_i32 s%d, s%d, 12582912" % (sA, sH))
    e("s_lshl_b32 s%d, s%d, 9" % (sB, sS))
    e("s_lshl_b32 s%d, s%d, 6" % (sC, sW))
    e("s_add_u32 s%d, s%d, s%d" % (sB, sB, sC))
    e("s_add_u32 s%d, s%d, 28672" % (sB, sB))
    e("s_mul_i32 s%d, s%d, 384" % (sB, sB))
    e("s_add_u32 s%d, s%d, s%d" % (sKoff, sA, sB))
    e("s_mov_b32 s%d, s%d" % (sVoff, sKoff))
    def stream_load(i, reg, s_srd, soff):
        if i and i % 5 == 0:
            e("s_add_u32 s%d, s%d, 3840" % (soff, soff))
        e("buffer_load_dwordx3 v[%d:%d], v%d, %s, s%d offen offset:%d%s" % (reg, reg+2, vOff12, srd(s_srd), soff, (i%5)*768, NT))
    for i in range(32):
        stream_load(i, KS(i), sK, sKoff)

    stamp(1)
    e("s_waitcnt vmcnt(32)")
    stamp(2)
    def vecmat_step(acc, d, xl, xh, first):
        for k in range(3):
            c0 = "0" if first else "v%d" % (acc+2*k)
            c1 = "0" if first else "v%d" % (acc+2*k+1)
            e("v_dot2_f32_bf16 v%d, v%d, v%d, %s" % (acc+2*k, d+k, xl, c0))
            e("v_dot2_f32_bf16 v%d, v%d, v%d, %s" % (acc+2*k+1, d+k, xh, c1))
    for i in range(5):
        e("v_lshlrev_b32 v%d, 16, v%d" % (vTmp+i, vXq+i))
    for i in range(3):
        e("v_lshlrev_b32 v%d, 16, v%d" % (vTmp+5+i, vXf+i))
    for i in range(5):
        vecmat_step(vAcc, vWQd+4*i, vXq+i, vTmp+i, i == 0)
    for i in range(3):
        if i == 2: e("s_mov_b32 exec_hi, 0")
        vecmat_step(vAccF, vFd+4*i, vXf+i, vTmp+5+i, i == 0)
    e("s_mov_b64 exec, -1")
    e("s_lshl_b32 s%d, s%d, 1" % (sA, sW))
    e("v_add_u32 v%d, s%d, v%d" % (T0, sA, vHalf))
    e("v_mul_u32_u24 v%d, 1536, v%d" % (T0, T0))
    e("v_mul_u32_u24 v%d, 24, v%d" % (T1, vC))
    e("v_add_u32 v%d, v%d, v%d" % (T0, T0, T1))
    e("s_nop 1")
    for k in range(3):
        e("ds_write_b64 v%d, v[%d:%d] offset:%d" % (T0, vAcc+2*k, vAcc+2*k+1, L_QP + 8*k))
    for k in range(3):
        e("ds_write_b64 v%d, v[%d:%d] offset:%d" % (T0, vAccF+2*k, vAccF+2*k+1, L_QP + 768 + 8*k))
    e("s_cmp_lg_u32 s%d, 3" % sW)
    e("s_cbranch_scc1 L_nog2")
    t0, t1, t2, t3 = vTmp, vTmp+1, vTmp+2, vTmp+3
    e("v_mov_b32 v%d, 0" % t3)
    for k in range(5):
        e("v_lshlrev_b32 v%d, 16, v%d" % (t0, vGx+k))
        e("v_lshlrev_b32 v%d, 16, v%d" % (t1, vGw+k))
        e("v_mul_f32 v%d, v%d, v%d" % (t0, t0, t1))
        e("v_and_b32 v%d, 0xffff0000, v%d" % (t1, vGx+k))
        e("v_and_b32 v%d, 0xffff0000, v%d" % (t2, vGw+k))
        e("v_mul_f32 v%d, v%d, v%d" % (t1, t1, t2))
        e("v_cvt_pk_bf16_f32 v%d, v%d, v%d" % (t0, t0, t1))
        e("v_and_b32 v%d, 0xffff0000, v%d" % (t1, t0))
        e("v_lshlrev_b32 v%d, 16, v%d" % (t0, t0))
        e("v_add_f32 v%d, v%d, v%d" % (t3, t3, t0))
        e("v_add_f32 v%d, v%d, v%d" % (t3, t3, t1))
    def wave_reduce(op, v, t):
        e("s_nop 1")
        e("%s_dpp v%d, v%d, v%d quad_perm:[1,0,3,2] row_mask:0xf bank_mask:0xf" % (op, v, v, v))
        e("s_nop 1")
        e("%s_dpp v%d, v%d, v%d quad_perm:[2,3,0,1] row_mask:0xf bank_mask:0xf" % (op, v, v, v))
        e("s_nop 1")
        e("%s_dpp v%d, v%d, v%d row_half_mirror row_mask:0xf bank_mask:0xf" % (op, v, v, v))
        e("s_nop 1")
        e("%s_dpp v%d, v%d, v%d row_mirror row_mask:0xf bank_mask:0xf" % (op, v, v, v))
        e("v_mov_b32 v%d, v%d" % (t, v))
        e("s_nop 1")
        e("v_permlane16_swap_b32 v%d, v%d" % (v, t))
        e("s_nop 1")
        e("%s v%d, v%d, v%d" % (op, v, v, t))
        e("v_mov_b32 v%d, v%d" % (t, v))
        e("s_nop 1")
        e("v_permlane32_swap_b32 v%d, v%d" % (v, t))
        e("s_nop 1")
        e("%s v%d, v%d, v%d" % (op, v, v, t))
    wave_reduce("v_add_f32", t3, t0)
    def rne(v):
        e("v_cvt_pk_bf16_f32 v%d, v%d, v%d" % (v, v, v))
        e("v_and_b32 v%d, 0xffff0000, v%d" % (v, v))
    rne(t3)
    e("v_mul_f32 v%d, s%d, v%d" % (t3, sLog2e, t3))
    e("v_sub_f32 v%d, 0, v%d" % (t3, t3))
    e("v_exp_f32 v%d, v%d" % (t3, t3))
    e("s_nop 0")
    e("v_add_f32 v%d, 1.0, v%d" % (t3, t3))
    e("v_rcp_f32 v%d, v%d" % (t3, t3))
    e("s_nop 0")
    rne(t3)
    e("v_sub_f32 v%d, 1.0, v%d" % (t2, t3))
    rne(t2)
    e("v_mov_b32 v%d, v%d" % (t0, t3))
    e("v_mov_b32 v%d, v%d" % (t1, t2))
    e("v_mov_b32 v%d, %d" % (t3, L_GB))
    e("ds_write_b64 v%d, v[%d:%d]" % (t3, t0, t1))
    g.lab("L_nog2")
    e("s_waitcnt lgkmcnt(0)")
    e("s_barrier")
    e("s_add_u32 s%d, s%d, 1" % (sT, sT))
    e("s_cmp_ge_u32 s%d, 3" % sW)
    e("s_cbranch_scc1 L_nopub1")
    e("v_lshlrev_b32 v%d, 3, v%d" % (T0, vTid))
    for k in range(16):
        e("ds_read_b64 v[%d:%d], v%d offset:%d" % (vTmp+2*k, vTmp+2*k+1, T0, L_QP + 1536*k))
    for k in range(1, 16):
        e("s_waitcnt lgkmcnt(%d)" % (15-k))
        e("v_add_f32 v%d, v%d, v%d" % (vTmp, vTmp, vTmp+2*k))
        e("v_add_f32 v%d, v%d, v%d" % (vTmp+1, vTmp+1, vTmp+2*k+1))
    e("v_mov_b32 v%d, v%d" % (vTmp+2, vTmp+1))
    e("v_mov_b32 v%d, s%d" % (vTmp+1, sT))
    e("v_mov_b32 v%d, s%d" % (vTmp+3, sT))
    e("s_mul_i32 s%d, s%d, 3072" % (sA, sJ))
    e("s_add_u32 s%d, s%d, %d" % (sA, sA, WS_Q))
    e("v_lshlrev_b32 v%d, 4, v%d" % (T0, vTid))
    e("buffer_store_dwordx4 v[%d:%d], v%d, %s, s%d offen sc1" % (vTmp, vTmp+3, T0, srd(sWS), sA))
    g.lab("L_nopub1")
    e("s_cmp_lg_u32 s%d, 0" % sW)
    e("s_cbranch_scc1 L_vloads")
    PA = vTmp
    PB = 192
    PF = 224
    vA, vB_, vF_ = 52, 53, 54
    e("v_lshlrev_b32 v%d, 4, v%d" % (vA, vLane))
    e("v_lshlrev_b32 v%d, 4, v%d" % (vB_, vC))
    e("v_add_u32 v%d, 1024, v%d" % (vB_, vB_))
    e("v_bfe_u32 v%d, v%d, 4, 1" % (vF_, vLane))
    e("v_mul_u32_u24 v%d, %d, v%d" % (vF_, 8*16*3072, vF_))
    e("v_and_b32 v%d, 15, v%d" % (T0, vLane))
    e("v_mul_u32_u24 v%d, 3072, v%d" % (T0, T0))
    e("v_add_u32 v%d, v%d, v%d" % (vF_, vF_, T0))
    e("s_mul_i32 s%d, s%d, 3072" % (sA, sH))
    e("s_add_u32 s%d, s%d, %d" % (sA, sA, WS_Q))
    e("s_lshr_b32 s%d, s%d, 5" % (sB, sJ))
    e("s_mul_i32 s%d, s%d, %d" % (sB, sB, 16*3072))
    e("s_and_b32 s%d, s%d, 31" % (sC, sJ))
    e("s_mul_i32 s%d, s%d, 48" % (sC, sC))
    e("s_add_u32 s%d, s%d, s%d" % (sB, sB, sC))
    e("s_add_u32 s%d, s%d, %d" % (sB, sB, WS_Q + 1536))
    e("s_mov_b32 s%d, 0" % sCnt)
    g.lab("L_poll0")
    e("s_mov_b32 s%d, s%d" % (sC, sA))
    for n in range(8):
        e("buffer_load_dwordx4 v[%d:%d], v%d, %s, s%d offen sc1" % (PA+4*n, PA+4*n+3, vA, srd(sWS), sC))
        e("buffer_load_dwordx4 v[%d:%d], v%d, %s, s%d offen sc1" % (PB+4*n, PB+4*n+3, vB_, srd(sWS), sC))
        if n < 7: e("s_add_u32 s%d, s%d, %d" % (sC, sC, 32*3072))
    for n in range(3):
        e("buffer_load_dwordx4 v[%d:%d], v%d, %s, s%d offen offset:%d sc1" % (PF+4*n, PF+4*n+3, vF_, srd(sWS), sB, 16*n))
    e("s_waitcnt vmcnt(0)")
    def tagcheck(groups, vbad, vt):
        first = True
        for b in groups:
            for o in (1, 3):
                if first:
                    e("v_xor_b32 v%d, s%d, v%d" % (vbad, sT, b+o)); first = False
                else:
                    e("v_xor_b32 v%d, s%d, v%d" % (vt, sT, b+o))
                    e("v_or_b32 v%d, v%d, v%d" % (vbad, vbad, vt))
    tagcheck([PA+4*n for n in range(8)] + [PB+4*n for n in range(8)] + [PF+4*n for n in range(3)], T0, T1)
    def pollend(label, vbad):
        done = g.new("pd")
        e("v_cmp_ne_u32 vcc, 0, v%d" % vbad)
        e("s_nop 1")
        e("s_cmp_eq_u64 vcc, 0")
        e("s_cbranch_scc1 %s" % done)
        e("s_add_u32 s%d, s%d, 1" % (sCnt, sCnt))
        e("s_cmp_lt_u32 s%d, 200000" % sCnt)
        e("s_cbranch_scc0 %s" % done)
        e("s_sleep 1")
        e("s_branch %s" % label)
        g.lab(done)
    pollend("L_poll0", T0)
    for n in range(1, 8):
        e("v_add_f32 v%d, v%d, v%d" % (PA, PA, PA+4*n))
        e("v_add_f32 v%d, v%d, v%d" % (PA+2, PA+2, PA+4*n+2))
        e("v_add_f32 v%d, v%d, v%d" % (PB, PB, PB+4*n))
        e("v_add_f32 v%d, v%d, v%d" % (PB+2, PB+2, PB+4*n+2))
    e("v_cvt_pk_bf16_f32 v%d, v%d, v%d" % (PA, PA, PA+2))
    e("v_cvt_pk_bf16_f32 v%d, v%d, v%d" % (PB, PB, PB+2))
    e("v_lshlrev_b32 v%d, 2, v%d" % (T0, vLane))
    e("v_lshlrev_b32 v%d, 2, v%d" % (T1, vC))
    e("ds_write_b32 v%d, v%d offset:%d" % (T0, PA, L_QB))
    e("ds_write_b32 v%d, v%d offset:%d" % (T1, PB, L_QB + 256))
    vals = [PF+4*n+o for n in range(3) for o in (0, 2)]
    for mode in ("quad_perm:[1,0,3,2]", "quad_perm:[2,3,0,1]", "row_half_mirror", "row_mirror"):
        e("s_nop 1")
        for v in vals:
            e("v_add_f32_dpp v%d, v%d, v%d %s row_mask:0xf bank_mask:0xf" % (v, v, v, mode))
    ups = [PF+4*n+o for n in range(3) for o in (1, 3)]
    for v, u in zip(vals, ups):
        e("v_mov_b32 v%d, v%d" % (u, v))
    e("s_nop 1")
    for v, u in zip(vals, ups):
        e("v_permlane16_swap_b32 v%d, v%d" % (v, u))
    e("s_nop 1")
    for v, u in zip(vals, ups):
        rne(v); rne(u)
        e("v_max_f32 v%d, 0, v%d" % (v, v))
        e("v_mul_f32 v%d, v%d, v%d" % (v, v, u))
        rne(v)
    e("v_mov_b32 v%d, %d" % (T0, L_HB))
    for k, v in enumerate(vals):
        e("ds_write_b32 v%d, v%d offset:%d" % (T0, v, 4*k))
    e("v_mov_b32 v%d, 0" % (T1))
    e("ds_write_b32 v%d, v%d offset:24" % (T0, T1))
    e("ds_write_b32 v%d, v%d offset:28" % (T0, T1))
    e("s_waitcnt lgkmcnt(0)")
    g.lab("L_vloads")
    for i in range(16):
        stream_load(i, VS(i), sV, sVoff)
    e("s_waitcnt lgkmcnt(0)")
    e("s_barrier")
    stamp(3)
    vQ = vTmp
    e("v_mul_u32_u24 v%d, 12, v%d" % (T0, vC))
    for k in range(3):
        e("ds_read_b32 v%d, v%d offset:%d" % (vQ+k, T0, L_QB + 4*k))
    e("s_mul_i32 s%d, s%d, 9216" % (sA, sW))
    e("s_add_u32 s%d, s%d, %d" % (sA, sA, L_S))
    e("v_mul_u32_u24 v%d, 144, v%d" % (T0, vHalf))
    e("v_lshl_add_u32 v%d, v%d, 2, v%d" % (T0, vC, T0))
    e("v_add_u32 v%d, s%d, v%d" % (T0, sA, T0))
    e("s_waitcnt lgkmcnt(0)")
    vS = vTmp + 4
    for i in range(32):
        e("s_waitcnt vmcnt(%d)" % (47 if i < 16 else 63 - i))
        t = vS + (i % 8)
        k = KS(i)
        e("v_dot2_f32_bf16 v%d, v%d, v%d, 0" % (t, k, vQ))
        e("v_dot2_f32_bf16 v%d, v%d, v%d, v%d" % (t, k+1, vQ+1, t))
        e("v_dot2_f32_bf16 v%d, v%d, v%d, v%d" % (t, k+2, vQ+2, t))
        if i < 16:
            stream_load(16+i, VS(16+i), sV, sVoff)
        if i >= 1:
            tp = vS + ((i-1) % 8)
            e("ds_write_b32 v%d, v%d offset:%d" % (T0, tp, 288*(i-1)))
    e("s_nop 2")
    e("ds_write_b32 v%d, v%d offset:%d" % (T0, vS + 7, 288*31))
    stamp(4)
    vWO = 128
    e("s_cmp_ge_u32 s%d, 5" % sW)
    e("s_cbranch_scc1 L_nowo")
    e("v_lshrrev_b32 v%d, 4, v%d" % (T1, vLane))
    e("v_mul_u32_u24 v%d, 1280, v%d" % (T1, T1))
    e("v_and_b32 v%d, 15, v%d" % (T2, vLane))
    e("v_lshl_add_u32 v%d, v%d, 4, v%d" % (T1, T2, T1))
    e("s_mul_i32 s%d, s%d, 192" % (sB, sH))
    e("s_mul_i32 s%d, s%d, 24" % (sC, sS))
    e("s_add_u32 s%d, s%d, s%d" % (sB, sB, sC))
    e("s_mul_i32 s%d, s%d, 1280" % (sB, sB))
    e("s_lshl_b32 s%d, s%d, 8" % (sC, sW))
    e("s_add_u32 s%d, s%d, s%d" % (sB, sB, sC))
    for i in range(6):
        e("buffer_load_dwordx4 v[%d:%d], v%d, %s, s%d offen%s" % (vWO+4*i, vWO+4*i+3, T1, srd(sWO), sB, NT))
        if i < 5: e("s_add_u32 s%d, s%d, 5120" % (sB, sB))
    e("s_mul_i32 s%d, s%d, 7680" % (sB, sJ))
    e("s_add_u32 s%d, s%d, s%d" % (sB, sB, sC))
    e("buffer_load_dwordx4 v[%d:%d], v%d, %s, s%d offen%s" % (vWO+24, vWO+27, T1, srd(sWD), sB, NT))
    e("s_add_u32 s%d, s%d, 5120" % (sB, sB))
    e("s_mov_b32 exec_hi, 0")
    e("buffer_load_dwordx4 v[%d:%d], v%d, %s, s%d offen%s" % (vWO+28, vWO+31, T1, srd(sWD), sB, NT))
    e("s_mov_b64 exec, -1")
    g.lab("L_nowo")
    vR = 160
    e("v_mul_u32_u24 v%d, 144, v%d" % (T0, vLane))
    e("v_add_u32 v%d, s%d, v%d" % (T0, sA, T0))
    e("s_waitcnt lgkmcnt(0)")
    for k in range(8):
        e("ds_read_b128 v[%d:%d], v%d offset:%d" % (vR+4*k, vR+4*k+3, T0, 16*k))
    e("s_waitcnt lgkmcnt(0)")
    for st in (16, 8, 4, 2, 1):
        for k in range(st):
            e("v_add_f32 v%d, v%d, v%d" % (vR+k, vR+k, vR+k+st))
    sc, mx, pp, tt = vTmp, vTmp+1, vTmp+2, vTmp+3
    e("v_mov_b32 v%d, v%d" % (sc, vR))
    rne(sc)
    e("v_mul_f32 v%d, 0x3d93cd3a, v%d" % (sc, sc))
    rne(sc)
    e("v_mov_b32 v%d, v%d" % (mx, sc))
    wave_reduce("v_max_f32", mx, tt)
    e("v_sub_f32 v%d, v%d, v%d" % (pp, sc, mx))
    e("v_mul_f32 v%d, s%d, v%d" % (pp, sLog2e, pp))
    e("v_exp_f32 v%d, v%d" % (pp, pp))
    e("s_nop 0")
    e("v_mov_b32 v%d, v%d" % (sc, pp))
    rne(sc)
    e("v_and_b32 v%d, 1, v%d" % (tt, vLane))
    e("v_lshlrev_b32 v%d, 7, v%d" % (tt, tt))
    e("v_lshrrev_b32 v%d, 1, v%d" % (T0, vLane))
    e("v_lshl_add_u32 v%d, v%d, 2, v%d" % (tt, T0, tt))
    e("s_lshl_b32 s%d, s%d, 8" % (sA, sW))
    e("v_add_u32 v%d, s%d, v%d" % (tt, sA, tt))
    e("ds_write_b32 v%d, v%d offset:%d" % (tt, sc, L_PT))
    wave_reduce("v_add_f32", pp, tt)
    e("s_lshl_b32 s%d, s%d, 3" % (sA, sW))
    e("v_mov_b32 v%d, s%d" % (tt, sA))
    e("v_mov_b32 v%d, v%d" % (sc, mx))
    e("v_mov_b32 v%d, v%d" % (mx, pp))
    e("ds_write_b64 v%d, v[%d:%d] offset:%d" % (tt, sc, mx, L_ST))
    vP = 160
    e("s_lshl_b32 s%d, s%d, 8" % (sA, sW))
    e("v_lshlrev_b32 v%d, 7, v%d" % (T0, vHalf))
    e("v_add_u32 v%d, s%d, v%d" % (T0, sA, T0))
    e("s_waitcnt lgkmcnt(0)")
    for k in range(8):
        e("ds_read_b128 v[%d:%d], v%d offset:%d" % (vP+4*k, vP+4*k+3, T0, L_PT + 16*k))
    e("s_waitcnt lgkmcnt(0)")
    def pv(extra):
        for i in range(32):
            e("v_lshrrev_b32 v%d, 16, v%d" % (vTmp + (i % 4), vP+i))
            e("s_waitcnt vmcnt(%d)" % (31 - i + extra))
            vecmat_step(vAcc, VS(i), vTmp + (i % 4), vP+i, i == 0)
    e("s_cmp_ge_u32 s%d, 5" % sW)
    e("s_cbranch_scc1 L_pvB")
    pv(8)
    e("s_branch L_pvdone")
    g.lab("L_pvB")
    pv(0)
    g.lab("L_pvdone")
    e("s_lshl_b32 s%d, s%d, 1" % (sA, sW))
    e("v_add_u32 v%d, s%d, v%d" % (T0, sA, vHalf))
    e("v_mul_u32_u24 v%d, 768, v%d" % (T0, T0))
    e("v_mul_u32_u24 v%d, 24, v%d" % (T1, vC))
    e("v_add_u32 v%d, v%d, v%d" % (T0, T0, T1))
    for k in range(3):
        e("ds_write_b64 v%d, v[%d:%d] offset:%d" % (T0, vAcc+2*k, vAcc+2*k+1, L_QP + 8*k))
    e("s_waitcnt lgkmcnt(0)")
    stamp(5)
    e("s_barrier")
    stamp(6)
    e("s_cmp_ge_u32 s%d, 5" % sW)
    e("s_cbranch_scc1 L_fin")
    e("s_cmp_ge_u32 s%d, 2" % sW)
    e("s_cbranch_scc1 L_nopub2")
    vST = vTmp
    vOP = 160
    e("v_mov_b32 v%d, 0" % T0)
    for k in range(4):
        e("ds_read_b128 v[%d:%d], v%d offset:%d" % (vST+4*k, vST+4*k+3, T0, L_ST + 16*k))
    e("v_lshlrev_b32 v%d, 3, v%d" % (T1, vTid))
    e("v_min_u32 v%d, 760, v%d" % (T1, T1))
    for k in range(16):
        e("ds_read_b64 v[%d:%d], v%d offset:%d" % (vOP+2*k, vOP+2*k+1, T1, L_QP + 768*k))
    e("s_waitcnt lgkmcnt(0)")
    M = 36; Lr = 37; a0 = 40
    e("v_max_f32 v%d, v%d, v%d" % (M, vST, vST+2))
    for w in range(2, 8):
        e("v_max_f32 v%d, v%d, v%d" % (M, M, vST+2*w))
    for w in range(8):
        e("v_sub_f32 v%d, v%d, v%d" % (vST+2*w, vST+2*w, M))
        e("v_mul_f32 v%d, s%d, v%d" % (vST+2*w, sLog2e, vST+2*w))
        e("v_exp_f32 v%d, v%d" % (vST+2*w, vST+2*w))
    e("s_nop 0")
    e("v_mul_f32 v%d, v%d, v%d" % (Lr, vST, vST+1))
    for w in range(1, 8):
        e("v_fmac_f32 v%d, v%d, v%d" % (Lr, vST+2*w, vST+2*w+1))
    e("v_mov_b32 v%d, 0" % a0)
    e("v_mov_b32 v%d, 0" % (a0+2))
    for w in range(8):
        for hf in range(2):
            k = 2*w + hf
            e("v_fmac_f32 v%d, v%d, v%d" % (a0, vST+2*w, vOP+2*k))
            e("v_fmac_f32 v%d, v%d, v%d" % (a0+2, vST+2*w, vOP+2*k+1))
    e("v_cmp_eq_u32 vcc, 96, v%d" % vTid)
    e("s_nop 1")
    e("v_cndmask_b32 v%d, v%d, v%d, vcc" % (a0, a0, M))
    e("v_cndmask_b32 v%d, v%d, v%d, vcc" % (a0+2, a0+2, Lr))
    e("v_mov_b32 v%d, s%d" % (a0+1, sT))
    e("v_mov_b32 v%d, s%d" % (a0+3, sT))
    e("s_lshl_b32 s%d, s%d, 11" % (sA, sJ))
    e("s_add_u32 s%d, s%d, %d" % (sA, sA, WS_O))
    e("v_lshlrev_b32 v%d, 4, v%d" % (T0, vTid))
    e("v_cmp_gt_u32 vcc, 97, v%d" % vTid)
    e("s_and_saveexec_b64 s[88:89], vcc")
    e("buffer_store_dwordx4 v[%d:%d], v%d, %s, s%d offen sc1" % (a0, a0+3, T0, srd(sWS), sA))
    e("s_mov_b64 exec, s[88:89]")
    g.lab("L_nopub2")
    G1, G2, G3 = 20, 24, 28
    a1, a2, a3 = 32, 33, 34
    e("v_lshrrev_b32 v%d, 3, v%d" % (a3, vLane))
    e("v_lshlrev_b32 v%d, 16, v%d" % (a3, a3))
    e("v_and_b32 v%d, 7, v%d" % (T1, vLane))
    e("v_lshl_add_u32 v%d, v%d, 4, v%d" % (a1, T1, a3))
    e("v_and_b32 v%d, 3, v%d" % (T1, vLane))
    e("v_lshl_add_u32 v%d, v%d, 4, v%d" % (a2, T1, a3))
    e("s_lshl_b32 s%d, s%d, 11" % (sA, sH))
    e("s_add_u32 s%d, s%d, %d" % (sA, sA, WS_O))
    e("s_mul_i32 s%d, s%d, 192" % (sB, sS))
    e("s_add_u32 s%d, s%d, s%d" % (sB, sB, sA))
    e("s_mov_b32 s%d, 0" % sCnt)
    g.lab("L_poll1")
    e("buffer_load_dwordx4 v[%d:%d], v%d, %s, s%d offen sc1" % (G1, G1+3, a1, srd(sWS), sB))
    e("buffer_load_dwordx4 v[%d:%d], v%d, %s, s%d offen offset:128 sc1" % (G2, G2+3, a2, srd(sWS), sB))
    e("buffer_load_dwordx4 v[%d:%d], v%d, %s, s%d offen offset:1536 sc1" % (G3, G3+3, a3, srd(sWS), sA))
    e("s_waitcnt vmcnt(0)")
    tagcheck([G1, G2, G3], T1, T2)
    pollend("L_poll1", T1)
    stamp(7)
    def red345(op, regs, tmps):
        e("s_nop 1")
        for v in regs:
            e("%s_dpp v%d, v%d, v%d row_ror:8 row_mask:0xf bank_mask:0xf" % (op, v, v, v))
        for swap in ("v_permlane16_swap_b32", "v_permlane32_swap_b32"):
            for v, t in zip(regs, tmps):
                e("v_mov_b32 v%d, v%d" % (t, v))
            e("s_nop 1")
            for v, t in zip(regs, tmps):
                e("%s v%d, v%d" % (swap, v, t))
            e("s_nop 1")
            for v, t in zip(regs, tmps):
                e("%s v%d, v%d, v%d" % (op, v, v, t))
    Mx = 36
    e("v_mov_b32 v%d, v%d" % (Mx, G3))
    red345("v_max_f32", [Mx], [40])
    e("v_sub_f32 v%d, v%d, v%d" % (Mx, G3, Mx))
    e("v_mul_f32 v%d, s%d, v%d" % (Mx, sLog2e, Mx))
    e("v_exp_f32 v%d, v%d" % (Mx, Mx))
    e("s_nop 0")
    rr = [G1, G1+2, G2, G2+2, G3+2]
    for v in rr:
        e("v_mul_f32 v%d, v%d, v%d" % (v, v, Mx))
    red345("v_add_f32", rr, [40, 41, 42, 43, 44])
    e("v_rcp_f32 v%d, v%d" % (Mx, G3+2))
    e("s_nop 0")
    for v in rr[:4]:
        e("v_mul_f32 v%d, v%d, v%d" % (v, v, Mx))
        rne(v)
    e("s_lshl_b32 s%d, s%d, 7" % (sA, sW))
    e("v_and_b32 v%d, 7, v%d" % (T0, vLane))
    e("v_lshlrev_b32 v%d, 3, v%d" % (T0, T0))
    e("v_add_u32 v%d, s%d, v%d" % (T0, sA, T0))
    e("v_and_b32 v%d, 3, v%d" % (T1, vLane))
    e("v_lshlrev_b32 v%d, 3, v%d" % (T1, T1))
    e("v_add_u32 v%d, s%d, v%d" % (T1, sA, T1))
    e("v_mov_b32 v%d, v%d" % (G1+1, G1+2))
    e("v_mov_b32 v%d, v%d" % (G2+1, G2+2))
    e("ds_write_b64 v%d, v[%d:%d] offset:%d" % (T0, G1, G1+1, L_WB))
    e("ds_write_b64 v%d, v[%d:%d] offset:%d" % (T1, G2, G2+1, L_WB + 64))
    vWt = 40
    e("v_lshrrev_b32 v%d, 4, v%d" % (T0, vLane))
    e("v_lshlrev_b32 v%d, 2, v%d" % (T0, T0))
    e("v_add_u32 v%d, s%d, v%d" % (T1, sA, T0))
    e("v_mov_b32 v%d, %d" % (T2, L_GB))
    e("s_waitcnt lgkmcnt(0)")
    for i in range(6):
        e("ds_read_b32 v%d, v%d offset:%d" % (vWt+i, T1, L_WB + 16*i))
    for i in range(2):
        e("ds_read_b32 v%d, v%d offset:%d" % (vWt+6+i, T0, L_HB + 16*i))
    e("ds_read_b64 v[%d:%d], v%d" % (36, 37, T2))
    e("s_waitcnt lgkmcnt(0)")
    aA, aB = 48, 56
    for i in range(8):
        if i == 7: e("s_mov_b32 exec_hi, 0")
        acc = aA if i < 6 else aB
        first = i in (0, 6)
        e("v_lshrrev_b32 v%d, 16, v%d" % (T0, vWt+i))
        for k in range(4):
            c0 = "0" if first else "v%d" % (acc+2*k)
            c1 = "0" if first else "v%d" % (acc+2*k+1)
            e("v_dot2_f32_bf16 v%d, v%d, v%d, %s" % (acc+2*k, vWO+4*i+k, T0, c0))
            e("v_dot2_f32_bf16 v%d, v%d, v%d, %s" % (acc+2*k+1, vWO+4*i+k, vWt+i, c1))
    e("s_mov_b64 exec, -1")
    e("s_nop 2")
    for k in range(8):
        e("v_mul_f32 v%d, v%d, v%d" % (aA+k, aA+k, 36))
    for k in range(8):
        e("v_fmac_f32 v%d, v%d, v%d" % (aA+k, aB+k, 37))
    e("s_nop 1")
    for k in range(4):
        e("v_permlane32_swap_b32 v%d, v%d" % (aA+k, aA+k+4))
    e("s_nop 1")
    for k in range(4):
        e("v_add_f32 v%d, v%d, v%d" % (aA+k, aA+k, aA+k+4))
    e("s_nop 1")
    for k in range(2):
        e("v_permlane16_swap_b32 v%d, v%d" % (aA+k, aA+k+2))
    e("s_nop 1")
    e("v_add_f32 v%d, v%d, v%d" % (aB, aA, aA+2))
    e("v_add_f32 v%d, v%d, v%d" % (aB+2, aA+1, aA+3))
    e("v_mov_b32 v%d, s%d" % (aB+1, sT))
    e("v_mov_b32 v%d, s%d" % (aB+3, sT))
    e("s_mul_i32 s%d, s%d, 5120" % (sA, sJ))
    e("s_lshl_b32 s%d, s%d, 10" % (sB, sW))
    e("s_add_u32 s%d, s%d, s%d" % (sA, sA, sB))
    e("s_add_u32 s%d, s%d, %d" % (sA, sA, WS_R))
    e("v_and_b32 v%d, 15, v%d" % (T0, vLane))
    e("v_lshlrev_b32 v%d, 6, v%d" % (T0, T0))
    e("v_lshrrev_b32 v%d, 4, v%d" % (T1, vLane))
    e("v_lshl_add_u32 v%d, v%d, 4, v%d" % (T0, T1, T0))
    e("buffer_store_dwordx4 v[%d:%d], v%d, %s, s%d offen sc1" % (aB, aB+3, T0, srd(sWS), sA))
    stamp(8)
    e("s_cmp_lg_u32 s%d, 0" % sW)
    e("s_cbranch_scc1 L_fin")
    e("s_cmp_ge_u32 s%d, 160" % sJ)
    e("s_cbranch_scc1 L_fin")
    FR = 64
    e("v_lshrrev_b32 v%d, 1, v%d" % (T0, vLane))
    e("v_mul_u32_u24 v%d, 5120, v%d" % (T0, T0))
    e("v_and_b32 v%d, 1, v%d" % (T1, vLane))
    e("v_lshl_add_u32 v%d, v%d, 4, v%d" % (T0, T1, T0))
    e("s_lshl_b32 s%d, s%d, 5" % (sA, sJ))
    e("s_add_u32 s%d, s%d, %d" % (sA, sA, WS_R))
    e("s_mov_b32 s%d, 0" % sCnt)
    g.lab("L_poll2")
    e("s_mov_b32 s%d, s%d" % (sB, sA))
    for n in range(8):
        e("buffer_load_dwordx4 v[%d:%d], v%d, %s, s%d offen sc1" % (FR+4*n, FR+4*n+3, T0, srd(sWS), sB))
        if n < 7: e("s_add_u32 s%d, s%d, %d" % (sB, sB, 32*5120))
    e("s_waitcnt vmcnt(0)")
    tagcheck([FR+4*n for n in range(8)], T1, T2)
    pollend("L_poll2", T1)
    for n in range(1, 8):
        e("v_add_f32 v%d, v%d, v%d" % (FR, FR, FR+4*n))
        e("v_add_f32 v%d, v%d, v%d" % (FR+2, FR+2, FR+4*n+2))
    for mode in ("quad_perm:[2,3,0,1]", "row_ror:4", "row_ror:8"):
        e("s_nop 1")
        for v in (FR, FR+2):
            e("v_add_f32_dpp v%d, v%d, v%d %s row_mask:0xf bank_mask:0xf" % (v, v, v, mode))
    for swap in ("v_permlane16_swap_b32", "v_permlane32_swap_b32"):
        e("v_mov_b32 v%d, v%d" % (FR+1, FR))
        e("v_mov_b32 v%d, v%d" % (FR+3, FR+2))
        e("s_nop 1")
        e("%s v%d, v%d" % (swap, FR, FR+1))
        e("%s v%d, v%d" % (swap, FR+2, FR+3))
        e("s_nop 1")
        e("v_add_f32 v%d, v%d, v%d" % (FR, FR, FR+1))
        e("v_add_f32 v%d, v%d, v%d" % (FR+2, FR+2, FR+3))
    e("v_cvt_pk_bf16_f32 v%d, v%d, v%d" % (FR, FR, FR+2))
    e("v_lshlrev_b32 v%d, 2, v%d" % (T0, vLane))
    e("s_lshl_b32 s%d, s%d, 3" % (sA, sJ))
    e("s_mov_b64 exec, 3")
    e("buffer_store_dword v%d, v%d, %s, s%d offen" % (FR, T0, srd(sOUT), sA))
    e("s_cmp_lg_u32 s%d, 0" % sJ)
    e("s_cbranch_scc1 L_fin")
    e("s_mov_b64 exec, 1")
    e("v_mov_b32 v%d, s%d" % (T0, sT))
    e("v_mov_b32 v%d, 0" % (T1))
    e("buffer_store_dword v%d, v%d, %s, 0 offen" % (T0, T1, srd(sWS)))
    g.lab("L_fin")
    stamp(9)
    stamp_flush()
    g.lab("L_end")
    e("s_endpgm")
    out += g.L
    out += ['.section .rodata,"a"', ".p2align 6", ".amdhsa_kernel %s_kernel" % KN,
        "  .amdhsa_next_free_vgpr 256", "  .amdhsa_next_free_sgpr 102", "  .amdhsa_accum_offset 256",
        "  .amdhsa_group_segment_fixed_size 0", "  .amdhsa_kernarg_size 104", "  .amdhsa_user_sgpr_count 2",
        "  .amdhsa_user_sgpr_kernarg_segment_ptr 1", "  .amdhsa_system_sgpr_workgroup_id_x 1", ".end_amdhsa_kernel", ""]
    return "\n".join(out)

if __name__ == "__main__":
    opt = {}
    outp = sys.argv[1]
    for a in sys.argv[2:]:
        k, v = a.split("=")
        opt[k] = int(v)
    open(outp, "w").write(gen(opt))
```

```python
import sys

KN = "gated_mix__sliding_block_cached__glu_gated_reglu__decode"

class G:
    def __init__(self):
        self.L = []
        self.uid = 0
    def e(self, s):
        self.L.append("    " + s)
    def lab(self, s):
        self.L.append(s + ":")
    def new(self, p):
        self.uid += 1
        return "L_%s_%d" % (p, self.uid)

def gen(opt):
    g = G()
    e = g.e
    NT = " nt" if opt.get("nt", 1) else ""
    PROF = opt.get("prof", 0)
    NK0 = opt.get("nk0", 6)
    SLEEP = opt.get("sleep", 1)
    sK, sV, sWQ, sWO, sF, sWD, sX, sGW, sOUT, sWS = [32 + 4*i for i in range(10)]
    def srd(b): return "s[%d:%d]" % (b, b+3)
    sH, sS, sW, sT, sJ = 72, 73, 74, 75, 76
    sA, sB, sC, sD = 77, 78, 79, 80
    sCnt = 81
    sLog2e = 82
    sKoff, sVoff = 83, 84
    sCB = 85
    WS_Q = 4096
    WS_O = WS_Q + 256*3072
    WS_R = WS_O + 256*2048
    WS_P = WS_R + 256*5120
    WS_END = WS_P + 256*8*64
    L_QP = 0
    L_PT = 24576
    L_QB = L_PT + 2048
    L_HB = L_QB + 512
    L_GB = L_HB + 64
    L_ST = L_GB + 64
    L_WB = L_ST + 64
    L_FL = L_WB + 5*128
    L_CN = L_FL + 4
    L_S = 32768
    SSTR = 7200
    L_END = L_S + 8*SSTR
    LDS = (L_END + 255)//256*256
    vTid, vLane, vOff16, vHalf, vC = 0, 1, 2, 3, 4
    T0, T1, T2 = 5, 6, 7
    vAcc = 8
    vAccF = 14
    vP0 = 20
    vTmp = 32
    def KS(i): return 64 + 4*i
    def VS(i): return 160 + 4*i
    vWQd = 160
    vFd = 180
    vXq = 192
    vXf = 197
    vGx = 200
    vGw = 205

    def stamp(k):
        if not PROF: return
        e("s_memrealtime s[100:101]")
        e("s_waitcnt lgkmcnt(0)")
        e("s_mov_b32 s%d, s100" % (90+k))
    def stamp_flush():
        if not PROF: return
        e("s_mov_b64 exec, 1")
        for k in range(10):
            e("v_mov_b32 v%d, s%d" % (64+k, 90+k))
        e("s_lshl_b32 s%d, s%d, 3" % (sA, sJ))
        e("s_add_u32 s%d, s%d, s%d" % (sA, sA, sW))
        e("s_lshl_b32 s%d, s%d, 6" % (sA, sA))
        e("s_add_u32 s%d, s%d, %d" % (sA, sA, WS_P))
        e("v_mov_b32 v%d, 0" % T0)
        e("buffer_store_dwordx4 v[64:67], v%d, %s, s%d offen" % (T0, srd(sWS), sA))
        e("buffer_store_dwordx4 v[68:71], v%d, %s, s%d offen offset:16" % (T0, srd(sWS), sA))
        e("buffer_store_dwordx2 v[72:73], v%d, %s, s%d offen offset:32" % (T0, srd(sWS), sA))

    def tagcheck(groups, vbad, vt):
        first = True
        for b in groups:
            for o in (1, 3):
                if first:
                    e("v_xor_b32 v%d, s%d, v%d" % (vbad, sT, b+o)); first = False
                else:
                    e("v_xor_b32 v%d, s%d, v%d" % (vt, sT, b+o))
                    e("v_or_b32 v%d, v%d, v%d" % (vbad, vbad, vt))
    def pollend(label, vbad):
        done = g.new("pd")
        e("v_cmp_ne_u32 vcc, 0, v%d" % vbad)
        e("s_nop 1")
        e("s_cmp_eq_u64 vcc, 0")
        e("s_cbranch_scc1 %s" % done)
        e("s_add_u32 s%d, s%d, 1" % (sCnt, sCnt))
        e("s_cmp_lt_u32 s%d, 200000" % sCnt)
        e("s_cbranch_scc0 %s" % done)
        if SLEEP: e("s_sleep %d" % SLEEP)
        e("s_branch %s" % label)
        g.lab(done)
    hdr = open("cdna_kernels/%s.s.ref" % KN).read().split("\n")
    top = []
    for ln in hdr:
        if ln.startswith("; @launch"): break
        top.append(ln)
    out = top + ["; @launch grid=(256,1,1) block=(512,1,1) lds=%d" % LDS,
        '.amdgcn_target "amdgcn-amd-amdhsa--gfx950"', ".text", ".globl %s_kernel" % KN, ".p2align 8",
        ".type %s_kernel,@function" % KN, "%s_kernel:" % KN]

    e("s_cmp_ge_u32 s2, 256")
    e("s_cbranch_scc1 L_end")
    if PROF:
        for k in range(10): e("s_mov_b32 s%d, 0" % (90+k))
    stamp(0)
    e("s_load_dwordx16 s[4:19], s[0:1], 0")
    e("s_load_dwordx8 s[20:27], s[0:1], 64")
    e("s_load_dwordx2 s[28:29], s[0:1], 96")
    e("s_mov_b32 s%d, s2" % sJ)
    e("s_and_b32 s%d, s2, 31" % sH)
    e("s_lshr_b32 s%d, s2, 5" % sS)
    e("v_and_b32 v%d, 63, v0" % vLane)
    e("v_lshrrev_b32 v%d, 6, v0" % T0)
    e("v_lshlrev_b32 v%d, 4, v%d" % (vOff16, vLane))
    e("v_readfirstlane_b32 s%d, v%d" % (sW, T0))
    e("v_lshrrev_b32 v%d, 5, v%d" % (vHalf, vLane))
    e("v_and_b32 v%d, 31, v%d" % (vC, vLane))
    e("s_mov_b32 s%d, 0x3fb8aa3b" % sLog2e)
    e("s_waitcnt lgkmcnt(0)")
    e("s_load_dword s%d, s[28:29], 0" % sT)
    def mksrd(b, p, n):
        e("s_mov_b32 s%d, s%d" % (b, p)); e("s_mov_b32 s%d, s%d" % (b+1, p+1))
        e("s_mov_b32 s%d, %d" % (b+2, n)); e("s_mov_b32 s%d, 0x00020000" % (b+3))
    mksrd(sX, 4, 1280)
    mksrd(sWQ, 10, 640*6144*2)
    e("s_lshr_b32 s%d, s%d, 4" % (sA, sJ))
    e("s_cmp_lt_u32 s%d, 8" % sA)
    e("s_cselect_b32 s%d, s16, s18" % sF)
    e("s_cselect_b32 s%d, s17, s19" % (sF+1))
    e("s_mov_b32 s%d, %d" % (sF+2, 640*1536*2)); e("s_mov_b32 s%d, 0x00020000" % (sF+3))
    mksrd(sK, 6, 402653184)
    e("s_mul_i32 s%d, s%d, 80" % (sA, sS))
    e("s_mul_i32 s%d, s%d, 10" % (sB, sW))
    e("s_add_u32 s%d, s%d, s%d" % (sA, sA, sB))
    e("s_lshl_b32 s%d, s%d, 1" % (sB, sA))
    e("v_lshlrev_b32 v%d, 1, v%d" % (T0, vHalf))
    e("s_mul_i32 s%d, s%d, 12288" % (sA, sA))
    e("s_mul_i32 s%d, s%d, 384" % (sC, sH))
    e("s_add_u32 s%d, s%d, s%d" % (sA, sA, sC))
    e("v_mul_u32_u24 v%d, 12288, v%d" % (T1, vHalf))
    e("v_mul_u32_u24 v%d, 12, v%d" % (T2, vC))
    e("v_add_u32 v%d, v%d, v%d" % (T1, T1, T2))
    for i in range(5):
        e("buffer_load_dwordx3 v[%d:%d], v%d, %s, s%d offen%s" % (vWQd+4*i, vWQd+4*i+2, T1, srd(sWQ), sA, NT))
        if i < 4: e("s_add_u32 s%d, s%d, 24576" % (sA, sA))
    for i in range(5):
        e("buffer_load_ushort v%d, v%d, %s, s%d offen offset:%d" % (vXq+i, T0, srd(sX), sB, 4*i))
    e("s_and_b32 s%d, s%d, 15" % (sC, sJ))
    e("s_mul_i32 s%d, s%d, 40" % (sC, sC))
    e("s_mul_i32 s%d, s%d, 5" % (sD, sW))
    e("s_add_u32 s%d, s%d, s%d" % (sC, sC, sD))
    e("s_lshl_b32 s%d, s%d, 1" % (sD, sC))
    e("s_mul_i32 s%d, s%d, 3072" % (sC, sC))
    e("s_lshr_b32 s%d, s%d, 4" % (sB, sJ))
    e("s_and_b32 s%d, s%d, 7" % (sB, sB))
    e("s_mul_i32 s%d, s%d, 384" % (sB, sB))
    e("s_add_u32 s%d, s%d, s%d" % (sC, sC, sB))
    e("v_mul_u32_u24 v%d, 3072, v%d" % (T1, vHalf))
    e("v_add_u32 v%d, v%d, v%d" % (T1, T1, T2))
    for i in range(3):
        if i == 2: e("s_mov_b32 exec_hi, 0")
        e("buffer_load_dwordx3 v[%d:%d], v%d, %s, s%d offen%s" % (vFd+4*i, vFd+4*i+2, T1, srd(sF), sC, NT))
        if i < 2: e("s_add_u32 s%d, s%d, 6144" % (sC, sC))
    e("s_mov_b64 exec, -1")
    for i in range(3):
        e("buffer_load_ushort v%d, v%d, %s, s%d offen offset:%d" % (vXf+i, T0, srd(sX), sD, 4*i))
    mksrd(sGW, 22, 1280)
    e("s_cmp_lg_u32 s%d, 3" % sW)
    e("s_cbranch_scc1 L_nog1")
    e("v_lshlrev_b32 v%d, 2, v%d" % (T0, vLane))
    for k in range(5):
        e("buffer_load_dword v%d, v%d, %s, 0 offen offset:%d" % (vGx+k, T0, srd(sX), 256*k))
        e("buffer_load_dword v%d, v%d, %s, 0 offen offset:%d" % (vGw+k, T0, srd(sGW), 256*k))
    g.lab("L_nog1")
    e("s_mul_i32 s%d, s%d, 12582912" % (sA, sH))
    e("s_lshl_b32 s%d, s%d, 9" % (sB, sS))
    e("s_lshl_b32 s%d, s%d, 6" % (sC, sW))
    e("s_add_u32 s%d, s%d, s%d" % (sB, sB, sC))
    e("s_add_u32 s%d, s%d, 28672" % (sB, sB))
    e("s_mul_i32 s%d, s%d, 384" % (sB, sB))
    e("s_add_u32 s%d, s%d, s%d" % (sKoff, sA, sB))
    e("s_mov_b32 s%d, s%d" % (sVoff, sKoff))
    def stream_load(i, reg, s_srd, soff):
        if i and i % 4 == 0:
            e("s_add_u32 s%d, s%d, 4096" % (soff, soff))
        e("buffer_load_dwordx4 v[%d:%d], v%d, %s, s%d offen offset:%d%s" % (reg, reg+3, vOff16, srd(s_srd), soff, (i%4)*1024, NT))
    for i in range(NK0):
        stream_load(i, KS(i), sK, sKoff)
    mksrd(sV, 8, 402653184)
    mksrd(sWO, 12, 6144*640*2)
    mksrd(sWD, 20, 1536*640*2)
    mksrd(sOUT, 24, 1280)
    mksrd(sWS, 28, WS_END)
    e("v_mov_b32 v%d, %d" % (T0, L_FL))
    e("v_mov_b32 v%d, 0" % T1)
    e("v_mov_b32 v%d, 0" % T2)
    e("ds_write_b64 v%d, v[%d:%d]" % (T0, T1, T2))
    e("s_waitcnt lgkmcnt(0)")
    e("s_barrier")

    if not opt.get("nodep", 0): e("s_waitcnt vmcnt(%d)" % NK0)
    stamp(2)
    def vecmat_step(acc, d, xl, xh, first, n=3):
        for k in range(n):
            c0 = "0" if first else "v%d" % (acc+2*k)
            c1 = "0" if first else "v%d" % (acc+2*k+1)
            e("v_dot2_f32_bf16 v%d, v%d, v%d, %s" % (acc+2*k, d+k, xl, c0))
            e("v_dot2_f32_bf16 v%d, v%d, v%d, %s" % (acc+2*k+1, d+k, xh, c1))
    for i in range(5):
        e("v_lshlrev_b32 v%d, 16, v%d" % (vP0+i, vXq+i))
    for i in range(3):
        e("v_lshlrev_b32 v%d, 16, v%d" % (vP0+5+i, vXf+i))
    for i in range(5):
        vecmat_step(vAcc, vWQd+4*i, vXq+i, vP0+i, i == 0)
    for i in range(3):
        if i == 2: e("s_mov_b32 exec_hi, 0")
        vecmat_step(vAccF, vFd+4*i, vXf+i, vP0+5+i, i == 0)
    e("s_mov_b64 exec, -1")
    e("s_lshl_b32 s%d, s%d, 1" % (sA, sW))
    e("v_add_u32 v%d, s%d, v%d" % (T0, sA, vHalf))
    e("v_mul_u32_u24 v%d, 1536, v%d" % (T0, T0))
    e("v_mul_u32_u24 v%d, 24, v%d" % (T1, vC))
    e("v_add_u32 v%d, v%d, v%d" % (T0, T0, T1))
    e("s_nop 1")
    for k in range(3):
        e("ds_write_b64 v%d, v[%d:%d] offset:%d" % (T0, vAcc+2*k, vAcc+2*k+1, L_QP + 8*k))
    for k in range(3):
        e("ds_write_b64 v%d, v[%d:%d] offset:%d" % (T0, vAccF+2*k, vAccF+2*k+1, L_QP + 768 + 8*k))
    e("s_cmp_lg_u32 s%d, 3" % sW)
    e("s_cbranch_scc1 L_nog2")
    t0, t1, t2, t3 = vTmp, vTmp+1, vTmp+2, vTmp+3
    e("v_mov_b32 v%d, 0" % t3)
    for k in range(5):
        e("v_lshlrev_b32 v%d, 16, v%d" % (t0, vGx+k))
        e("v_lshlrev_b32 v%d, 16, v%d" % (t1, vGw+k))
        e("v_mul_f32 v%d, v%d, v%d" % (t0, t0, t1))
        e("v_and_b32 v%d, 0xffff0000, v%d" % (t1, vGx+k))
        e("v_and_b32 v%d, 0xffff0000, v%d" % (t2, vGw+k))
        e("v_mul_f32 v%d, v%d, v%d" % (t1, t1, t2))
        e("v_cvt_pk_bf16_f32 v%d, v%d, v%d" % (t0, t0, t1))
        e("v_and_b32 v%d, 0xffff0000, v%d" % (t1, t0))
        e("v_lshlrev_b32 v%d, 16, v%d" % (t0, t0))
        e("v_add_f32 v%d, v%d, v%d" % (t3, t3, t0))
        e("v_add_f32 v%d, v%d, v%d" % (t3, t3, t1))
    def wave_reduce(op, v, t):
        e("s_nop 1")
        e("%s_dpp v%d, v%d, v%d quad_perm:[1,0,3,2] row_mask:0xf bank_mask:0xf" % (op, v, v, v))
        e("s_nop 1")
        e("%s_dpp v%d, v%d, v%d quad_perm:[2,3,0,1] row_mask:0xf bank_mask:0xf" % (op, v, v, v))
        e("s_nop 1")
        e("%s_dpp v%d, v%d, v%d row_half_mirror row_mask:0xf bank_mask:0xf" % (op, v, v, v))
        e("s_nop 1")
        e("%s_dpp v%d, v%d, v%d row_mirror row_mask:0xf bank_mask:0xf" % (op, v, v, v))
        e("v_mov_b32 v%d, v%d" % (t, v))
        e("s_nop 1")
        e("v_permlane16_swap_b32 v%d, v%d" % (v, t))
        e("s_nop 1")
        e("%s v%d, v%d, v%d" % (op, v, v, t))
        e("v_mov_b32 v%d, v%d" % (t, v))
        e("s_nop 1")
        e("v_permlane32_swap_b32 v%d, v%d" % (v, t))
        e("s_nop 1")
        e("%s v%d, v%d, v%d" % (op, v, v, t))
    wave_reduce("v_add_f32", t3, t0)
    def rne(v):
        e("v_cvt_pk_bf16_f32 v%d, v%d, v%d" % (v, v, v))
        e("v_and_b32 v%d, 0xffff0000, v%d" % (v, v))
    rne(t3)
    e("v_mul_f32 v%d, s%d, v%d" % (t3, sLog2e, t3))
    e("v_sub_f32 v%d, 0, v%d" % (t3, t3))
    e("v_exp_f32 v%d, v%d" % (t3, t3))
    e("s_nop 0")
    e("v_add_f32 v%d, 1.0, v%d" % (t3, t3))
    e("v_rcp_f32 v%d, v%d" % (t3, t3))
    e("s_nop 0")
    rne(t3)
    e("v_sub_f32 v%d, 1.0, v%d" % (t2, t3))
    rne(t2)
    e("v_mov_b32 v%d, v%d" % (t0, t3))
    e("v_mov_b32 v%d, v%d" % (t1, t2))
    e("v_mov_b32 v%d, %d" % (t3, L_GB))
    e("ds_write_b64 v%d, v[%d:%d]" % (t3, t0, t1))
    g.lab("L_nog2")
    e("s_waitcnt lgkmcnt(0)")
    e("v_mov_b32 v%d, %d" % (T0, L_CN))
    e("v_mov_b32 v%d, 1" % T1)
    e("s_mov_b64 exec, 1")
    e("ds_add_u32 v%d, v%d" % (T0, T1))
    e("s_mov_b64 exec, -1")
    e("s_add_u32 s%d, s%d, 1" % (sT, sT))
    e("s_cmp_ge_u32 s%d, 3" % sW)
    e("s_cbranch_scc1 L_krest")
    e("s_mov_b32 s%d, 0" % sCnt)
    g.lab("L_await")
    e("ds_read_b32 v%d, v%d" % (T1, T0))
    e("s_waitcnt lgkmcnt(0)")
    e("v_readfirstlane_b32 s%d, v%d" % (sB, T1))
    e("s_cmp_eq_u32 s%d, 8" % sB)
    e("s_cbranch_scc1 L_aready")
    e("s_add_u32 s%d, s%d, 1" % (sCnt, sCnt))
    e("s_cmp_gt_u32 s%d, 4000000" % sCnt)
    e("s_cbranch_scc1 L_aready")
    e("s_branch L_await")
    g.lab("L_aready")
    e("v_lshlrev_b32 v%d, 3, v%d" % (T0, vTid))
    for k in range(16):
        e("ds_read_b64 v[%d:%d], v%d offset:%d" % (vTmp+2*k, vTmp+2*k+1, T0, L_QP + 1536*k))
    for k in range(1, 16):
        e("s_waitcnt lgkmcnt(%d)" % (15-k))
        e("v_add_f32 v%d, v%d, v%d" % (vTmp, vTmp, vTmp+2*k))
        e("v_add_f32 v%d, v%d, v%d" % (vTmp+1, vTmp+1, vTmp+2*k+1))
    e("v_mov_b32 v%d, v%d" % (vTmp+2, vTmp+1))
    e("v_mov_b32 v%d, s%d" % (vTmp+1, sT))
    e("v_mov_b32 v%d, s%d" % (vTmp+3, sT))
    e("s_mul_i32 s%d, s%d, 3072" % (sA, sJ))
    e("s_add_u32 s%d, s%d, %d" % (sA, sA, WS_Q))
    e("v_lshlrev_b32 v%d, 4, v%d" % (T0, vTid))
    e("buffer_store_dwordx4 v[%d:%d], v%d, %s, s%d offen sc1" % (vTmp, vTmp+3, T0, srd(sWS), sA))
    g.lab("L_krest")
    for i in range(NK0, 24):
        stream_load(i, KS(i), sK, sKoff)
    for i in range(24):
        stream_load(i, VS(i), sV, sVoff)
    e("s_cmp_ge_u32 s%d, 2" % sW)
    e("s_cbranch_scc1 L_nocomm")
    PA = vTmp
    PF = 12
    vB_, vF_ = 9, 10
    e("s_mul_i32 s%d, s%d, 3072" % (sA, sH))
    e("s_add_u32 s%d, s%d, %d" % (sA, sA, WS_Q))
    e("s_mov_b32 s%d, 0" % sCnt)
    e("s_cmp_eq_u32 s%d, 1" % sW)
    e("s_cbranch_scc1 L_commB")
    e("v_bfe_u32 v%d, v%d, 4, 1" % (vF_, vLane))
    e("v_mul_u32_u24 v%d, %d, v%d" % (vF_, 8*16*3072, vF_))
    e("v_and_b32 v%d, 15, v%d" % (T0, vLane))
    e("v_mul_u32_u24 v%d, 3072, v%d" % (T0, T0))
    e("v_add_u32 v%d, v%d, v%d" % (vF_, vF_, T0))
    e("s_lshr_b32 s%d, s%d, 5" % (sB, sJ))
    e("s_mul_i32 s%d, s%d, %d" % (sB, sB, 16*3072))
    e("s_and_b32 s%d, s%d, 31" % (sC, sJ))
    e("s_mul_i32 s%d, s%d, 48" % (sC, sC))
    e("s_add_u32 s%d, s%d, s%d" % (sB, sB, sC))
    e("s_add_u32 s%d, s%d, %d" % (sB, sB, WS_Q + 1536))
    g.lab("L_poll0")
    e("s_mov_b32 s%d, s%d" % (sC, sA))
    for n in range(8):
        e("buffer_load_dwordx4 v[%d:%d], v%d, %s, s%d offen sc1" % (PA+4*n, PA+4*n+3, vOff16, srd(sWS), sC))
        if n < 7: e("s_add_u32 s%d, s%d, %d" % (sC, sC, 32*3072))
    for n in range(3):
        e("buffer_load_dwordx4 v[%d:%d], v%d, %s, s%d offen offset:%d sc1" % (PF+4*n, PF+4*n+3, vF_, srd(sWS), sB, 16*n))
    e("s_waitcnt vmcnt(0)")
    tagcheck([PA+4*n for n in range(8)] + [PF+4*n for n in range(3)], T0, T1)
    pollend("L_poll0", T0)
    for n in range(1, 8):
        e("v_add_f32 v%d, v%d, v%d" % (PA, PA, PA+4*n))
        e("v_add_f32 v%d, v%d, v%d" % (PA+2, PA+2, PA+4*n+2))
    e("v_cvt_pk_bf16_f32 v%d, v%d, v%d" % (PA, PA, PA+2))
    e("v_lshlrev_b32 v%d, 2, v%d" % (T0, vLane))
    e("ds_write_b32 v%d, v%d offset:%d" % (T0, PA, L_QB))
    vals = [PF+4*n+o for n in range(3) for o in (0, 2)]
    for mode in ("quad_perm:[1,0,3,2]", "quad_perm:[2,3,0,1]", "row_half_mirror", "row_mirror"):
        e("s_nop 1")
        for v in vals:
            e("v_add_f32_dpp v%d, v%d, v%d %s row_mask:0xf bank_mask:0xf" % (v, v, v, mode))
    ups = [PF+4*n+o for n in range(3) for o in (1, 3)]
    for v, u in zip(vals, ups):
        e("v_mov_b32 v%d, v%d" % (u, v))
    e("s_nop 1")
    for v, u in zip(vals, ups):
        e("v_permlane16_swap_b32 v%d, v%d" % (v, u))
    e("s_nop 1")
    for v, u in zip(vals, ups):
        rne(v); rne(u)
        e("v_max_f32 v%d, 0, v%d" % (v, v))
        e("v_mul_f32 v%d, v%d, v%d" % (v, v, u))
        rne(v)
    e("v_mov_b32 v%d, %d" % (T0, L_HB))
    for k, v in enumerate(vals):
        e("ds_write_b32 v%d, v%d offset:%d" % (T0, v, 4*k))
    e("v_mov_b32 v%d, 0" % (T1))
    e("ds_write_b32 v%d, v%d offset:24" % (T0, T1))
    e("ds_write_b32 v%d, v%d offset:28" % (T0, T1))
    e("s_branch L_commdone")
    g.lab("L_commB")
    e("v_lshlrev_b32 v%d, 4, v%d" % (vB_, vC))
    e("v_add_u32 v%d, 1024, v%d" % (vB_, vB_))
    g.lab("L_poll0b")
    e("s_mov_b32 s%d, s%d" % (sC, sA))
    for n in range(8):
        e("buffer_load_dwordx4 v[%d:%d], v%d, %s, s%d offen sc1" % (PA+4*n, PA+4*n+3, vB_, srd(sWS), sC))
        if n < 7: e("s_add_u32 s%d, s%d, %d" % (sC, sC, 32*3072))
    e("s_waitcnt vmcnt(0)")
    tagcheck([PA+4*n for n in range(8)], T0, T1)
    pollend("L_poll0b", T0)
    for n in range(1, 8):
        e("v_add_f32 v%d, v%d, v%d" % (PA, PA, PA+4*n))
        e("v_add_f32 v%d, v%d, v%d" % (PA+2, PA+2, PA+4*n+2))
    e("v_cvt_pk_bf16_f32 v%d, v%d, v%d" % (PA, PA, PA+2))
    e("v_lshlrev_b32 v%d, 2, v%d" % (T1, vC))
    e("ds_write_b32 v%d, v%d offset:%d" % (T1, PA, L_QB + 256))
    g.lab("L_commdone")
    e("s_waitcnt lgkmcnt(0)")
    e("v_mov_b32 v%d, %d" % (T0, L_FL))
    e("v_mov_b32 v%d, 1" % T1)
    e("s_mov_b64 exec, 1")
    e("ds_add_u32 v%d, v%d" % (T0, T1))
    e("s_mov_b64 exec, -1")
    g.lab("L_nocomm")
    vWO = 32
    e("s_cmp_lt_u32 s%d, 3" % sW)
    e("s_cbranch_scc1 L_nowo")
    e("s_sub_u32 s%d, s%d, 3" % (sCB, sW))
    e("v_lshrrev_b32 v%d, 4, v%d" % (T1, vLane))
    e("v_mul_u32_u24 v%d, 1280, v%d" % (T1, T1))
    e("v_and_b32 v%d, 15, v%d" % (T2, vLane))
    e("v_lshl_add_u32 v%d, v%d, 4, v%d" % (T1, T2, T1))
    e("s_mul_i32 s%d, s%d, 192" % (sB, sH))
    e("s_mul_i32 s%d, s%d, 24" % (sC, sS))
    e("s_add_u32 s%d, s%d, s%d" % (sB, sB, sC))
    e("s_mul_i32 s%d, s%d, 1280" % (sB, sB))
    e("s_lshl_b32 s%d, s%d, 8" % (sC, sCB))
    e("s_add_u32 s%d, s%d, s%d" % (sB, sB, sC))
    for i in range(6):
        e("buffer_load_dwordx4 v[%d:%d], v%d, %s, s%d offen%s" % (vWO+4*i, vWO+4*i+3, T1, srd(sWO), sB, NT))
        if i < 5: e("s_add_u32 s%d, s%d, 5120" % (sB, sB))
    e("s_mul_i32 s%d, s%d, 7680" % (sB, sJ))
    e("s_add_u32 s%d, s%d, s%d" % (sB, sB, sC))
    e("buffer_load_dwordx4 v[%d:%d], v%d, %s, s%d offen%s" % (vWO+24, vWO+27, T1, srd(sWD), sB, NT))
    e("s_add_u32 s%d, s%d, 5120" % (sB, sB))
    e("s_mov_b32 exec_hi, 0")
    e("buffer_load_dwordx4 v[%d:%d], v%d, %s, s%d offen%s" % (vWO+28, vWO+31, T1, srd(sWD), sB, NT))
    e("s_mov_b64 exec, -1")
    g.lab("L_nowo")
    stamp(1)
    vKG = 20
    vCH = 23
    for t in range(3):
        e("v_add_u32 v%d, %d, v%d" % (T0, 64*t, vLane))
        e("v_mul_u32_u24 v%d, 2731, v%d" % (vKG+t, T0))
        e("v_lshrrev_b32 v%d, 16, v%d" % (vKG+t, vKG+t))
        e("v_mul_u32_u24 v%d, 24, v%d" % (T1, vKG+t))
        e("v_sub_u32 v%d, v%d, v%d" % (vCH+t, T0, T1))
    vSA = 26
    e("s_mul_i32 s%d, s%d, %d" % (sA, sW, SSTR))
    e("s_add_u32 s%d, s%d, %d" % (sA, sA, L_S))
    for t in range(3):
        e("v_mul_u32_u24 v%d, 112, v%d" % (T0, vKG+t))
        e("v_lshl_add_u32 v%d, v%d, 2, v%d" % (T0, vCH+t, T0))
        e("v_add_u32 v%d, s%d, v%d" % (vSA+t, sA, T0))
    e("v_mov_b32 v%d, %d" % (T0, L_FL))
    e("s_mov_b32 s%d, 0" % sCnt)
    g.lab("L_qwait")
    e("ds_read_b32 v%d, v%d" % (T1, T0))
    e("s_waitcnt lgkmcnt(0)")
    e("v_readfirstlane_b32 s%d, v%d" % (sB, T1))
    e("s_cmp_eq_u32 s%d, 2" % sB)
    e("s_cbranch_scc1 L_qready")
    e("s_add_u32 s%d, s%d, 1" % (sCnt, sCnt))
    e("s_cmp_gt_u32 s%d, 4000000" % sCnt)
    e("s_cbranch_scc1 L_qready")
    e("s_sleep 1")
    e("s_branch L_qwait")
    g.lab("L_qready")
    stamp(3)
    vQ = 8
    for t in range(3):
        e("v_lshlrev_b32 v%d, 4, v%d" % (T0, vCH+t))
        e("ds_read_b128 v[%d:%d], v%d offset:%d" % (vQ+4*t, vQ+4*t+3, T0, L_QB))
    e("s_waitcnt lgkmcnt(0)")
    vS = 29
    for i in range(24):
        e("s_waitcnt vmcnt(%d)" % (47 - i))
        t = vS + (i % 3)
        k = KS(i); q = vQ + 4*(i % 3)
        e("v_dot2_f32_bf16 v%d, v%d, v%d, 0" % (t, k, q))
        e("v_dot2_f32_bf16 v%d, v%d, v%d, v%d" % (t, k+1, q+1, t))
        e("v_dot2_f32_bf16 v%d, v%d, v%d, v%d" % (t, k+2, q+2, t))
        e("v_dot2_f32_bf16 v%d, v%d, v%d, v%d" % (t, k+3, q+3, t))
        if i >= 1:
            ip = i-1
            e("ds_write_b32 v%d, v%d offset:%d" % (vSA + ip % 3, vS + (ip % 3), 896*(ip//3)))
    e("s_nop 2")
    e("ds_write_b32 v%d, v%d offset:%d" % (vSA + 2, vS + 2, 896*7))
    stamp(4)
    vR = 64
    e("v_mul_u32_u24 v%d, 112, v%d" % (T0, vLane))
    e("v_add_u32 v%d, s%d, v%d" % (T0, sA, T0))
    e("s_waitcnt lgkmcnt(0)")
    for k in range(6):
        e("ds_read_b128 v[%d:%d], v%d offset:%d" % (vR+4*k, vR+4*k+3, T0, 16*k))
    e("s_waitcnt lgkmcnt(0)")
    for k in range(12):
        e("v_add_f32 v%d, v%d, v%d" % (vR+k, vR+k, vR+k+12))
    for k in range(6):
        e("v_add_f32 v%d, v%d, v%d" % (vR+k, vR+k, vR+k+6))
    for k in range(3):
        e("v_add_f32 v%d, v%d, v%d" % (vR+k, vR+k, vR+k+3))
    e("v_add_f32 v%d, v%d, v%d" % (vR, vR, vR+1))
    e("v_add_f32 v%d, v%d, v%d" % (vR, vR, vR+2))
    sc, mx, pp, tt = 8, 9, 10, 11
    e("v_mov_b32 v%d, v%d" % (sc, vR))
    rne(sc)
    e("v_mul_f32 v%d, 0x3d93cd3a, v%d" % (sc, sc))
    rne(sc)
    e("v_mov_b32 v%d, v%d" % (mx, sc))
    wave_reduce("v_max_f32", mx, tt)
    e("v_sub_f32 v%d, v%d, v%d" % (pp, sc, mx))
    e("v_mul_f32 v%d, s%d, v%d" % (pp, sLog2e, pp))
    e("v_exp_f32 v%d, v%d" % (pp, pp))
    e("s_nop 0")
    e("v_mov_b32 v%d, v%d" % (sc, pp))
    rne(sc)
    e("v_and_b32 v%d, 7, v%d" % (tt, vLane))
    e("v_lshlrev_b32 v%d, 5, v%d" % (tt, tt))
    e("v_lshrrev_b32 v%d, 3, v%d" % (T0, vLane))
    e("v_lshl_add_u32 v%d, v%d, 2, v%d" % (tt, T0, tt))
    e("s_lshl_b32 s%d, s%d, 8" % (sB, sW))
    e("v_add_u32 v%d, s%d, v%d" % (tt, sB, tt))
    e("ds_write_b32 v%d, v%d offset:%d" % (tt, sc, L_PT))
    wave_reduce("v_add_f32", pp, tt)
    e("s_lshl_b32 s%d, s%d, 3" % (sC, sW))
    e("v_mov_b32 v%d, s%d" % (tt, sC))
    e("v_mov_b32 v%d, v%d" % (sc, mx))
    e("v_mov_b32 v%d, v%d" % (mx, pp))
    e("ds_write_b64 v%d, v[%d:%d] offset:%d" % (tt, sc, mx, L_ST))
    vP = 64
    e("s_waitcnt lgkmcnt(0)")
    for t in range(3):
        e("v_lshlrev_b32 v%d, 5, v%d" % (T0, vKG+t))
        e("v_add_u32 v%d, s%d, v%d" % (T0, sB, T0))
        e("ds_read_b128 v[%d:%d], v%d offset:%d" % (vP+8*t, vP+8*t+3, T0, L_PT))
        e("ds_read_b128 v[%d:%d], v%d offset:%d" % (vP+8*t+4, vP+8*t+7, T0, L_PT + 16))
    e("s_waitcnt lgkmcnt(0)")
    vAc = 96
    vPl = 120
    def pv(extra):
        for i in range(24):
            t = i % 3; ii = i // 3
            e("v_lshrrev_b32 v%d, 16, v%d" % (vPl + (i % 4), vP+8*t+ii))
            e("s_waitcnt vmcnt(%d)" % (23 - i + extra))
            vecmat_step(vAc + 8*t, VS(i), vPl + (i % 4), vP+8*t+ii, ii == 0, n=4)
    e("s_cmp_lt_u32 s%d, 3" % sW)
    e("s_cbranch_scc1 L_pvB")
    pv(8)
    e("s_branch L_pvdone")
    g.lab("L_pvB")
    pv(0)
    g.lab("L_pvdone")
    e("v_lshlrev_b32 v%d, 5, v%d" % (T0, vLane))
    e("v_add_u32 v%d, s%d, v%d" % (T0, sA, T0))
    e("s_nop 0")
    for t in range(3):
        e("ds_write_b128 v%d, v[%d:%d] offset:%d" % (T0, vAc+8*t, vAc+8*t+3, 2048*t))
        e("ds_write_b128 v%d, v[%d:%d] offset:%d" % (T0, vAc+8*t+4, vAc+8*t+7, 2048*t + 16))
    e("s_waitcnt lgkmcnt(0)")
    stamp(5)
    e("s_barrier")
    stamp(6)
    e("s_cmp_ge_u32 s%d, 6" % sW)
    e("s_cbranch_scc1 L_nopub2")
    vO = 64
    vG_ = 8
    e("v_and_b32 v%d, 7, v%d" % (vG_, vLane))
    e("v_lshrrev_b32 v%d, 3, v%d" % (T1, vTid))
    e("v_mul_u32_u24 v%d, %d, v%d" % (T0, SSTR, vG_))
    e("v_lshl_add_u32 v%d, v%d, 4, v%d" % (T0, T1, T0))
    e("v_add_u32 v%d, %d, v%d" % (T0, L_S, T0))
    e("v_lshlrev_b32 v%d, 3, v%d" % (T2, vG_))
    e("ds_read_b64 v[10:11], v%d offset:%d" % (T2, L_ST))
    for j in range(8):
        e("ds_read_b128 v[%d:%d], v%d offset:%d" % (vO+4*j, vO+4*j+3, T0, 768*j))
    e("s_waitcnt lgkmcnt(8)")
    M = 12
    e("v_mov_b32 v%d, v10" % M)
    def red8(op, regs):
        for mode in ("quad_perm:[1,0,3,2]", "quad_perm:[2,3,0,1]", "row_half_mirror"):
            e("s_nop 1")
            for v in regs:
                e("%s_dpp v%d, v%d, v%d %s row_mask:0xf bank_mask:0xf" % (op, v, v, v, mode))
    red8("v_max_f32", [M])
    e("v_sub_f32 v10, v10, v%d" % M)
    e("v_mul_f32 v10, s%d, v10" % sLog2e)
    e("v_exp_f32 v10, v10")
    e("s_waitcnt lgkmcnt(0)")
    for st in (4, 2, 1):
        for j in range(st):
            for c in range(4):
                e("v_add_f32 v%d, v%d, v%d" % (vO+4*j+c, vO+4*j+c, vO+4*(j+st)+c))
    for c in range(4):
        e("v_mul_f32 v%d, v%d, v10" % (vO+c, vO+c))
    e("v_mul_f32 v11, v11, v10")
    red8("v_add_f32", [vO, vO+1, vO+2, vO+3, 11])
    a0 = 16
    e("v_cmp_eq_u32 vcc, 1, v%d" % vG_)
    e("s_nop 1")
    e("v_cndmask_b32 v%d, v%d, v%d, vcc" % (a0, vO, vO+2))
    e("v_cndmask_b32 v%d, v%d, v%d, vcc" % (a0+2, vO+1, vO+3))
    e("v_lshl_add_u32 v%d, v%d, 1, v%d" % (T0, T1, vG_))
    e("v_cmp_eq_u32 vcc, 2, v%d" % vTid)
    e("s_nop 1")
    e("v_cndmask_b32 v%d, v%d, v%d, vcc" % (a0, a0, M))
    e("v_cndmask_b32 v%d, v%d, v11, vcc" % (a0+2, a0+2))
    e("v_mov_b32 v%d, 96" % T1)
    e("v_cndmask_b32 v%d, v%d, v%d, vcc" % (T0, T0, T1))
    e("v_cmp_gt_u32 s[88:89], 2, v%d" % vG_)
    e("s_or_b64 vcc, vcc, s[88:89]")
    e("v_mov_b32 v%d, s%d" % (a0+1, sT))
    e("v_mov_b32 v%d, s%d" % (a0+3, sT))
    e("s_lshl_b32 s%d, s%d, 11" % (sA, sJ))
    e("s_add_u32 s%d, s%d, %d" % (sA, sA, WS_O))
    e("v_lshlrev_b32 v%d, 4, v%d" % (T0, T0))
    e("s_and_saveexec_b64 s[88:89], vcc")
    e("buffer_store_dwordx4 v[%d:%d], v%d, %s, s%d offen sc1" % (a0, a0+3, T0, srd(sWS), sA))
    e("s_mov_b64 exec, s[88:89]")
    g.lab("L_nopub2")
    e("s_cmp_lt_u32 s%d, 3" % sW)
    e("s_cbranch_scc1 L_fin")
    G1, G2, G3 = 64, 68, 72
    a1, a2, a3 = 8, 9, 10
    e("v_lshrrev_b32 v%d, 3, v%d" % (a3, vLane))
    e("v_lshlrev_b32 v%d, 16, v%d" % (a3, a3))
    e("v_and_b32 v%d, 7, v%d" % (T1, vLane))
    e("v_lshl_add_u32 v%d, v%d, 4, v%d" % (a1, T1, a3))
    e("v_and_b32 v%d, 3, v%d" % (T1, vLane))
    e("v_lshl_add_u32 v%d, v%d, 4, v%d" % (a2, T1, a3))
    e("s_lshl_b32 s%d, s%d, 11" % (sA, sH))
    e("s_add_u32 s%d, s%d, %d" % (sA, sA, WS_O))
    e("s_mul_i32 s%d, s%d, 192" % (sB, sS))
    e("s_add_u32 s%d, s%d, s%d" % (sB, sB, sA))
    e("s_mov_b32 s%d, 0" % sCnt)
    g.lab("L_poll1")
    e("buffer_load_dwordx4 v[%d:%d], v%d, %s, s%d offen sc1" % (G1, G1+3, a1, srd(sWS), sB))
    e("buffer_load_dwordx4 v[%d:%d], v%d, %s, s%d offen offset:128 sc1" % (G2, G2+3, a2, srd(sWS), sB))
    e("buffer_load_dwordx4 v[%d:%d], v%d, %s, s%d offen offset:1536 sc1" % (G3, G3+3, a3, srd(sWS), sA))
    e("s_waitcnt vmcnt(0)")
    tagcheck([G1, G2, G3], T1, T2)
    pollend("L_poll1", T1)
    stamp(7)
    def red345(op, regs, tmps):
        e("s_nop 1")
        for v in regs:
            e("%s_dpp v%d, v%d, v%d row_ror:8 row_mask:0xf bank_mask:0xf" % (op, v, v, v))
        for swap in ("v_permlane16_swap_b32", "v_permlane32_swap_b32"):
            for v, t in zip(regs, tmps):
                e("v_mov_b32 v%d, v%d" % (t, v))
            e("s_nop 1")
            for v, t in zip(regs, tmps):
                e("%s v%d, v%d" % (swap, v, t))
            e("s_nop 1")
            for v, t in zip(regs, tmps):
                e("%s v%d, v%d, v%d" % (op, v, v, t))
    Mx = 12
    e("v_mov_b32 v%d, v%d" % (Mx, G3))
    red345("v_max_f32", [Mx], [80])
    e("v_sub_f32 v%d, v%d, v%d" % (Mx, G3, Mx))
    e("v_mul_f32 v%d, s%d, v%d" % (Mx, sLog2e, Mx))
    e("v_exp_f32 v%d, v%d" % (Mx, Mx))
    e("s_nop 0")
    rr = [G1, G1+2, G2, G2+2, G3+2]
    for v in rr:
        e("v_mul_f32 v%d, v%d, v%d" % (v, v, Mx))
    red345("v_add_f32", rr, [80, 81, 82, 83, 84])
    e("v_rcp_f32 v%d, v%d" % (Mx, G3+2))
    e("s_nop 0")
    for v in rr[:4]:
        e("v_mul_f32 v%d, v%d, v%d" % (v, v, Mx))
        rne(v)
    e("s_lshl_b32 s%d, s%d, 7" % (sA, sCB))
    e("v_and_b32 v%d, 7, v%d" % (T0, vLane))
    e("v_lshlrev_b32 v%d, 3, v%d" % (T0, T0))
    e("v_add_u32 v%d, s%d, v%d" % (T0, sA, T0))
    e("v_and_b32 v%d, 3, v%d" % (T1, vLane))
    e("v_lshlrev_b32 v%d, 3, v%d" % (T1, T1))
    e("v_add_u32 v%d, s%d, v%d" % (T1, sA, T1))
    e("v_mov_b32 v%d, v%d" % (G1+1, G1+2))
    e("v_mov_b32 v%d, v%d" % (G2+1, G2+2))
    e("ds_write_b64 v%d, v[%d:%d] offset:%d" % (T0, G1, G1+1, L_WB))
    e("ds_write_b64 v%d, v[%d:%d] offset:%d" % (T1, G2, G2+1, L_WB + 64))
    vWt = 88
    e("v_lshrrev_b32 v%d, 4, v%d" % (T0, vLane))
    e("v_lshlrev_b32 v%d, 2, v%d" % (T0, T0))
    e("v_add_u32 v%d, s%d, v%d" % (T1, sA, T0))
    e("v_mov_b32 v%d, %d" % (T2, L_GB))
    e("s_waitcnt lgkmcnt(0)")
    for i in range(6):
        e("ds_read_b32 v%d, v%d offset:%d" % (vWt+i, T1, L_WB + 16*i))
    for i in range(2):
        e("ds_read_b32 v%d, v%d offset:%d" % (vWt+6+i, T0, L_HB + 16*i))
    e("ds_read_b64 v[12:13], v%d" % T2)
    e("s_waitcnt lgkmcnt(0)")
    aA, aB = 96, 104
    for i in range(8):
        if i == 7: e("s_mov_b32 exec_hi, 0")
        acc = aA if i < 6 else aB
        first = i in (0, 6)
        e("v_lshrrev_b32 v%d, 16, v%d" % (T0, vWt+i))
        for k in range(4):
            c0 = "0" if first else "v%d" % (acc+2*k)
            c1 = "0" if first else "v%d" % (acc+2*k+1)
            e("v_dot2_f32_bf16 v%d, v%d, v%d, %s" % (acc+2*k, vWO+4*i+k, T0, c0))
            e("v_dot2_f32_bf16 v%d, v%d, v%d, %s" % (acc+2*k+1, vWO+4*i+k, vWt+i, c1))
    e("s_mov_b64 exec, -1")
    e("s_nop 2")
    for k in range(8):
        e("v_mul_f32 v%d, v%d, v12" % (aA+k, aA+k))
    for k in range(8):
        e("v_fmac_f32 v%d, v%d, v13" % (aA+k, aB+k))
    e("s_nop 1")
    for k in range(4):
        e("v_permlane32_swap_b32 v%d, v%d" % (aA+k, aA+k+4))
    e("s_nop 1")
    for k in range(4):
        e("v_add_f32 v%d, v%d, v%d" % (aA+k, aA+k, aA+k+4))
    e("s_nop 1")
    for k in range(2):
        e("v_permlane16_swap_b32 v%d, v%d" % (aA+k, aA+k+2))
    e("s_nop 1")
    e("v_add_f32 v%d, v%d, v%d" % (aB, aA, aA+2))
    e("v_add_f32 v%d, v%d, v%d" % (aB+2, aA+1, aA+3))
    e("v_mov_b32 v%d, s%d" % (aB+1, sT))
    e("v_mov_b32 v%d, s%d" % (aB+3, sT))
    e("s_mul_i32 s%d, s%d, 5120" % (sA, sJ))
    e("s_lshl_b32 s%d, s%d, 10" % (sB, sCB))
    e("s_add_u32 s%d, s%d, s%d" % (sA, sA, sB))
    e("s_add_u32 s%d, s%d, %d" % (sA, sA, WS_R))
    e("v_and_b32 v%d, 15, v%d" % (T0, vLane))
    e("v_lshlrev_b32 v%d, 6, v%d" % (T0, T0))
    e("v_lshrrev_b32 v%d, 4, v%d" % (T1, vLane))
    e("v_lshl_add_u32 v%d, v%d, 4, v%d" % (T0, T1, T0))
    e("buffer_store_dwordx4 v[%d:%d], v%d, %s, s%d offen sc1" % (aB, aB+3, T0, srd(sWS), sA))
    stamp(8)
    e("s_cmp_lg_u32 s%d, 7" % sW)
    e("s_cbranch_scc1 L_fin")
    e("s_cmp_ge_u32 s%d, 160" % sJ)
    e("s_cbranch_scc1 L_fin")
    FR = 128
    e("v_lshrrev_b32 v%d, 1, v%d" % (T0, vLane))
    e("v_mul_u32_u24 v%d, 5120, v%d" % (T0, T0))
    e("v_and_b32 v%d, 1, v%d" % (T1, vLane))
    e("v_lshl_add_u32 v%d, v%d, 4, v%d" % (T0, T1, T0))
    e("s_lshl_b32 s%d, s%d, 5" % (sA, sJ))
    e("s_add_u32 s%d, s%d, %d" % (sA, sA, WS_R))
    e("s_mov_b32 s%d, 0" % sCnt)
    g.lab("L_poll2")
    e("s_mov_b32 s%d, s%d" % (sB, sA))
    for n in range(8):
        e("buffer_load_dwordx4 v[%d:%d], v%d, %s, s%d offen sc1" % (FR+4*n, FR+4*n+3, T0, srd(sWS), sB))
        if n < 7: e("s_add_u32 s%d, s%d, %d" % (sB, sB, 32*5120))
    e("s_waitcnt vmcnt(0)")
    tagcheck([FR+4*n for n in range(8)], T1, T2)
    pollend("L_poll2", T1)
    for n in range(1, 8):
        e("v_add_f32 v%d, v%d, v%d" % (FR, FR, FR+4*n))
        e("v_add_f32 v%d, v%d, v%d" % (FR+2, FR+2, FR+4*n+2))
    for mode in ("quad_perm:[2,3,0,1]", "row_ror:4", "row_ror:8"):
        e("s_nop 1")
        for v in (FR, FR+2):
            e("v_add_f32_dpp v%d, v%d, v%d %s row_mask:0xf bank_mask:0xf" % (v, v, v, mode))
    for swap in ("v_permlane16_swap_b32", "v_permlane32_swap_b32"):
        e("v_mov_b32 v%d, v%d" % (FR+1, FR))
        e("v_mov_b32 v%d, v%d" % (FR+3, FR+2))
        e("s_nop 1")
        e("%s v%d, v%d" % (swap, FR, FR+1))
        e("%s v%d, v%d" % (swap, FR+2, FR+3))
        e("s_nop 1")
        e("v_add_f32 v%d, v%d, v%d" % (FR, FR, FR+1))
        e("v_add_f32 v%d, v%d, v%d" % (FR+2, FR+2, FR+3))
    e("v_cvt_pk_bf16_f32 v%d, v%d, v%d" % (FR, FR, FR+2))
    e("v_lshlrev_b32 v%d, 2, v%d" % (T0, vLane))
    e("s_lshl_b32 s%d, s%d, 3" % (sA, sJ))
    e("s_mov_b64 exec, 3")
    e("buffer_store_dword v%d, v%d, %s, s%d offen" % (FR, T0, srd(sOUT), sA))
    e("s_cmp_lg_u32 s%d, 0" % sJ)
    e("s_cbranch_scc1 L_fin")
    e("s_mov_b64 exec, 1")
    e("v_mov_b32 v%d, s%d" % (T0, sT))
    e("v_mov_b32 v%d, 0" % (T1))
    e("buffer_store_dword v%d, v%d, %s, 0 offen" % (T0, T1, srd(sWS)))
    g.lab("L_fin")
    stamp(9)
    stamp_flush()
    g.lab("L_end")
    e("s_endpgm")
    out += g.L
    out += ['.section .rodata,"a"', ".p2align 6", ".amdhsa_kernel %s_kernel" % KN,
        "  .amdhsa_next_free_vgpr 256", "  .amdhsa_next_free_sgpr 102", "  .amdhsa_accum_offset 256",
        "  .amdhsa_group_segment_fixed_size 0", "  .amdhsa_kernarg_size 104", "  .amdhsa_user_sgpr_count 2",
        "  .amdhsa_user_sgpr_kernarg_segment_ptr 1", "  .amdhsa_system_sgpr_workgroup_id_x 1", ".end_amdhsa_kernel", ""]
    return "\n".join(out)

if __name__ == "__main__":
    opt = {}
    outp = sys.argv[1]
    for a in sys.argv[2:]:
        k, v = a.split("=")
        opt[k] = int(v)
    open(outp, "w").write(gen(opt))
```

```python
import sys

KN = "gated_mix__sliding_block_cached__glu_gated_reglu__decode"

class G:
    def __init__(self):
        self.L = []
        self.uid = 0
    def e(self, s):
        self.L.append("    " + s)
    def lab(self, s):
        self.L.append(s + ":")
    def new(self, p):
        self.uid += 1
        return "L_%s_%d" % (p, self.uid)

def gen(opt):
    g = G()
    e = g.e
    NT = " nt" if opt.get("nt", 1) else ""
    PROF = opt.get("prof", 0)
    NK0 = opt.get("nk0", 6)
    SLEEP = opt.get("sleep", 1)
    sK, sV, sWQ, sWO, sF, sWD, sX, sGW, sOUT, sWS = [32 + 4*i for i in range(10)]
    def srd(b): return "s[%d:%d]" % (b, b+3)
    sH, sS, sW, sT, sJ = 72, 73, 74, 75, 76
    sA, sB, sC, sD = 77, 78, 79, 80
    sCnt = 81
    sLog2e = 82
    sKoff, sVoff = 83, 84
    sCB = 85
    WS_Q = 4096
    WS_O = WS_Q + 256*3072
    WS_R = WS_O + 256*2048
    WS_P = WS_R + 256*5120
    WS_END = WS_P + 256*8*64
    L_QP = 0
    L_PT = 24576
    L_QB = L_PT + 2048
    L_HB = L_QB + 512
    L_GB = L_HB + 64
    L_ST = L_GB + 64
    L_WB = L_ST + 64
    L_FL = L_WB + 5*128
    L_CN = L_FL + 4
    L_F2 = L_FL + 8
    L_S = 32768
    SSTR = 7200
    L_END = L_S + 8*SSTR
    LDS = (L_END + 255)//256*256
    vTid, vLane, vOff16, vHalf, vC = 0, 1, 2, 3, 4
    T0, T1, T2 = 5, 6, 7
    vAcc = 8
    vAccF = 14
    vP0 = 20
    vTmp = 32
    def KS(i): return 64 + 4*i
    def VS(i): return 160 + 4*i
    vWQd = 160
    vFd = 180
    vXq = 192
    vXf = 197
    vGx = 200
    vGw = 205

    def stamp(k):
        if not PROF: return
        if PROF == 2 and k not in (0, 9): return
        e("s_memrealtime s[100:101]")
        e("s_waitcnt lgkmcnt(0)")
        e("s_mov_b32 s%d, s100" % (90+k))
    def stamp_flush():
        if not PROF: return
        e("s_mov_b64 exec, 1")
        for k in range(10):
            e("v_mov_b32 v%d, s%d" % (64+k, 90+k))
        e("s_lshl_b32 s%d, s%d, 3" % (sA, sJ))
        e("s_add_u32 s%d, s%d, s%d" % (sA, sA, sW))
        e("s_lshl_b32 s%d, s%d, 6" % (sA, sA))
        e("s_add_u32 s%d, s%d, %d" % (sA, sA, WS_P))
        e("v_mov_b32 v%d, 0" % T0)
        e("buffer_store_dwordx4 v[64:67], v%d, %s, s%d offen" % (T0, srd(sWS), sA))
        e("buffer_store_dwordx4 v[68:71], v%d, %s, s%d offen offset:16" % (T0, srd(sWS), sA))
        e("buffer_store_dwordx2 v[72:73], v%d, %s, s%d offen offset:32" % (T0, srd(sWS), sA))

    def tagcheck(groups, vbad, vt):
        first = True
        for b in groups:
            for o in (1, 3):
                if first:
                    e("v_xor_b32 v%d, s%d, v%d" % (vbad, sT, b+o)); first = False
                else:
                    e("v_xor_b32 v%d, s%d, v%d" % (vt, sT, b+o))
                    e("v_or_b32 v%d, v%d, v%d" % (vbad, vbad, vt))
    def pollend(label, vbad):
        done = g.new("pd")
        e("v_cmp_ne_u32 vcc, 0, v%d" % vbad)
        e("s_nop 1")
        e("s_cmp_eq_u64 vcc, 0")
        e("s_cbranch_scc1 %s" % done)
        e("s_add_u32 s%d, s%d, 1" % (sCnt, sCnt))
        e("s_cmp_lt_u32 s%d, 200000" % sCnt)
        e("s_cbranch_scc0 %s" % done)
        if SLEEP: e("s_sleep %d" % SLEEP)
        e("s_branch %s" % label)
        g.lab(done)
    hdr = open("cdna_kernels/%s.s.ref" % KN).read().split("\n")
    top = []
    for ln in hdr:
        if ln.startswith("; @launch"): break
        top.append(ln)
    out = top + ["; @launch grid=(256,1,1) block=(512,1,1) lds=%d" % LDS,
        '.amdgcn_target "amdgcn-amd-amdhsa--gfx950"', ".text", ".globl %s_kernel" % KN, ".p2align 8",
        ".type %s_kernel,@function" % KN, "%s_kernel:" % KN]

    e("s_cmp_ge_u32 s2, 256")
    e("s_cbranch_scc1 L_end")
    if PROF:
        for k in range(10): e("s_mov_b32 s%d, 0" % (90+k))
    stamp(0)
    e("s_load_dwordx16 s[4:19], s[0:1], 0")
    e("s_load_dwordx8 s[20:27], s[0:1], 64")
    e("s_load_dwordx2 s[28:29], s[0:1], 96")
    e("s_mov_b32 s%d, s2" % sJ)
    e("s_and_b32 s%d, s2, 31" % sH)
    e("s_lshr_b32 s%d, s2, 5" % sS)
    e("v_and_b32 v%d, 63, v0" % vLane)
    e("v_lshrrev_b32 v%d, 6, v0" % T0)
    e("v_lshlrev_b32 v%d, 4, v%d" % (vOff16, vLane))
    e("v_readfirstlane_b32 s%d, v%d" % (sW, T0))
    e("v_lshrrev_b32 v%d, 5, v%d" % (vHalf, vLane))
    e("v_and_b32 v%d, 31, v%d" % (vC, vLane))
    e("s_mov_b32 s%d, 0x3fb8aa3b" % sLog2e)
    e("s_waitcnt lgkmcnt(0)")
    e("s_load_dword s%d, s[28:29], 0" % sT)
    def mksrd(b, p, n):
        e("s_mov_b32 s%d, s%d" % (b, p)); e("s_mov_b32 s%d, s%d" % (b+1, p+1))
        e("s_mov_b32 s%d, %d" % (b+2, n)); e("s_mov_b32 s%d, 0x00020000" % (b+3))
    mksrd(sX, 4, 1280)
    mksrd(sWQ, 10, 640*6144*2)
    e("s_lshr_b32 s%d, s%d, 4" % (sA, sJ))
    e("s_cmp_lt_u32 s%d, 8" % sA)
    e("s_cselect_b32 s%d, s16, s18" % sF)
    e("s_cselect_b32 s%d, s17, s19" % (sF+1))
    e("s_mov_b32 s%d, %d" % (sF+2, 640*1536*2)); e("s_mov_b32 s%d, 0x00020000" % (sF+3))
    mksrd(sK, 6, 402653184)
    e("s_mul_i32 s%d, s%d, 80" % (sA, sS))
    e("s_mul_i32 s%d, s%d, 10" % (sB, sW))
    e("s_add_u32 s%d, s%d, s%d" % (sA, sA, sB))
    e("s_lshl_b32 s%d, s%d, 1" % (sB, sA))
    e("v_lshlrev_b32 v%d, 1, v%d" % (T0, vHalf))
    e("s_mul_i32 s%d, s%d, 12288" % (sA, sA))
    e("s_mul_i32 s%d, s%d, 384" % (sC, sH))
    e("s_add_u32 s%d, s%d, s%d" % (sA, sA, sC))
    e("v_mul_u32_u24 v%d, 12288, v%d" % (T1, vHalf))
    e("v_mul_u32_u24 v%d, 12, v%d" % (T2, vC))
    e("v_add_u32 v%d, v%d, v%d" % (T1, T1, T2))
    for i in range(5):
        e("buffer_load_dwordx3 v[%d:%d], v%d, %s, s%d offen%s" % (vWQd+4*i, vWQd+4*i+2, T1, srd(sWQ), sA, NT))
        if i < 4: e("s_add_u32 s%d, s%d, 24576" % (sA, sA))
    for i in range(5):
        e("buffer_load_ushort v%d, v%d, %s, s%d offen offset:%d" % (vXq+i, T0, srd(sX), sB, 4*i))
    e("s_and_b32 s%d, s%d, 15" % (sC, sJ))
    e("s_mul_i32 s%d, s%d, 40" % (sC, sC))
    e("s_mul_i32 s%d, s%d, 5" % (sD, sW))
    e("s_add_u32 s%d, s%d, s%d" % (sC, sC, sD))
    e("s_lshl_b32 s%d, s%d, 1" % (sD, sC))
    e("s_mul_i32 s%d, s%d, 3072" % (sC, sC))
    e("s_lshr_b32 s%d, s%d, 4" % (sB, sJ))
    e("s_and_b32 s%d, s%d, 7" % (sB, sB))
    e("s_mul_i32 s%d, s%d, 384" % (sB, sB))
    e("s_add_u32 s%d, s%d, s%d" % (sC, sC, sB))
    e("v_mul_u32_u24 v%d, 3072, v%d" % (T1, vHalf))
    e("v_add_u32 v%d, v%d, v%d" % (T1, T1, T2))
    for i in range(3):
        if i == 2: e("s_mov_b32 exec_hi, 0")
        e("buffer_load_dwordx3 v[%d:%d], v%d, %s, s%d offen%s" % (vFd+4*i, vFd+4*i+2, T1, srd(sF), sC, NT))
        if i < 2: e("s_add_u32 s%d, s%d, 6144" % (sC, sC))
    e("s_mov_b64 exec, -1")
    for i in range(3):
        e("buffer_load_ushort v%d, v%d, %s, s%d offen offset:%d" % (vXf+i, T0, srd(sX), sD, 4*i))
    mksrd(sGW, 22, 1280)
    e("s_cmp_lg_u32 s%d, 5" % sW)
    e("s_cbranch_scc1 L_nog1")
    e("v_lshlrev_b32 v%d, 2, v%d" % (T0, vLane))
    for k in range(5):
        e("buffer_load_dword v%d, v%d, %s, 0 offen offset:%d" % (vGx+k, T0, srd(sX), 256*k))
        e("buffer_load_dword v%d, v%d, %s, 0 offen offset:%d" % (vGw+k, T0, srd(sGW), 256*k))
    g.lab("L_nog1")
    e("s_mul_i32 s%d, s%d, 12582912" % (sA, sH))
    e("s_lshl_b32 s%d, s%d, 9" % (sB, sS))
    e("s_lshl_b32 s%d, s%d, 6" % (sC, sW))
    e("s_add_u32 s%d, s%d, s%d" % (sB, sB, sC))
    e("s_add_u32 s%d, s%d, 28672" % (sB, sB))
    e("s_mul_i32 s%d, s%d, 384" % (sB, sB))
    e("s_add_u32 s%d, s%d, s%d" % (sKoff, sA, sB))
    e("s_mov_b32 s%d, s%d" % (sVoff, sKoff))
    def stream_load(i, reg, s_srd, soff):
        if i and i % 4 == 0:
            e("s_add_u32 s%d, s%d, 4096" % (soff, soff))
        e("buffer_load_dwordx4 v[%d:%d], v%d, %s, s%d offen offset:%d%s" % (reg, reg+3, vOff16, srd(s_srd), soff, (i%4)*1024, NT))
    for i in range(NK0):
        stream_load(i, KS(i), sK, sKoff)
    mksrd(sV, 8, 402653184)
    mksrd(sWO, 12, 6144*640*2)
    mksrd(sWD, 20, 1536*640*2)
    mksrd(sOUT, 24, 1280)
    mksrd(sWS, 28, WS_END)
    e("v_mov_b32 v%d, %d" % (T0, L_FL))
    e("v_mov_b32 v%d, 0" % T1)
    e("v_mov_b32 v%d, 0" % T2)
    e("ds_write_b64 v%d, v[%d:%d]" % (T0, T1, T2))
    e("ds_write_b32 v%d, v%d offset:8" % (T0, T1))
    e("s_waitcnt lgkmcnt(0)")
    e("s_barrier")

    if not opt.get("nodep", 0): e("s_waitcnt vmcnt(%d)" % NK0)
    stamp(2)
    def vecmat_step(acc, d, xl, xh, first, n=3):
        for k in range(n):
            c0 = "0" if first else "v%d" % (acc+2*k)
            c1 = "0" if first else "v%d" % (acc+2*k+1)
            e("v_dot2_f32_bf16 v%d, v%d, v%d, %s" % (acc+2*k, d+k, xl, c0))
            e("v_dot2_f32_bf16 v%d, v%d, v%d, %s" % (acc+2*k+1, d+k, xh, c1))
    for i in range(5):
        e("v_lshlrev_b32 v%d, 16, v%d" % (vP0+i, vXq+i))
    for i in range(3):
        e("v_lshlrev_b32 v%d, 16, v%d" % (vP0+5+i, vXf+i))
    for i in range(5):
        vecmat_step(vAcc, vWQd+4*i, vXq+i, vP0+i, i == 0)
    for i in range(3):
        if i == 2: e("s_mov_b32 exec_hi, 0")
        vecmat_step(vAccF, vFd+4*i, vXf+i, vP0+5+i, i == 0)
    e("s_mov_b64 exec, -1")
    e("s_lshl_b32 s%d, s%d, 1" % (sA, sW))
    e("v_add_u32 v%d, s%d, v%d" % (T0, sA, vHalf))
    e("v_mul_u32_u24 v%d, 1536, v%d" % (T0, T0))
    e("v_mul_u32_u24 v%d, 24, v%d" % (T1, vC))
    e("v_add_u32 v%d, v%d, v%d" % (T0, T0, T1))
    e("s_nop 1")
    for k in range(3):
        e("ds_write_b64 v%d, v[%d:%d] offset:%d" % (T0, vAcc+2*k, vAcc+2*k+1, L_QP + 8*k))
    for k in range(3):
        e("ds_write_b64 v%d, v[%d:%d] offset:%d" % (T0, vAccF+2*k, vAccF+2*k+1, L_QP + 768 + 8*k))
    e("s_cmp_lg_u32 s%d, 5" % sW)
    e("s_cbranch_scc1 L_nog2")
    t0, t1, t2, t3 = vTmp, vTmp+1, vTmp+2, vTmp+3
    e("v_mov_b32 v%d, 0" % t3)
    for k in range(5):
        e("v_lshlrev_b32 v%d, 16, v%d" % (t0, vGx+k))
        e("v_lshlrev_b32 v%d, 16, v%d" % (t1, vGw+k))
        e("v_mul_f32 v%d, v%d, v%d" % (t0, t0, t1))
        e("v_and_b32 v%d, 0xffff0000, v%d" % (t1, vGx+k))
        e("v_and_b32 v%d, 0xffff0000, v%d" % (t2, vGw+k))
        e("v_mul_f32 v%d, v%d, v%d" % (t1, t1, t2))
        e("v_cvt_pk_bf16_f32 v%d, v%d, v%d" % (t0, t0, t1))
        e("v_and_b32 v%d, 0xffff0000, v%d" % (t1, t0))
        e("v_lshlrev_b32 v%d, 16, v%d" % (t0, t0))
        e("v_add_f32 v%d, v%d, v%d" % (t3, t3, t0))
        e("v_add_f32 v%d, v%d, v%d" % (t3, t3, t1))
    def wave_reduce(op, v, t):
        e("s_nop 1")
        e("%s_dpp v%d, v%d, v%d quad_perm:[1,0,3,2] row_mask:0xf bank_mask:0xf" % (op, v, v, v))
        e("s_nop 1")
        e("%s_dpp v%d, v%d, v%d quad_perm:[2,3,0,1] row_mask:0xf bank_mask:0xf" % (op, v, v, v))
        e("s_nop 1")
        e("%s_dpp v%d, v%d, v%d row_half_mirror row_mask:0xf bank_mask:0xf" % (op, v, v, v))
        e("s_nop 1")
        e("%s_dpp v%d, v%d, v%d row_mirror row_mask:0xf bank_mask:0xf" % (op, v, v, v))
        e("v_mov_b32 v%d, v%d" % (t, v))
        e("s_nop 1")
        e("v_permlane16_swap_b32 v%d, v%d" % (v, t))
        e("s_nop 1")
        e("%s v%d, v%d, v%d" % (op, v, v, t))
        e("v_mov_b32 v%d, v%d" % (t, v))
        e("s_nop 1")
        e("v_permlane32_swap_b32 v%d, v%d" % (v, t))
        e("s_nop 1")
        e("%s v%d, v%d, v%d" % (op, v, v, t))
    wave_reduce("v_add_f32", t3, t0)
    def rne(v):
        e("v_cvt_pk_bf16_f32 v%d, v%d, v%d" % (v, v, v))
        e("v_and_b32 v%d, 0xffff0000, v%d" % (v, v))
    rne(t3)
    e("v_mul_f32 v%d, s%d, v%d" % (t3, sLog2e, t3))
    e("v_sub_f32 v%d, 0, v%d" % (t3, t3))
    e("v_exp_f32 v%d, v%d" % (t3, t3))
    e("s_nop 0")
    e("v_add_f32 v%d, 1.0, v%d" % (t3, t3))
    e("v_rcp_f32 v%d, v%d" % (t3, t3))
    e("s_nop 0")
    rne(t3)
    e("v_sub_f32 v%d, 1.0, v%d" % (t2, t3))
    rne(t2)
    e("v_mov_b32 v%d, v%d" % (t0, t3))
    e("v_mov_b32 v%d, v%d" % (t1, t2))
    e("v_mov_b32 v%d, %d" % (t3, L_GB))
    e("ds_write_b64 v%d, v[%d:%d]" % (t3, t0, t1))
    g.lab("L_nog2")
    e("s_waitcnt lgkmcnt(0)")
    e("v_mov_b32 v%d, %d" % (T0, L_CN))
    e("v_mov_b32 v%d, 1" % T1)
    e("s_mov_b64 exec, 1")
    e("ds_add_u32 v%d, v%d" % (T0, T1))
    e("s_mov_b64 exec, -1")
    e("s_add_u32 s%d, s%d, 1" % (sT, sT))
    e("s_sub_u32 s%d, s%d, 2" % (sB, sW))
    e("s_cmp_ge_u32 s%d, 3" % sB)
    e("s_cbranch_scc1 L_krest")
    e("s_setprio 3")
    e("s_mov_b32 s%d, 0" % sCnt)
    g.lab("L_await")
    e("ds_read_b32 v%d, v%d" % (T1, T0))
    e("s_waitcnt lgkmcnt(0)")
    e("v_readfirstlane_b32 s%d, v%d" % (sB, T1))
    e("s_cmp_eq_u32 s%d, 8" % sB)
    e("s_cbranch_scc1 L_aready")
    e("s_add_u32 s%d, s%d, 1" % (sCnt, sCnt))
    e("s_cmp_gt_u32 s%d, 4000000" % sCnt)
    e("s_cbranch_scc1 L_aready")
    e("s_branch L_await")
    g.lab("L_aready")
    e("v_subrev_u32 v%d, 128, v%d" % (T2, vTid))
    e("v_lshlrev_b32 v%d, 3, v%d" % (T0, T2))
    for k in range(16):
        e("ds_read_b64 v[%d:%d], v%d offset:%d" % (vTmp+2*k, vTmp+2*k+1, T0, L_QP + 1536*k))
    for k in range(1, 16):
        e("s_waitcnt lgkmcnt(%d)" % (15-k))
        e("v_add_f32 v%d, v%d, v%d" % (vTmp, vTmp, vTmp+2*k))
        e("v_add_f32 v%d, v%d, v%d" % (vTmp+1, vTmp+1, vTmp+2*k+1))
    e("v_mov_b32 v%d, v%d" % (vTmp+2, vTmp+1))
    e("v_mov_b32 v%d, s%d" % (vTmp+1, sT))
    e("v_mov_b32 v%d, s%d" % (vTmp+3, sT))
    e("s_mul_i32 s%d, s%d, 3072" % (sA, sJ))
    e("s_add_u32 s%d, s%d, %d" % (sA, sA, WS_Q))
    e("v_lshlrev_b32 v%d, 4, v%d" % (T0, T2))
    e("buffer_store_dwordx4 v[%d:%d], v%d, %s, s%d offen sc1" % (vTmp, vTmp+3, T0, srd(sWS), sA))
    e("s_setprio 0")
    stamp(4)
    g.lab("L_krest")
    if opt.get("prio", 1):
        e("s_cmp_ge_u32 s%d, 2" % sW)
        e("s_cbranch_scc1 L_noprio")
        e("s_setprio 2")
        g.lab("L_noprio")
    for i in range(NK0, 24):
        stream_load(i, KS(i), sK, sKoff)
    NV1 = opt.get("nv1", 12)
    for i in range(NV1):
        stream_load(i, VS(i), sV, sVoff)
    e("s_cmp_ge_u32 s%d, 2" % sW)
    e("s_cbranch_scc1 L_nocomm")
    PA = vTmp
    PF = 12
    vB_, vF_ = 9, 10
    e("s_mul_i32 s%d, s%d, 3072" % (sA, sH))
    e("s_add_u32 s%d, s%d, %d" % (sA, sA, WS_Q))
    e("s_mov_b32 s%d, 0" % sCnt)
    e("s_cmp_eq_u32 s%d, 1" % sW)
    e("s_cbranch_scc1 L_commB")
    e("v_bfe_u32 v%d, v%d, 4, 1" % (vF_, vLane))
    e("v_mul_u32_u24 v%d, %d, v%d" % (vF_, 8*16*3072, vF_))
    e("v_and_b32 v%d, 15, v%d" % (T0, vLane))
    e("v_mul_u32_u24 v%d, 3072, v%d" % (T0, T0))
    e("v_add_u32 v%d, v%d, v%d" % (vF_, vF_, T0))
    e("s_lshr_b32 s%d, s%d, 5" % (sB, sJ))
    e("s_mul_i32 s%d, s%d, %d" % (sB, sB, 16*3072))
    e("s_and_b32 s%d, s%d, 31" % (sC, sJ))
    e("s_mul_i32 s%d, s%d, 48" % (sC, sC))
    e("s_add_u32 s%d, s%d, s%d" % (sB, sB, sC))
    e("s_add_u32 s%d, s%d, %d" % (sB, sB, WS_Q + 1536))
    g.lab("L_poll0")
    e("s_mov_b32 s%d, s%d" % (sC, sA))
    for n in range(8):
        e("buffer_load_dwordx4 v[%d:%d], v%d, %s, s%d offen sc1" % (PA+4*n, PA+4*n+3, vOff16, srd(sWS), sC))
        if n < 7: e("s_add_u32 s%d, s%d, %d" % (sC, sC, 32*3072))
    for n in range(3):
        e("buffer_load_dwordx4 v[%d:%d], v%d, %s, s%d offen offset:%d sc1" % (PF+4*n, PF+4*n+3, vF_, srd(sWS), sB, 16*n))
    e("s_waitcnt vmcnt(0)")
    tagcheck([PA+4*n for n in range(8)] + [PF+4*n for n in range(3)], T0, T1)
    pollend("L_poll0", T0)
    for n in range(1, 8):
        e("v_add_f32 v%d, v%d, v%d" % (PA, PA, PA+4*n))
        e("v_add_f32 v%d, v%d, v%d" % (PA+2, PA+2, PA+4*n+2))
    e("v_cvt_pk_bf16_f32 v%d, v%d, v%d" % (PA, PA, PA+2))
    e("v_lshlrev_b32 v%d, 2, v%d" % (T0, vLane))
    e("ds_write_b32 v%d, v%d offset:%d" % (T0, PA, L_QB))
    vals = [PF+4*n+o for n in range(3) for o in (0, 2)]
    for mode in ("quad_perm:[1,0,3,2]", "quad_perm:[2,3,0,1]", "row_half_mirror", "row_mirror"):
        e("s_nop 1")
        for v in vals:
            e("v_add_f32_dpp v%d, v%d, v%d %s row_mask:0xf bank_mask:0xf" % (v, v, v, mode))
    ups = [PF+4*n+o for n in range(3) for o in (1, 3)]
    for v, u in zip(vals, ups):
        e("v_mov_b32 v%d, v%d" % (u, v))
    e("s_nop 1")
    for v, u in zip(vals, ups):
        e("v_permlane16_swap_b32 v%d, v%d" % (v, u))
    e("s_nop 1")
    for v, u in zip(vals, ups):
        rne(v); rne(u)
        e("v_max_f32 v%d, 0, v%d" % (v, v))
        e("v_mul_f32 v%d, v%d, v%d" % (v, v, u))
        rne(v)
    e("v_mov_b32 v%d, %d" % (T0, L_HB))
    for k, v in enumerate(vals):
        e("ds_write_b32 v%d, v%d offset:%d" % (T0, v, 4*k))
    e("v_mov_b32 v%d, 0" % (T1))
    e("ds_write_b32 v%d, v%d offset:24" % (T0, T1))
    e("ds_write_b32 v%d, v%d offset:28" % (T0, T1))
    e("s_branch L_commdone")
    g.lab("L_commB")
    e("v_lshlrev_b32 v%d, 4, v%d" % (vB_, vC))
    e("v_add_u32 v%d, 1024, v%d" % (vB_, vB_))
    g.lab("L_poll0b")
    e("s_mov_b32 s%d, s%d" % (sC, sA))
    for n in range(8):
        e("buffer_load_dwordx4 v[%d:%d], v%d, %s, s%d offen sc1" % (PA+4*n, PA+4*n+3, vB_, srd(sWS), sC))
        if n < 7: e("s_add_u32 s%d, s%d, %d" % (sC, sC, 32*3072))
    e("s_waitcnt vmcnt(0)")
    tagcheck([PA+4*n for n in range(8)], T0, T1)
    pollend("L_poll0b", T0)
    for n in range(1, 8):
        e("v_add_f32 v%d, v%d, v%d" % (PA, PA, PA+4*n))
        e("v_add_f32 v%d, v%d, v%d" % (PA+2, PA+2, PA+4*n+2))
    e("v_cvt_pk_bf16_f32 v%d, v%d, v%d" % (PA, PA, PA+2))
    e("v_lshlrev_b32 v%d, 2, v%d" % (T1, vC))
    e("ds_write_b32 v%d, v%d offset:%d" % (T1, PA, L_QB + 256))
    g.lab("L_commdone")
    stamp(4)
    e("s_waitcnt lgkmcnt(0)")
    e("v_mov_b32 v%d, %d" % (T0, L_FL))
    e("v_mov_b32 v%d, 1" % T1)
    e("s_mov_b64 exec, 1")
    e("ds_add_u32 v%d, v%d" % (T0, T1))
    e("s_mov_b64 exec, -1")
    g.lab("L_nocomm")
    vWO = 32
    vKG = 20
    vCH = 23
    for t in range(3):
        e("v_add_u32 v%d, %d, v%d" % (T0, 64*t, vLane))
        e("v_mul_u32_u24 v%d, 2731, v%d" % (vKG+t, T0))
        e("v_lshrrev_b32 v%d, 16, v%d" % (vKG+t, vKG+t))
        e("v_mul_u32_u24 v%d, 24, v%d" % (T1, vKG+t))
        e("v_sub_u32 v%d, v%d, v%d" % (vCH+t, T0, T1))
    vSA = 26
    e("s_mul_i32 s%d, s%d, %d" % (sA, sW, SSTR))
    e("s_add_u32 s%d, s%d, %d" % (sA, sA, L_S))
    for t in range(3):
        e("v_mul_u32_u24 v%d, 112, v%d" % (T0, vKG+t))
        e("v_lshl_add_u32 v%d, v%d, 2, v%d" % (T0, vCH+t, T0))
        e("v_add_u32 v%d, s%d, v%d" % (vSA+t, sA, T0))
    e("v_mov_b32 v%d, %d" % (T0, L_FL))
    e("s_mov_b32 s%d, 0" % sCnt)
    g.lab("L_qwait")
    e("ds_read_b32 v%d, v%d" % (T1, T0))
    e("s_waitcnt lgkmcnt(0)")
    e("v_readfirstlane_b32 s%d, v%d" % (sB, T1))
    e("s_cmp_eq_u32 s%d, 2" % sB)
    e("s_cbranch_scc1 L_qready")
    e("s_add_u32 s%d, s%d, 1" % (sCnt, sCnt))
    e("s_cmp_gt_u32 s%d, 4000000" % sCnt)
    e("s_cbranch_scc1 L_qready")
    e("s_sleep 1")
    e("s_branch L_qwait")
    g.lab("L_qready")
    stamp(3)
    vQ = 8
    for t in range(3):
        e("v_lshlrev_b32 v%d, 4, v%d" % (T0, vCH+t))
        e("ds_read_b128 v[%d:%d], v%d offset:%d" % (vQ+4*t, vQ+4*t+3, T0, L_QB))
    e("s_waitcnt lgkmcnt(0)")
    vS = 29
    for i in range(24):
        e("s_waitcnt vmcnt(%d)" % (23 - i + NV1))
        t = vS + (i % 3)
        k = KS(i); q = vQ + 4*(i % 3)
        e("v_dot2_f32_bf16 v%d, v%d, v%d, 0" % (t, k, q))
        e("v_dot2_f32_bf16 v%d, v%d, v%d, v%d" % (t, k+1, q+1, t))
        e("v_dot2_f32_bf16 v%d, v%d, v%d, v%d" % (t, k+2, q+2, t))
        e("v_dot2_f32_bf16 v%d, v%d, v%d, v%d" % (t, k+3, q+3, t))
        if i >= 1:
            ip = i-1
            e("ds_write_b32 v%d, v%d offset:%d" % (vSA + ip % 3, vS + (ip % 3), 896*(ip//3)))
    e("s_nop 2")
    e("ds_write_b32 v%d, v%d offset:%d" % (vSA + 2, vS + 2, 896*7))
    for i in range(NV1, 24):
        stream_load(i, VS(i), sV, sVoff)
    stamp(1)
    vR = 64
    e("v_mul_u32_u24 v%d, 112, v%d" % (T0, vLane))
    e("v_add_u32 v%d, s%d, v%d" % (T0, sA, T0))
    e("s_waitcnt lgkmcnt(0)")
    for k in range(6):
        e("ds_read_b128 v[%d:%d], v%d offset:%d" % (vR+4*k, vR+4*k+3, T0, 16*k))
    e("s_waitcnt lgkmcnt(0)")
    for k in range(12):
        e("v_add_f32 v%d, v%d, v%d" % (vR+k, vR+k, vR+k+12))
    for k in range(6):
        e("v_add_f32 v%d, v%d, v%d" % (vR+k, vR+k, vR+k+6))
    for k in range(3):
        e("v_add_f32 v%d, v%d, v%d" % (vR+k, vR+k, vR+k+3))
    e("v_add_f32 v%d, v%d, v%d" % (vR, vR, vR+1))
    e("v_add_f32 v%d, v%d, v%d" % (vR, vR, vR+2))
    sc, mx, pp, tt = 8, 9, 10, 11
    e("v_mov_b32 v%d, v%d" % (sc, vR))
    rne(sc)
    e("v_mul_f32 v%d, 0x3d93cd3a, v%d" % (sc, sc))
    rne(sc)
    e("v_mov_b32 v%d, v%d" % (mx, sc))
    wave_reduce("v_max_f32", mx, tt)
    e("v_sub_f32 v%d, v%d, v%d" % (pp, sc, mx))
    e("v_mul_f32 v%d, s%d, v%d" % (pp, sLog2e, pp))
    e("v_exp_f32 v%d, v%d" % (pp, pp))
    e("s_nop 0")
    e("v_mov_b32 v%d, v%d" % (sc, pp))
    rne(sc)
    e("v_and_b32 v%d, 7, v%d" % (tt, vLane))
    e("v_lshlrev_b32 v%d, 5, v%d" % (tt, tt))
    e("v_lshrrev_b32 v%d, 3, v%d" % (T0, vLane))
    e("v_lshl_add_u32 v%d, v%d, 2, v%d" % (tt, T0, tt))
    e("s_lshl_b32 s%d, s%d, 8" % (sB, sW))
    e("v_add_u32 v%d, s%d, v%d" % (tt, sB, tt))
    e("ds_write_b32 v%d, v%d offset:%d" % (tt, sc, L_PT))
    wave_reduce("v_add_f32", pp, tt)
    e("s_lshl_b32 s%d, s%d, 3" % (sC, sW))
    e("v_mov_b32 v%d, s%d" % (tt, sC))
    e("v_mov_b32 v%d, v%d" % (sc, mx))
    e("v_mov_b32 v%d, v%d" % (mx, pp))
    e("ds_write_b64 v%d, v[%d:%d] offset:%d" % (tt, sc, mx, L_ST))
    vP = 64
    e("s_waitcnt lgkmcnt(0)")
    for t in range(3):
        e("v_lshlrev_b32 v%d, 5, v%d" % (T0, vKG+t))
        e("v_add_u32 v%d, s%d, v%d" % (T0, sB, T0))
        e("ds_read_b128 v[%d:%d], v%d offset:%d" % (vP+8*t, vP+8*t+3, T0, L_PT))
        e("ds_read_b128 v[%d:%d], v%d offset:%d" % (vP+8*t+4, vP+8*t+7, T0, L_PT + 16))
    e("s_waitcnt lgkmcnt(0)")
    vAc = 96
    vPl = 120
    def pv(extra):
        for i in range(24):
            t = i % 3; ii = i // 3
            e("v_lshrrev_b32 v%d, 16, v%d" % (vPl + (i % 4), vP+8*t+ii))
            e("s_waitcnt vmcnt(%d)" % (23 - i + extra))
            vecmat_step(vAc + 8*t, VS(i), vPl + (i % 4), vP+8*t+ii, ii == 0, n=4)
    pv(0)
    e("v_lshlrev_b32 v%d, 5, v%d" % (T0, vLane))
    e("v_add_u32 v%d, s%d, v%d" % (T0, sA, T0))
    e("s_nop 0")
    for t in range(3):
        e("ds_write_b128 v%d, v[%d:%d] offset:%d" % (T0, vAc+8*t, vAc+8*t+3, 2048*t))
        e("ds_write_b128 v%d, v[%d:%d] offset:%d" % (T0, vAc+8*t+4, vAc+8*t+7, 2048*t + 16))
    vWO = 32
    e("s_cmp_lt_u32 s%d, 3" % sW)
    e("s_cbranch_scc1 L_nowo")
    e("s_sub_u32 s%d, s%d, 3" % (sCB, sW))
    e("v_lshrrev_b32 v%d, 4, v%d" % (T1, vLane))
    e("v_mul_u32_u24 v%d, 1280, v%d" % (T1, T1))
    e("v_and_b32 v%d, 15, v%d" % (T2, vLane))
    e("v_lshl_add_u32 v%d, v%d, 4, v%d" % (T1, T2, T1))
    e("s_mul_i32 s%d, s%d, 192" % (sB, sH))
    e("s_mul_i32 s%d, s%d, 24" % (sC, sS))
    e("s_add_u32 s%d, s%d, s%d" % (sB, sB, sC))
    e("s_mul_i32 s%d, s%d, 1280" % (sB, sB))
    e("s_lshl_b32 s%d, s%d, 8" % (sC, sCB))
    e("s_add_u32 s%d, s%d, s%d" % (sB, sB, sC))
    for i in range(6):
        e("buffer_load_dwordx4 v[%d:%d], v%d, %s, s%d offen%s" % (vWO+4*i, vWO+4*i+3, T1, srd(sWO), sB, NT))
        if i < 5: e("s_add_u32 s%d, s%d, 5120" % (sB, sB))
    e("s_mul_i32 s%d, s%d, 7680" % (sB, sJ))
    e("s_add_u32 s%d, s%d, s%d" % (sB, sB, sC))
    e("buffer_load_dwordx4 v[%d:%d], v%d, %s, s%d offen%s" % (vWO+24, vWO+27, T1, srd(sWD), sB, NT))
    e("s_add_u32 s%d, s%d, 5120" % (sB, sB))
    e("s_mov_b32 exec_hi, 0")
    e("buffer_load_dwordx4 v[%d:%d], v%d, %s, s%d offen%s" % (vWO+28, vWO+31, T1, srd(sWD), sB, NT))
    e("s_mov_b64 exec, -1")
    g.lab("L_nowo")
    e("s_waitcnt lgkmcnt(0)")
    stamp(5)
    e("s_barrier")
    stamp(6)
    e("s_cmp_ge_u32 s%d, 6" % sW)
    e("s_cbranch_scc1 L_nopub2")
    vO = 64
    vG_ = 8
    e("v_and_b32 v%d, 7, v%d" % (vG_, vLane))
    e("v_lshrrev_b32 v%d, 3, v%d" % (T1, vTid))
    e("v_mul_u32_u24 v%d, %d, v%d" % (T0, SSTR, vG_))
    e("v_lshl_add_u32 v%d, v%d, 4, v%d" % (T0, T1, T0))
    e("v_add_u32 v%d, %d, v%d" % (T0, L_S, T0))
    e("v_lshlrev_b32 v%d, 3, v%d" % (T2, vG_))
    e("ds_read_b64 v[10:11], v%d offset:%d" % (T2, L_ST))
    for j in range(8):
        e("ds_read_b128 v[%d:%d], v%d offset:%d" % (vO+4*j, vO+4*j+3, T0, 768*j))
    e("s_waitcnt lgkmcnt(8)")
    M = 12
    e("v_mov_b32 v%d, v10" % M)
    def red8(op, regs):
        for mode in ("quad_perm:[1,0,3,2]", "quad_perm:[2,3,0,1]", "row_half_mirror"):
            e("s_nop 1")
            for v in regs:
                e("%s_dpp v%d, v%d, v%d %s row_mask:0xf bank_mask:0xf" % (op, v, v, v, mode))
    red8("v_max_f32", [M])
    e("v_sub_f32 v10, v10, v%d" % M)
    e("v_mul_f32 v10, s%d, v10" % sLog2e)
    e("v_exp_f32 v10, v10")
    e("s_waitcnt lgkmcnt(0)")
    for st in (4, 2, 1):
        for j in range(st):
            for c in range(4):
                e("v_add_f32 v%d, v%d, v%d" % (vO+4*j+c, vO+4*j+c, vO+4*(j+st)+c))
    for c in range(4):
        e("v_mul_f32 v%d, v%d, v10" % (vO+c, vO+c))
    e("v_mul_f32 v11, v11, v10")
    red8("v_add_f32", [vO, vO+1, vO+2, vO+3, 11])
    a0 = 16
    e("v_cmp_eq_u32 vcc, 1, v%d" % vG_)
    e("s_nop 1")
    e("v_cndmask_b32 v%d, v%d, v%d, vcc" % (a0, vO, vO+2))
    e("v_cndmask_b32 v%d, v%d, v%d, vcc" % (a0+2, vO+1, vO+3))
    e("v_lshl_add_u32 v%d, v%d, 1, v%d" % (T0, T1, vG_))
    e("v_cmp_eq_u32 vcc, 2, v%d" % vTid)
    e("s_nop 1")
    e("v_cndmask_b32 v%d, v%d, v%d, vcc" % (a0, a0, M))
    e("v_cndmask_b32 v%d, v%d, v11, vcc" % (a0+2, a0+2))
    e("v_mov_b32 v%d, 96" % T1)
    e("v_cndmask_b32 v%d, v%d, v%d, vcc" % (T0, T0, T1))
    e("v_cmp_gt_u32 s[88:89], 2, v%d" % vG_)
    e("s_or_b64 vcc, vcc, s[88:89]")
    e("v_mov_b32 v%d, s%d" % (a0+1, sT))
    e("v_mov_b32 v%d, s%d" % (a0+3, sT))
    e("s_lshl_b32 s%d, s%d, 11" % (sA, sJ))
    e("s_add_u32 s%d, s%d, %d" % (sA, sA, WS_O))
    e("v_lshlrev_b32 v%d, 4, v%d" % (T0, T0))
    e("s_and_saveexec_b64 s[88:89], vcc")
    e("buffer_store_dwordx4 v[%d:%d], v%d, %s, s%d offen sc1" % (a0, a0+3, T0, srd(sWS), sA))
    e("s_mov_b64 exec, s[88:89]")
    g.lab("L_nopub2")
    NPOLL = opt.get("npoll", 1)
    e("s_cmp_lt_u32 s%d, 3" % sW)
    e("s_cbranch_scc1 L_poller")
    vWt = 88
    aA, aB = 96, 104
    e("v_lshrrev_b32 v%d, 4, v%d" % (T0, vLane))
    e("v_lshlrev_b32 v%d, 2, v%d" % (T0, T0))
    e("v_mov_b32 v%d, %d" % (T2, L_GB))
    for i in range(2):
        e("ds_read_b32 v%d, v%d offset:%d" % (vWt+6+i, T0, L_HB + 16*i))
    e("ds_read_b64 v[12:13], v%d" % T2)
    e("s_mul_i32 s%d, s%d, 5120" % (sA, sJ))
    e("s_lshl_b32 s%d, s%d, 10" % (sB, sCB))
    e("s_add_u32 s%d, s%d, s%d" % (sA, sA, sB))
    e("s_add_u32 s%d, s%d, %d" % (sA, sA, WS_R))
    e("v_and_b32 v14, 15, v%d" % vLane)
    e("v_lshlrev_b32 v14, 6, v14")
    e("v_lshl_add_u32 v14, v%d, 2, v14" % T0)
    e("s_waitcnt vmcnt(0) lgkmcnt(0)")
    for i in (6, 7):
        if i == 7: e("s_mov_b32 exec_hi, 0")
        first = i == 6
        e("v_lshrrev_b32 v%d, 16, v%d" % (T1, vWt+i))
        for k in range(4):
            c0 = "0" if first else "v%d" % (aB+2*k)
            c1 = "0" if first else "v%d" % (aB+2*k+1)
            e("v_dot2_f32_bf16 v%d, v%d, v%d, %s" % (aB+2*k, vWO+4*i+k, T1, c0))
            e("v_dot2_f32_bf16 v%d, v%d, v%d, %s" % (aB+2*k+1, vWO+4*i+k, vWt+i, c1))
    e("s_mov_b64 exec, -1")
    e("s_nop 2")
    for k in range(8):
        e("v_mul_f32 v%d, v%d, v13" % (aB+k, aB+k))
    e("v_mov_b32 v%d, s%d" % (113, sT))
    e("v_mov_b32 v%d, s%d" % (115, sT))
    e("v_mov_b32 v%d, %d" % (T2, L_F2))
    e("s_mov_b32 s%d, 0" % sCnt)
    g.lab("L_wwait")
    e("ds_read_b32 v%d, v%d" % (T1, T2))
    e("s_waitcnt lgkmcnt(0)")
    e("v_readfirstlane_b32 s%d, v%d" % (sB, T1))
    e("s_cmp_lg_u32 s%d, 0" % sB)
    e("s_cbranch_scc1 L_wready")
    e("s_add_u32 s%d, s%d, 1" % (sCnt, sCnt))
    e("s_cmp_gt_u32 s%d, 4000000" % sCnt)
    e("s_cbranch_scc1 L_wready")
    e("s_branch L_wwait")
    g.lab("L_wready")
    stamp(7)
    for i in range(6):
        e("ds_read_b32 v%d, v%d offset:%d" % (vWt+i, T0, L_WB + 16*i))
    for i in range(6):
        e("s_waitcnt lgkmcnt(%d)" % (5-i))
        first = i == 0
        e("v_lshrrev_b32 v%d, 16, v%d" % (T1, vWt+i))
        for k in range(4):
            c0 = "0" if first else "v%d" % (aA+2*k)
            c1 = "0" if first else "v%d" % (aA+2*k+1)
            e("v_dot2_f32_bf16 v%d, v%d, v%d, %s" % (aA+2*k, vWO+4*i+k, T1, c0))
            e("v_dot2_f32_bf16 v%d, v%d, v%d, %s" % (aA+2*k+1, vWO+4*i+k, vWt+i, c1))
    e("s_nop 2")
    for k in range(8):
        e("v_fma_f32 v%d, v%d, v12, v%d" % (aA+k, aA+k, aB+k))
    e("s_nop 1")
    for k in range(4):
        e("v_permlane32_swap_b32 v%d, v%d" % (aA+k, aA+k+4))
    e("s_nop 1")
    for k in range(4):
        e("v_add_f32 v%d, v%d, v%d" % (aA+k, aA+k, aA+k+4))
    e("s_nop 1")
    for k in range(2):
        e("v_permlane16_swap_b32 v%d, v%d" % (aA+k, aA+k+2))
    e("s_nop 1")
    e("v_add_f32 v112, v%d, v%d" % (aA, aA+2))
    e("v_add_f32 v114, v%d, v%d" % (aA+1, aA+3))
    e("buffer_store_dwordx4 v[112:115], v14, %s, s%d offen sc1" % (srd(sWS), sA))
    stamp(8)
    e("s_branch L_fin")
    g.lab("L_poller")
    e("s_cmp_ge_u32 s%d, %d" % (sW, NPOLL))
    e("s_cbranch_scc1 L_fin")
    if NPOLL > 1:
        st = g.new("stg")
        e("s_cmp_eq_u32 s%d, 0" % sW)
        e("s_cbranch_scc1 %s" % st)
        e("s_sleep %d" % opt.get("stagn", 6))
        e("s_cmp_eq_u32 s%d, 1" % sW)
        e("s_cbranch_scc1 %s" % st)
        e("s_sleep %d" % opt.get("stagn", 6))
        g.lab(st)
    G1, G2, G3 = 64, 68, 72
    a1, a2, a3 = 8, 9, 10
    e("v_lshrrev_b32 v%d, 3, v%d" % (a3, vLane))
    e("v_lshlrev_b32 v%d, 16, v%d" % (a3, a3))
    e("v_and_b32 v%d, 7, v%d" % (T1, vLane))
    e("v_lshl_add_u32 v%d, v%d, 4, v%d" % (a1, T1, a3))
    e("v_and_b32 v%d, 3, v%d" % (T1, vLane))
    e("v_lshl_add_u32 v%d, v%d, 4, v%d" % (a2, T1, a3))
    e("s_lshl_b32 s%d, s%d, 11" % (sA, sH))
    e("s_add_u32 s%d, s%d, %d" % (sA, sA, WS_O))
    e("s_mul_i32 s%d, s%d, 192" % (sB, sS))
    e("s_add_u32 s%d, s%d, s%d" % (sB, sB, sA))
    e("s_mov_b32 s%d, 0" % sCnt)
    g.lab("L_poll1")
    e("buffer_load_dwordx4 v[%d:%d], v%d, %s, s%d offen sc1" % (G1, G1+3, a1, srd(sWS), sB))
    e("buffer_load_dwordx4 v[%d:%d], v%d, %s, s%d offen offset:128 sc1" % (G2, G2+3, a2, srd(sWS), sB))
    e("buffer_load_dwordx4 v[%d:%d], v%d, %s, s%d offen offset:1536 sc1" % (G3, G3+3, a3, srd(sWS), sA))
    e("s_waitcnt vmcnt(0)")
    tagcheck([G1, G2, G3], T1, T2)
    pollend("L_poll1", T1)
    def red345(op, regs, tmps):
        e("s_nop 1")
        for v in regs:
            e("%s_dpp v%d, v%d, v%d row_ror:8 row_mask:0xf bank_mask:0xf" % (op, v, v, v))
        for swap in ("v_permlane16_swap_b32", "v_permlane32_swap_b32"):
            for v, t in zip(regs, tmps):
                e("v_mov_b32 v%d, v%d" % (t, v))
            e("s_nop 1")
            for v, t in zip(regs, tmps):
                e("%s v%d, v%d" % (swap, v, t))
            e("s_nop 1")
            for v, t in zip(regs, tmps):
                e("%s v%d, v%d, v%d" % (op, v, v, t))
    Mx = 12
    e("v_mov_b32 v%d, v%d" % (Mx, G3))
    red345("v_max_f32", [Mx], [80])
    e("v_sub_f32 v%d, v%d, v%d" % (Mx, G3, Mx))
    e("v_mul_f32 v%d, s%d, v%d" % (Mx, sLog2e, Mx))
    e("v_exp_f32 v%d, v%d" % (Mx, Mx))
    e("s_nop 0")
    rr = [G1, G1+2, G2, G2+2, G3+2]
    for v in rr:
        e("v_mul_f32 v%d, v%d, v%d" % (v, v, Mx))
    red345("v_add_f32", rr, [80, 81, 82, 83, 84])
    e("v_rcp_f32 v%d, v%d" % (Mx, G3+2))
    e("s_nop 0")
    for v in rr[:4]:
        e("v_mul_f32 v%d, v%d, v%d" % (v, v, Mx))
        rne(v)
    e("v_and_b32 v%d, 7, v%d" % (T0, vLane))
    e("v_lshlrev_b32 v%d, 3, v%d" % (T0, T0))
    e("v_and_b32 v%d, 3, v%d" % (T1, vLane))
    e("v_lshlrev_b32 v%d, 3, v%d" % (T1, T1))
    e("v_mov_b32 v%d, v%d" % (G1+1, G1+2))
    e("v_mov_b32 v%d, v%d" % (G2+1, G2+2))
    e("s_mov_b64 exec, 0xff")
    e("ds_write_b64 v%d, v[%d:%d] offset:%d" % (T0, G1, G1+1, L_WB))
    e("ds_write_b64 v%d, v[%d:%d] offset:%d" % (T1, G2, G2+1, L_WB + 64))
    e("s_waitcnt lgkmcnt(0)")
    e("v_mov_b32 v%d, %d" % (T0, L_F2))
    e("v_mov_b32 v%d, 1" % T1)
    e("ds_write_b32 v%d, v%d" % (T0, T1))
    e("s_mov_b64 exec, -1")
    stamp(7)
    e("s_cmp_ge_u32 s%d, 160" % sJ)
    e("s_cbranch_scc1 L_fin")
    FR = 128
    e("v_lshrrev_b32 v%d, 1, v%d" % (T0, vLane))
    e("v_mul_u32_u24 v%d, 40960, v%d" % (T0, T0))
    e("v_and_b32 v%d, 1, v%d" % (T1, vLane))
    e("v_lshl_add_u32 v%d, v%d, 4, v%d" % (T0, T1, T0))
    e("s_lshl_b32 s%d, s%d, 5" % (sA, sJ))
    e("s_add_u32 s40, s%d, %d" % (sA, WS_R))
    for n in range(1, 8):
        e("s_add_u32 s%d, s%d, 5120" % (40+n, 40+n-1))
    e("s_mov_b32 s%d, 0" % sC)
    e("s_sleep %d" % opt.get("pre2", 8))
    e("s_mov_b32 s%d, 0" % sCnt)
    g.lab("L_poll2")
    for n in range(8):
        sk = g.new("sk")
        e("s_bitcmp1_b32 s%d, %d" % (sC, n))
        e("s_cbranch_scc1 %s" % sk)
        e("buffer_load_dwordx4 v[%d:%d], v%d, %s, s%d offen sc1" % (FR+4*n, FR+4*n+3, T0, srd(sWS), 40+n))
        g.lab(sk)
    e("s_waitcnt vmcnt(0)")
    for n in range(8):
        e("v_xor_b32 v%d, s%d, v%d" % (T1, sT, FR+4*n+1))
        e("v_xor_b32 v%d, s%d, v%d" % (T2, sT, FR+4*n+3))
        e("v_or_b32 v%d, v%d, v%d" % (T1, T1, T2))
        e("v_cmp_ne_u32 vcc, 0, v%d" % T1)
        e("s_nop 1")
        e("s_cmp_eq_u64 vcc, 0")
        e("s_cselect_b32 s%d, %d, 0" % (sB, 1 << n))
        e("s_or_b32 s%d, s%d, s%d" % (sC, sC, sB))
    e("s_cmp_eq_u32 s%d, 0xff" % sC)
    e("s_cbranch_scc1 L_p2done")
    e("s_add_u32 s%d, s%d, 1" % (sCnt, sCnt))
    e("s_cmp_lt_u32 s%d, 200000" % sCnt)
    e("s_cbranch_scc0 L_p2done")
    if SLEEP: e("s_sleep %d" % SLEEP)
    e("s_branch L_poll2")
    g.lab("L_p2done")
    for n in range(1, 8):
        e("v_add_f32 v%d, v%d, v%d" % (FR, FR, FR+4*n))
        e("v_add_f32 v%d, v%d, v%d" % (FR+2, FR+2, FR+4*n+2))
    for mode in ("quad_perm:[2,3,0,1]", "row_ror:4", "row_ror:8"):
        e("s_nop 1")
        for v in (FR, FR+2):
            e("v_add_f32_dpp v%d, v%d, v%d %s row_mask:0xf bank_mask:0xf" % (v, v, v, mode))
    for swap in ("v_permlane16_swap_b32", "v_permlane32_swap_b32"):
        e("v_mov_b32 v%d, v%d" % (FR+1, FR))
        e("v_mov_b32 v%d, v%d" % (FR+3, FR+2))
        e("s_nop 1")
        e("%s v%d, v%d" % (swap, FR, FR+1))
        e("%s v%d, v%d" % (swap, FR+2, FR+3))
        e("s_nop 1")
        e("v_add_f32 v%d, v%d, v%d" % (FR, FR, FR+1))
        e("v_add_f32 v%d, v%d, v%d" % (FR+2, FR+2, FR+3))
    e("v_cvt_pk_bf16_f32 v%d, v%d, v%d" % (FR, FR, FR+2))
    e("v_lshlrev_b32 v%d, 2, v%d" % (T0, vLane))
    e("s_lshl_b32 s%d, s%d, 3" % (sA, sJ))
    e("s_mov_b64 exec, 3")
    e("buffer_store_dword v%d, v%d, %s, s%d offen" % (FR, T0, srd(sOUT), sA))
    e("s_cmp_lg_u32 s%d, 0" % sJ)
    e("s_cbranch_scc1 L_fin")
    e("s_mov_b64 exec, 1")
    e("v_mov_b32 v%d, s%d" % (T0, sT))
    e("v_mov_b32 v%d, 0" % (T1))
    e("buffer_store_dword v%d, v%d, %s, 0 offen" % (T0, T1, srd(sWS)))
    g.lab("L_fin")
    stamp(9)
    stamp_flush()
    g.lab("L_end")
    e("s_endpgm")
    out += g.L
    out += ['.section .rodata,"a"', ".p2align 6", ".amdhsa_kernel %s_kernel" % KN,
        "  .amdhsa_next_free_vgpr 256", "  .amdhsa_next_free_sgpr 102", "  .amdhsa_accum_offset 256",
        "  .amdhsa_group_segment_fixed_size 0", "  .amdhsa_kernarg_size 104", "  .amdhsa_user_sgpr_count 2",
        "  .amdhsa_user_sgpr_kernarg_segment_ptr 1", "  .amdhsa_system_sgpr_workgroup_id_x 1", ".end_amdhsa_kernel", ""]
    return "\n".join(out)

if __name__ == "__main__":
    opt = {}
    outp = sys.argv[1]
    for a in sys.argv[2:]:
        k, v = a.split("=")
        opt[k] = int(v)
    open(outp, "w").write(gen(opt))
```

```python
import sys

KN = "gated_mix__sliding_block_cached__glu_gated_reglu__decode"

class G:
    def __init__(self):
        self.L = []
        self.uid = 0
    def e(self, s):
        self.L.append("    " + s)
    def lab(self, s):
        self.L.append(s + ":")
    def new(self, p):
        self.uid += 1
        return "L_%s_%d" % (p, self.uid)

def gen(opt):
    g = G()
    e = g.e
    NT = " nt" if opt.get("nt", 1) else ""
    PROF = opt.get("prof", 0)
    NK0 = opt.get("nk0", 6)
    SLEEP = opt.get("sleep", 0)
    sK, sV, sWQ, sWO, sF, sWD, sX, sGW, sOUT, sWS = [32 + 4*i for i in range(10)]
    def srd(b): return "s[%d:%d]" % (b, b+3)
    sH, sS, sW, sT, sJ = 72, 73, 74, 75, 76
    sA, sB, sC, sD = 77, 78, 79, 80
    sCnt = 81
    sLog2e = 82
    sKoff, sVoff = 83, 84
    sCB = 85
    WS_Q = 4096
    WS_O = WS_Q + 256*3072
    WS_R = WS_O + 256*2048
    WS_P = WS_R + 256*5120
    WS_END = WS_P + 256*8*64
    L_QP = 0
    L_PT = 24576
    L_QB = L_PT + 2048
    L_HB = L_QB + 512
    L_GB = L_HB + 64
    L_ST = L_GB + 64
    L_WB = L_ST + 64
    L_FL = L_WB + 5*128
    L_CN = L_FL + 4
    L_F2 = L_FL + 8
    L_C2 = L_FL + 12
    L_S = 32768
    SSTR = 7200
    L_END = L_S + 8*SSTR
    LDS = (L_END + 255)//256*256
    vTid, vLane, vOff16, vHalf, vC = 0, 1, 2, 3, 4
    T0, T1, T2 = 5, 6, 7
    vAcc = 8
    vAccF = 14
    vP0 = 20
    vTmp = 32
    def KS(i): return 64 + 4*i
    def VS(i): return 160 + 4*i
    vWQd = 160
    vFd = 180
    vXq = 192
    vXf = 197
    vGx = 200
    vGw = 205

    def stamp(k):
        if not PROF: return
        if PROF == 2 and k not in (0, 9): return
        e("s_memrealtime s[100:101]")
        e("s_waitcnt lgkmcnt(0)")
        e("s_mov_b32 s%d, s100" % (90+k))
    def stamp_flush():
        if not PROF: return
        e("s_mov_b64 exec, 1")
        for k in range(10):
            e("v_mov_b32 v%d, s%d" % (64+k, 90+k))
        e("s_lshl_b32 s%d, s%d, 3" % (sA, sJ))
        e("s_add_u32 s%d, s%d, s%d" % (sA, sA, sW))
        e("s_lshl_b32 s%d, s%d, 6" % (sA, sA))
        e("s_add_u32 s%d, s%d, %d" % (sA, sA, WS_P))
        e("v_mov_b32 v%d, 0" % T0)
        e("buffer_store_dwordx4 v[64:67], v%d, %s, s%d offen" % (T0, srd(sWS), sA))
        e("buffer_store_dwordx4 v[68:71], v%d, %s, s%d offen offset:16" % (T0, srd(sWS), sA))
        e("buffer_store_dwordx2 v[72:73], v%d, %s, s%d offen offset:32" % (T0, srd(sWS), sA))

    def tagcheck(groups, vbad, vt):
        first = True
        for b in groups:
            for o in (1, 3):
                if first:
                    e("v_xor_b32 v%d, s%d, v%d" % (vbad, sT, b+o)); first = False
                else:
                    e("v_xor_b32 v%d, s%d, v%d" % (vt, sT, b+o))
                    e("v_or_b32 v%d, v%d, v%d" % (vbad, vbad, vt))
    def pollend(label, vbad):
        done = g.new("pd")
        e("v_cmp_ne_u32 vcc, 0, v%d" % vbad)
        e("s_nop 1")
        e("s_cmp_eq_u64 vcc, 0")
        e("s_cbranch_scc1 %s" % done)
        e("s_add_u32 s%d, s%d, 1" % (sCnt, sCnt))
        e("s_cmp_lt_u32 s%d, 200000" % sCnt)
        e("s_cbranch_scc0 %s" % done)
        if SLEEP: e("s_sleep %d" % SLEEP)
        e("s_branch %s" % label)
        g.lab(done)
    hdr = open("cdna_kernels/%s.s.ref" % KN).read().split("\n")
    top = []
    for ln in hdr:
        if ln.startswith("; @launch"): break
        top.append(ln)
    out = top + ["; @launch grid=(256,1,1) block=(512,1,1) lds=%d" % LDS,
        '.amdgcn_target "amdgcn-amd-amdhsa--gfx950"', ".text", ".globl %s_kernel" % KN, ".p2align 8",
        ".type %s_kernel,@function" % KN, "%s_kernel:" % KN]

    e("s_cmp_ge_u32 s2, 256")
    e("s_cbranch_scc1 L_end")
    if PROF:
        for k in range(10): e("s_mov_b32 s%d, 0" % (90+k))
    stamp(0)
    e("s_load_dwordx16 s[4:19], s[0:1], 0")
    e("s_load_dwordx8 s[20:27], s[0:1], 64")
    e("s_load_dwordx2 s[28:29], s[0:1], 96")
    e("s_mov_b32 s%d, s2" % sJ)
    e("s_and_b32 s%d, s2, 31" % sH)
    e("s_lshr_b32 s%d, s2, 5" % sS)
    e("v_and_b32 v%d, 63, v0" % vLane)
    e("v_lshrrev_b32 v%d, 6, v0" % T0)
    e("v_lshlrev_b32 v%d, 4, v%d" % (vOff16, vLane))
    e("v_readfirstlane_b32 s%d, v%d" % (sW, T0))
    e("v_lshrrev_b32 v%d, 5, v%d" % (vHalf, vLane))
    e("v_and_b32 v%d, 31, v%d" % (vC, vLane))
    e("s_mov_b32 s%d, 0x3fb8aa3b" % sLog2e)
    e("s_waitcnt lgkmcnt(0)")
    e("s_load_dword s%d, s[28:29], 0" % sT)
    def mksrd(b, p, n):
        e("s_mov_b32 s%d, s%d" % (b, p)); e("s_mov_b32 s%d, s%d" % (b+1, p+1))
        e("s_mov_b32 s%d, %d" % (b+2, n)); e("s_mov_b32 s%d, 0x00020000" % (b+3))
    mksrd(sX, 4, 1280)
    mksrd(sWQ, 10, 640*6144*2)
    e("s_lshr_b32 s%d, s%d, 4" % (sA, sJ))
    e("s_cmp_lt_u32 s%d, 8" % sA)
    e("s_cselect_b32 s%d, s16, s18" % sF)
    e("s_cselect_b32 s%d, s17, s19" % (sF+1))
    e("s_mov_b32 s%d, %d" % (sF+2, 640*1536*2)); e("s_mov_b32 s%d, 0x00020000" % (sF+3))
    mksrd(sK, 6, 402653184)
    e("s_mul_i32 s%d, s%d, 80" % (sA, sS))
    e("s_mul_i32 s%d, s%d, 10" % (sB, sW))
    e("s_add_u32 s%d, s%d, s%d" % (sA, sA, sB))
    e("s_lshl_b32 s%d, s%d, 1" % (sB, sA))
    e("v_lshlrev_b32 v%d, 1, v%d" % (T0, vHalf))
    e("s_mul_i32 s%d, s%d, 12288" % (sA, sA))
    e("s_mul_i32 s%d, s%d, 384" % (sC, sH))
    e("s_add_u32 s%d, s%d, s%d" % (sA, sA, sC))
    e("v_mul_u32_u24 v%d, 12288, v%d" % (T1, vHalf))
    e("v_mul_u32_u24 v%d, 12, v%d" % (T2, vC))
    e("v_add_u32 v%d, v%d, v%d" % (T1, T1, T2))
    for i in range(5):
        e("buffer_load_dwordx3 v[%d:%d], v%d, %s, s%d offen%s" % (vWQd+4*i, vWQd+4*i+2, T1, srd(sWQ), sA, NT))
        if i < 4: e("s_add_u32 s%d, s%d, 24576" % (sA, sA))
    for i in range(5):
        e("buffer_load_ushort v%d, v%d, %s, s%d offen offset:%d" % (vXq+i, T0, srd(sX), sB, 4*i))
    e("s_and_b32 s%d, s%d, 15" % (sC, sJ))
    e("s_mul_i32 s%d, s%d, 40" % (sC, sC))
    e("s_mul_i32 s%d, s%d, 5" % (sD, sW))
    e("s_add_u32 s%d, s%d, s%d" % (sC, sC, sD))
    e("s_lshl_b32 s%d, s%d, 1" % (sD, sC))
    e("s_mul_i32 s%d, s%d, 3072" % (sC, sC))
    e("s_lshr_b32 s%d, s%d, 4" % (sB, sJ))
    e("s_and_b32 s%d, s%d, 7" % (sB, sB))
    e("s_mul_i32 s%d, s%d, 384" % (sB, sB))
    e("s_add_u32 s%d, s%d, s%d" % (sC, sC, sB))
    e("v_mul_u32_u24 v%d, 3072, v%d" % (T1, vHalf))
    e("v_add_u32 v%d, v%d, v%d" % (T1, T1, T2))
    for i in range(3):
        if i == 2: e("s_mov_b32 exec_hi, 0")
        e("buffer_load_dwordx3 v[%d:%d], v%d, %s, s%d offen%s" % (vFd+4*i, vFd+4*i+2, T1, srd(sF), sC, NT))
        if i < 2: e("s_add_u32 s%d, s%d, 6144" % (sC, sC))
    e("s_mov_b64 exec, -1")
    for i in range(3):
        e("buffer_load_ushort v%d, v%d, %s, s%d offen offset:%d" % (vXf+i, T0, srd(sX), sD, 4*i))
    mksrd(sGW, 22, 1280)
    e("s_cmp_lg_u32 s%d, 5" % sW)
    e("s_cbranch_scc1 L_nog1")
    e("v_lshlrev_b32 v%d, 2, v%d" % (T0, vLane))
    for k in range(5):
        e("buffer_load_dword v%d, v%d, %s, 0 offen offset:%d" % (vGx+k, T0, srd(sX), 256*k))
        e("buffer_load_dword v%d, v%d, %s, 0 offen offset:%d" % (vGw+k, T0, srd(sGW), 256*k))
    g.lab("L_nog1")
    e("s_mul_i32 s%d, s%d, 12582912" % (sA, sH))
    e("s_lshl_b32 s%d, s%d, 9" % (sB, sS))
    e("s_lshl_b32 s%d, s%d, 6" % (sC, sW))
    e("s_add_u32 s%d, s%d, s%d" % (sB, sB, sC))
    e("s_add_u32 s%d, s%d, 28672" % (sB, sB))
    e("s_mul_i32 s%d, s%d, 384" % (sB, sB))
    e("s_add_u32 s%d, s%d, s%d" % (sKoff, sA, sB))
    e("s_mov_b32 s%d, s%d" % (sVoff, sKoff))
    def stream_load(i, reg, s_srd, soff):
        if i and i % 4 == 0:
            e("s_add_u32 s%d, s%d, 4096" % (soff, soff))
        e("buffer_load_dwordx4 v[%d:%d], v%d, %s, s%d offen offset:%d%s" % (reg, reg+3, vOff16, srd(s_srd), soff, (i%4)*1024, NT))
    for i in range(NK0):
        stream_load(i, KS(i), sK, sKoff)
    mksrd(sV, 8, 402653184)
    mksrd(sWO, 12, 6144*640*2)
    mksrd(sWD, 20, 1536*640*2)
    mksrd(sOUT, 24, 1280)
    mksrd(sWS, 28, WS_END)
    e("v_mov_b32 v%d, %d" % (T0, L_FL))
    e("v_mov_b32 v%d, 0" % T1)
    e("v_mov_b32 v%d, 0" % T2)
    e("ds_write_b64 v%d, v[%d:%d]" % (T0, T1, T2))
    e("ds_write_b64 v%d, v[%d:%d] offset:8" % (T0, T1, T2))
    e("s_waitcnt lgkmcnt(0)")
    e("s_barrier")

    if not opt.get("nodep", 0): e("s_waitcnt vmcnt(%d)" % NK0)
    stamp(2)
    def vecmat_step(acc, d, xl, xh, first, n=3):
        for k in range(n):
            c0 = "0" if first else "v%d" % (acc+2*k)
            c1 = "0" if first else "v%d" % (acc+2*k+1)
            e("v_dot2_f32_bf16 v%d, v%d, v%d, %s" % (acc+2*k, d+k, xl, c0))
            e("v_dot2_f32_bf16 v%d, v%d, v%d, %s" % (acc+2*k+1, d+k, xh, c1))
    for i in range(5):
        e("v_lshlrev_b32 v%d, 16, v%d" % (vP0+i, vXq+i))
    for i in range(3):
        e("v_lshlrev_b32 v%d, 16, v%d" % (vP0+5+i, vXf+i))
    for i in range(5):
        vecmat_step(vAcc, vWQd+4*i, vXq+i, vP0+i, i == 0)
    for i in range(3):
        if i == 2: e("s_mov_b32 exec_hi, 0")
        vecmat_step(vAccF, vFd+4*i, vXf+i, vP0+5+i, i == 0)
    e("s_mov_b64 exec, -1")
    e("s_lshl_b32 s%d, s%d, 1" % (sA, sW))
    e("v_add_u32 v%d, s%d, v%d" % (T0, sA, vHalf))
    e("v_mul_u32_u24 v%d, 1536, v%d" % (T0, T0))
    e("v_mul_u32_u24 v%d, 24, v%d" % (T1, vC))
    e("v_add_u32 v%d, v%d, v%d" % (T0, T0, T1))
    e("s_nop 1")
    for k in range(3):
        e("ds_write_b64 v%d, v[%d:%d] offset:%d" % (T0, vAcc+2*k, vAcc+2*k+1, L_QP + 8*k))
    for k in range(3):
        e("ds_write_b64 v%d, v[%d:%d] offset:%d" % (T0, vAccF+2*k, vAccF+2*k+1, L_QP + 768 + 8*k))
    e("s_cmp_lg_u32 s%d, 5" % sW)
    e("s_cbranch_scc1 L_nog2")
    t0, t1, t2, t3 = vTmp, vTmp+1, vTmp+2, vTmp+3
    e("v_mov_b32 v%d, 0" % t3)
    for k in range(5):
        e("v_lshlrev_b32 v%d, 16, v%d" % (t0, vGx+k))
        e("v_lshlrev_b32 v%d, 16, v%d" % (t1, vGw+k))
        e("v_mul_f32 v%d, v%d, v%d" % (t0, t0, t1))
        e("v_and_b32 v%d, 0xffff0000, v%d" % (t1, vGx+k))
        e("v_and_b32 v%d, 0xffff0000, v%d" % (t2, vGw+k))
        e("v_mul_f32 v%d, v%d, v%d" % (t1, t1, t2))
        e("v_cvt_pk_bf16_f32 v%d, v%d, v%d" % (t0, t0, t1))
        e("v_and_b32 v%d, 0xffff0000, v%d" % (t1, t0))
        e("v_lshlrev_b32 v%d, 16, v%d" % (t0, t0))
        e("v_add_f32 v%d, v%d, v%d" % (t3, t3, t0))
        e("v_add_f32 v%d, v%d, v%d" % (t3, t3, t1))
    def wave_reduce(op, v, t):
        e("s_nop 1")
        e("%s_dpp v%d, v%d, v%d quad_perm:[1,0,3,2] row_mask:0xf bank_mask:0xf" % (op, v, v, v))
        e("s_nop 1")
        e("%s_dpp v%d, v%d, v%d quad_perm:[2,3,0,1] row_mask:0xf bank_mask:0xf" % (op, v, v, v))
        e("s_nop 1")
        e("%s_dpp v%d, v%d, v%d row_half_mirror row_mask:0xf bank_mask:0xf" % (op, v, v, v))
        e("s_nop 1")
        e("%s_dpp v%d, v%d, v%d row_mirror row_mask:0xf bank_mask:0xf" % (op, v, v, v))
        e("v_mov_b32 v%d, v%d" % (t, v))
        e("s_nop 1")
        e("v_permlane16_swap_b32 v%d, v%d" % (v, t))
        e("s_nop 1")
        e("%s v%d, v%d, v%d" % (op, v, v, t))
        e("v_mov_b32 v%d, v%d" % (t, v))
        e("s_nop 1")
        e("v_permlane32_swap_b32 v%d, v%d" % (v, t))
        e("s_nop 1")
        e("%s v%d, v%d, v%d" % (op, v, v, t))
    wave_reduce("v_add_f32", t3, t0)
    def rne(v):
        e("v_cvt_pk_bf16_f32 v%d, v%d, v%d" % (v, v, v))
        e("v_and_b32 v%d, 0xffff0000, v%d" % (v, v))
    rne(t3)
    e("v_mul_f32 v%d, s%d, v%d" % (t3, sLog2e, t3))
    e("v_sub_f32 v%d, 0, v%d" % (t3, t3))
    e("v_exp_f32 v%d, v%d" % (t3, t3))
    e("s_nop 0")
    e("v_add_f32 v%d, 1.0, v%d" % (t3, t3))
    e("v_rcp_f32 v%d, v%d" % (t3, t3))
    e("s_nop 0")
    rne(t3)
    e("v_sub_f32 v%d, 1.0, v%d" % (t2, t3))
    rne(t2)
    e("v_mov_b32 v%d, v%d" % (t0, t3))
    e("v_mov_b32 v%d, v%d" % (t1, t2))
    e("v_mov_b32 v%d, %d" % (t3, L_GB))
    e("ds_write_b64 v%d, v[%d:%d]" % (t3, t0, t1))
    g.lab("L_nog2")
    e("s_waitcnt lgkmcnt(0)")
    e("v_mov_b32 v%d, %d" % (T0, L_CN))
    e("v_mov_b32 v%d, 1" % T1)
    e("s_mov_b64 exec, 1")
    e("ds_add_u32 v%d, v%d" % (T0, T1))
    e("s_mov_b64 exec, -1")
    e("s_add_u32 s%d, s%d, 1" % (sT, sT))
    e("s_sub_u32 s%d, s%d, 2" % (sB, sW))
    e("s_cmp_ge_u32 s%d, 3" % sB)
    e("s_cbranch_scc1 L_krest")
    e("s_setprio 3")
    e("s_mov_b32 s%d, 0" % sCnt)
    g.lab("L_await")
    e("ds_read_b32 v%d, v%d" % (T1, T0))
    e("s_waitcnt lgkmcnt(0)")
    e("v_readfirstlane_b32 s%d, v%d" % (sB, T1))
    e("s_cmp_eq_u32 s%d, 8" % sB)
    e("s_cbranch_scc1 L_aready")
    e("s_add_u32 s%d, s%d, 1" % (sCnt, sCnt))
    e("s_cmp_gt_u32 s%d, 4000000" % sCnt)
    e("s_cbranch_scc1 L_aready")
    e("s_branch L_await")
    g.lab("L_aready")
    e("v_subrev_u32 v%d, 128, v%d" % (T2, vTid))
    e("v_lshlrev_b32 v%d, 3, v%d" % (T0, T2))
    for k in range(16):
        e("ds_read_b64 v[%d:%d], v%d offset:%d" % (vTmp+2*k, vTmp+2*k+1, T0, L_QP + 1536*k))
    for k in range(1, 16):
        e("s_waitcnt lgkmcnt(%d)" % (15-k))
        e("v_add_f32 v%d, v%d, v%d" % (vTmp, vTmp, vTmp+2*k))
        e("v_add_f32 v%d, v%d, v%d" % (vTmp+1, vTmp+1, vTmp+2*k+1))
    e("v_mov_b32 v%d, v%d" % (vTmp+2, vTmp+1))
    e("v_mov_b32 v%d, s%d" % (vTmp+1, sT))
    e("v_mov_b32 v%d, s%d" % (vTmp+3, sT))
    e("s_mul_i32 s%d, s%d, 3072" % (sA, sJ))
    e("s_add_u32 s%d, s%d, %d" % (sA, sA, WS_Q))
    e("v_lshlrev_b32 v%d, 4, v%d" % (T0, T2))
    e("buffer_store_dwordx4 v[%d:%d], v%d, %s, s%d offen sc1" % (vTmp, vTmp+3, T0, srd(sWS), sA))
    e("s_setprio 0")
    stamp(4)
    g.lab("L_krest")
    if opt.get("prio", 1):
        e("s_cmp_ge_u32 s%d, 2" % sW)
        e("s_cbranch_scc1 L_noprio")
        e("s_setprio 2")
        g.lab("L_noprio")
    for i in range(NK0, 24):
        stream_load(i, KS(i), sK, sKoff)
    NV1 = opt.get("nv1", 16)
    for i in range(NV1):
        stream_load(i, VS(i), sV, sVoff)
    e("s_cmp_ge_u32 s%d, 2" % sW)
    e("s_cbranch_scc1 L_nocomm")
    PA = vTmp
    PF = 12
    vB_, vF_ = 9, 10
    e("s_mul_i32 s%d, s%d, 3072" % (sA, sH))
    e("s_add_u32 s%d, s%d, %d" % (sA, sA, WS_Q))
    e("s_mov_b32 s%d, 0" % sCnt)
    e("s_cmp_eq_u32 s%d, 1" % sW)
    e("s_cbranch_scc1 L_commB")
    e("v_bfe_u32 v%d, v%d, 4, 1" % (vF_, vLane))
    e("v_mul_u32_u24 v%d, %d, v%d" % (vF_, 8*16*3072, vF_))
    e("v_and_b32 v%d, 15, v%d" % (T0, vLane))
    e("v_mul_u32_u24 v%d, 3072, v%d" % (T0, T0))
    e("v_add_u32 v%d, v%d, v%d" % (vF_, vF_, T0))
    e("v_mul_u32_u24 v%d, 48, v%d" % (T0, vHalf))
    e("v_add_u32 v%d, v%d, v%d" % (vF_, vF_, T0))
    e("s_lshl_b32 s%d, s%d, 2" % (sB, sH))
    e("s_lshr_b32 s%d, s%d, 1" % (sC, sS))
    e("s_add_u32 s%d, s%d, s%d" % (sB, sB, sC))
    e("s_lshr_b32 s%d, s%d, 4" % (sC, sB))
    e("s_mul_i32 s%d, s%d, %d" % (sC, sC, 16*3072))
    e("s_and_b32 s%d, s%d, 15" % (sB, sB))
    e("s_mul_i32 s%d, s%d, 96" % (sB, sB))
    e("s_add_u32 s%d, s%d, s%d" % (sB, sB, sC))
    e("s_add_u32 s%d, s%d, %d" % (sB, sB, WS_Q + 1536))
    g.lab("L_poll0")
    e("s_mov_b32 s%d, s%d" % (sC, sA))
    for n in range(8):
        e("buffer_load_dwordx4 v[%d:%d], v%d, %s, s%d offen sc1" % (PA+4*n, PA+4*n+3, vOff16, srd(sWS), sC))
        if n < 7: e("s_add_u32 s%d, s%d, %d" % (sC, sC, 32*3072))
    for n in range(3):
        e("buffer_load_dwordx4 v[%d:%d], v%d, %s, s%d offen offset:%d sc1" % (PF+4*n, PF+4*n+3, vF_, srd(sWS), sB, 16*n))
    e("s_waitcnt vmcnt(0)")
    tagcheck([PA+4*n for n in range(8)] + [PF+4*n for n in range(3)], T0, T1)
    pollend("L_poll0", T0)
    for n in range(1, 8):
        e("v_add_f32 v%d, v%d, v%d" % (PA, PA, PA+4*n))
        e("v_add_f32 v%d, v%d, v%d" % (PA+2, PA+2, PA+4*n+2))
    e("v_cvt_pk_bf16_f32 v%d, v%d, v%d" % (PA, PA, PA+2))
    e("v_lshlrev_b32 v%d, 2, v%d" % (T0, vLane))
    e("ds_write_b32 v%d, v%d offset:%d" % (T0, PA, L_QB))
    vals = [PF+4*n+o for n in range(3) for o in (0, 2)]
    for mode in ("quad_perm:[1,0,3,2]", "quad_perm:[2,3,0,1]", "row_half_mirror", "row_mirror"):
        e("s_nop 1")
        for v in vals:
            e("v_add_f32_dpp v%d, v%d, v%d %s row_mask:0xf bank_mask:0xf" % (v, v, v, mode))
    ups = [PF+4*n+o for n in range(3) for o in (1, 3)]
    for v, u in zip(vals, ups):
        e("v_mov_b32 v%d, v%d" % (u, v))
    e("s_nop 1")
    for v, u in zip(vals, ups):
        e("v_permlane16_swap_b32 v%d, v%d" % (v, u))
    e("s_nop 1")
    for v, u in zip(vals, ups):
        rne(v); rne(u)
        e("v_max_f32 v%d, 0, v%d" % (v, v))
        e("v_mul_f32 v%d, v%d, v%d" % (v, v, u))
        rne(v)
    e("v_mul_u32_u24 v%d, 24, v%d" % (T0, vHalf))
    for k, v in enumerate(vals):
        e("ds_write_b32 v%d, v%d offset:%d" % (T0, v, L_HB + 4*k))
    e("v_mov_b32 v%d, 0" % (T1))
    e("v_mov_b32 v%d, %d" % (T0, L_HB))
    for k in range(4):
        e("ds_write_b32 v%d, v%d offset:%d" % (T0, T1, 48 + 4*k))
    e("s_branch L_commdone")
    g.lab("L_commB")
    e("v_lshlrev_b32 v%d, 4, v%d" % (vB_, vC))
    e("v_add_u32 v%d, 1024, v%d" % (vB_, vB_))
    g.lab("L_poll0b")
    e("s_mov_b32 s%d, s%d" % (sC, sA))
    for n in range(8):
        e("buffer_load_dwordx4 v[%d:%d], v%d, %s, s%d offen sc1" % (PA+4*n, PA+4*n+3, vB_, srd(sWS), sC))
        if n < 7: e("s_add_u32 s%d, s%d, %d" % (sC, sC, 32*3072))
    e("s_waitcnt vmcnt(0)")
    tagcheck([PA+4*n for n in range(8)], T0, T1)
    pollend("L_poll0b", T0)
    for n in range(1, 8):
        e("v_add_f32 v%d, v%d, v%d" % (PA, PA, PA+4*n))
        e("v_add_f32 v%d, v%d, v%d" % (PA+2, PA+2, PA+4*n+2))
    e("v_cvt_pk_bf16_f32 v%d, v%d, v%d" % (PA, PA, PA+2))
    e("v_lshlrev_b32 v%d, 2, v%d" % (T1, vC))
    e("ds_write_b32 v%d, v%d offset:%d" % (T1, PA, L_QB + 256))
    g.lab("L_commdone")
    stamp(4)
    e("s_waitcnt lgkmcnt(0)")
    e("v_mov_b32 v%d, %d" % (T0, L_FL))
    e("v_mov_b32 v%d, 1" % T1)
    e("s_mov_b64 exec, 1")
    e("ds_add_u32 v%d, v%d" % (T0, T1))
    e("s_mov_b64 exec, -1")
    g.lab("L_nocomm")
    vWO = 32
    vKG = 20
    vCH = 23
    for t in range(3):
        e("v_add_u32 v%d, %d, v%d" % (T0, 64*t, vLane))
        e("v_mul_u32_u24 v%d, 2731, v%d" % (vKG+t, T0))
        e("v_lshrrev_b32 v%d, 16, v%d" % (vKG+t, vKG+t))
        e("v_mul_u32_u24 v%d, 24, v%d" % (T1, vKG+t))
        e("v_sub_u32 v%d, v%d, v%d" % (vCH+t, T0, T1))
    vSA = 26
    e("s_mul_i32 s%d, s%d, %d" % (sA, sW, SSTR))
    e("s_add_u32 s%d, s%d, %d" % (sA, sA, L_S))
    for t in range(3):
        e("v_mul_u32_u24 v%d, 112, v%d" % (T0, vKG+t))
        e("v_lshl_add_u32 v%d, v%d, 2, v%d" % (T0, vCH+t, T0))
        e("v_add_u32 v%d, s%d, v%d" % (vSA+t, sA, T0))
    e("v_mov_b32 v%d, %d" % (T0, L_FL))
    e("s_mov_b32 s%d, 0" % sCnt)
    g.lab("L_qwait")
    e("ds_read_b32 v%d, v%d" % (T1, T0))
    e("s_waitcnt lgkmcnt(0)")
    e("v_readfirstlane_b32 s%d, v%d" % (sB, T1))
    e("s_cmp_eq_u32 s%d, 2" % sB)
    e("s_cbranch_scc1 L_qready")
    e("s_add_u32 s%d, s%d, 1" % (sCnt, sCnt))
    e("s_cmp_gt_u32 s%d, 4000000" % sCnt)
    e("s_cbranch_scc1 L_qready")
    e("s_sleep 1")
    e("s_branch L_qwait")
    g.lab("L_qready")
    stamp(3)
    vQ = 8
    for t in range(3):
        e("v_lshlrev_b32 v%d, 4, v%d" % (T0, vCH+t))
        e("ds_read_b128 v[%d:%d], v%d offset:%d" % (vQ+4*t, vQ+4*t+3, T0, L_QB))
    e("s_waitcnt lgkmcnt(0)")
    vS = 29
    for i in range(24):
        e("s_waitcnt vmcnt(%d)" % (23 - i + NV1))
        t = vS + (i % 3)
        k = KS(i); q = vQ + 4*(i % 3)
        e("v_dot2_f32_bf16 v%d, v%d, v%d, 0" % (t, k, q))
        e("v_dot2_f32_bf16 v%d, v%d, v%d, v%d" % (t, k+1, q+1, t))
        e("v_dot2_f32_bf16 v%d, v%d, v%d, v%d" % (t, k+2, q+2, t))
        e("v_dot2_f32_bf16 v%d, v%d, v%d, v%d" % (t, k+3, q+3, t))
        if i >= 1:
            ip = i-1
            e("ds_write_b32 v%d, v%d offset:%d" % (vSA + ip % 3, vS + (ip % 3), 896*(ip//3)))
    e("s_nop 2")
    e("ds_write_b32 v%d, v%d offset:%d" % (vSA + 2, vS + 2, 896*7))
    for i in range(NV1, 24):
        stream_load(i, VS(i), sV, sVoff)
    e("v_mov_b32 v%d, %d" % (T0, L_C2))
    e("v_mov_b32 v%d, 1" % T1)
    e("s_mov_b64 exec, 1")
    e("ds_add_u32 v%d, v%d" % (T0, T1))
    e("s_mov_b64 exec, -1")
    stamp(1)
    vR = 64
    e("v_mul_u32_u24 v%d, 112, v%d" % (T0, vLane))
    e("v_add_u32 v%d, s%d, v%d" % (T0, sA, T0))
    e("s_waitcnt lgkmcnt(0)")
    for k in range(6):
        e("ds_read_b128 v[%d:%d], v%d offset:%d" % (vR+4*k, vR+4*k+3, T0, 16*k))
    e("s_waitcnt lgkmcnt(0)")
    for k in range(12):
        e("v_add_f32 v%d, v%d, v%d" % (vR+k, vR+k, vR+k+12))
    for k in range(6):
        e("v_add_f32 v%d, v%d, v%d" % (vR+k, vR+k, vR+k+6))
    for k in range(3):
        e("v_add_f32 v%d, v%d, v%d" % (vR+k, vR+k, vR+k+3))
    e("v_add_f32 v%d, v%d, v%d" % (vR, vR, vR+1))
    e("v_add_f32 v%d, v%d, v%d" % (vR, vR, vR+2))
    sc, mx, pp, tt = 8, 9, 10, 11
    e("v_mov_b32 v%d, v%d" % (sc, vR))
    rne(sc)
    e("v_mul_f32 v%d, 0x3d93cd3a, v%d" % (sc, sc))
    rne(sc)
    e("v_mov_b32 v%d, v%d" % (mx, sc))
    wave_reduce("v_max_f32", mx, tt)
    e("v_sub_f32 v%d, v%d, v%d" % (pp, sc, mx))
    e("v_mul_f32 v%d, s%d, v%d" % (pp, sLog2e, pp))
    e("v_exp_f32 v%d, v%d" % (pp, pp))
    e("s_nop 0")
    e("v_mov_b32 v%d, v%d" % (sc, pp))
    rne(sc)
    e("v_and_b32 v%d, 7, v%d" % (tt, vLane))
    e("v_lshlrev_b32 v%d, 5, v%d" % (tt, tt))
    e("v_lshrrev_b32 v%d, 3, v%d" % (T0, vLane))
    e("v_lshl_add_u32 v%d, v%d, 2, v%d" % (tt, T0, tt))
    e("s_lshl_b32 s%d, s%d, 8" % (sB, sW))
    e("v_add_u32 v%d, s%d, v%d" % (tt, sB, tt))
    e("ds_write_b32 v%d, v%d offset:%d" % (tt, sc, L_PT))
    wave_reduce("v_add_f32", pp, tt)
    e("s_lshl_b32 s%d, s%d, 3" % (sC, sW))
    e("v_mov_b32 v%d, s%d" % (tt, sC))
    e("v_mov_b32 v%d, v%d" % (sc, mx))
    e("v_mov_b32 v%d, v%d" % (mx, pp))
    e("ds_write_b64 v%d, v[%d:%d] offset:%d" % (tt, sc, mx, L_ST))
    vP = 64
    e("s_waitcnt lgkmcnt(0)")
    for t in range(3):
        e("v_lshlrev_b32 v%d, 5, v%d" % (T0, vKG+t))
        e("v_add_u32 v%d, s%d, v%d" % (T0, sB, T0))
        e("ds_read_b128 v[%d:%d], v%d offset:%d" % (vP+8*t, vP+8*t+3, T0, L_PT))
        e("ds_read_b128 v[%d:%d], v%d offset:%d" % (vP+8*t+4, vP+8*t+7, T0, L_PT + 16))
    e("s_waitcnt lgkmcnt(0)")
    vAc = 96
    vPl = 120
    def pv(extra):
        for i in range(24):
            t = i % 3; ii = i // 3
            e("v_lshrrev_b32 v%d, 16, v%d" % (vPl + (i % 4), vP+8*t+ii))
            e("s_waitcnt vmcnt(%d)" % (23 - i + extra))
            vecmat_step(vAc + 8*t, VS(i), vPl + (i % 4), vP+8*t+ii, ii == 0, n=4)
    pv(0)
    e("v_lshlrev_b32 v%d, 5, v%d" % (T0, vLane))
    e("v_add_u32 v%d, s%d, v%d" % (T0, sA, T0))
    e("s_nop 0")
    for t in range(3):
        e("ds_write_b128 v%d, v[%d:%d] offset:%d" % (T0, vAc+8*t, vAc+8*t+3, 2048*t))
        e("ds_write_b128 v%d, v[%d:%d] offset:%d" % (T0, vAc+8*t+4, vAc+8*t+7, 2048*t + 16))
    vWO = 32
    e("s_cmp_ge_u32 s%d, 5" % sW)
    e("s_cbranch_scc1 L_nowo")
    e("s_mov_b32 s%d, s%d" % (sCB, sW))
    e("s_cmp_eq_u32 s%d, 4" % sW)
    e("s_cbranch_scc1 L_wogo")
    e("v_mov_b32 v%d, %d" % (T2, L_C2))
    e("s_mov_b32 s%d, 0" % sCnt)
    g.lab("L_c2wait")
    e("ds_read_b32 v%d, v%d" % (T1, T2))
    e("s_waitcnt lgkmcnt(0)")
    e("v_readfirstlane_b32 s%d, v%d" % (sB, T1))
    e("s_cmp_eq_u32 s%d, 8" % sB)
    e("s_cbranch_scc1 L_wogo")
    e("s_add_u32 s%d, s%d, 1" % (sCnt, sCnt))
    e("s_cmp_gt_u32 s%d, 4000000" % sCnt)
    e("s_cbranch_scc1 L_wogo")
    e("s_sleep 1")
    e("s_branch L_c2wait")
    g.lab("L_wogo")
    e("v_lshrrev_b32 v%d, 3, v%d" % (T1, vLane))
    e("v_mul_u32_u24 v%d, 1280, v%d" % (T1, T1))
    e("v_and_b32 v%d, 7, v%d" % (T2, vLane))
    e("v_lshl_add_u32 v%d, v%d, 4, v%d" % (T1, T2, T1))
    e("s_and_b32 s%d, s%d, 1" % (sC, sS))
    e("s_mul_i32 s%d, s%d, 640" % (sC, sC))
    e("s_lshl_b32 s%d, s%d, 7" % (sB, sCB))
    e("s_add_u32 s%d, s%d, s%d" % (sC, sC, sB))
    e("s_lshr_b32 s%d, s%d, 1" % (sD, sS))
    e("s_mul_i32 s%d, s%d, 192" % (sB, sH))
    e("s_mul_i32 s88, s%d, 48" % sD)
    e("s_add_u32 s%d, s%d, s88" % (sB, sB))
    e("s_mul_i32 s%d, s%d, 1280" % (sB, sB))
    e("s_add_u32 s%d, s%d, s%d" % (sB, sB, sC))
    for i in range(6):
        e("buffer_load_dwordx4 v[%d:%d], v%d, %s, s%d offen%s" % (vWO+4*i, vWO+4*i+3, T1, srd(sWO), sB, NT))
        if i < 5: e("s_add_u32 s%d, s%d, 10240" % (sB, sB))
    e("s_lshl_b32 s%d, s%d, 2" % (sB, sH))
    e("s_add_u32 s%d, s%d, s%d" % (sB, sB, sD))
    e("s_mul_i32 s%d, s%d, 15360" % (sB, sB))
    e("s_add_u32 s%d, s%d, s%d" % (sB, sB, sC))
    e("buffer_load_dwordx4 v[%d:%d], v%d, %s, s%d offen%s" % (vWO+24, vWO+27, T1, srd(sWD), sB, NT))
    e("s_add_u32 s%d, s%d, 10240" % (sB, sB))
    e("s_mov_b32 exec_hi, 0")
    e("buffer_load_dwordx4 v[%d:%d], v%d, %s, s%d offen%s" % (vWO+28, vWO+31, T1, srd(sWD), sB, NT))
    e("s_mov_b64 exec, -1")
    g.lab("L_nowo")
    e("s_waitcnt lgkmcnt(0)")
    stamp(5)
    e("s_barrier")
    stamp(6)
    e("s_cmp_ge_u32 s%d, 6" % sW)
    e("s_cbranch_scc1 L_nopub2")
    vO = 64
    vG_ = 8
    e("v_and_b32 v%d, 7, v%d" % (vG_, vLane))
    e("v_lshrrev_b32 v%d, 3, v%d" % (T1, vTid))
    e("v_mul_u32_u24 v%d, %d, v%d" % (T0, SSTR, vG_))
    e("v_lshl_add_u32 v%d, v%d, 4, v%d" % (T0, T1, T0))
    e("v_add_u32 v%d, %d, v%d" % (T0, L_S, T0))
    e("v_lshlrev_b32 v%d, 3, v%d" % (T2, vG_))
    e("ds_read_b64 v[10:11], v%d offset:%d" % (T2, L_ST))
    for j in range(8):
        e("ds_read_b128 v[%d:%d], v%d offset:%d" % (vO+4*j, vO+4*j+3, T0, 768*j))
    e("s_waitcnt lgkmcnt(8)")
    M = 12
    e("v_mov_b32 v%d, v10" % M)
    def red8(op, regs):
        for mode in ("quad_perm:[1,0,3,2]", "quad_perm:[2,3,0,1]", "row_half_mirror"):
            e("s_nop 1")
            for v in regs:
                e("%s_dpp v%d, v%d, v%d %s row_mask:0xf bank_mask:0xf" % (op, v, v, v, mode))
    red8("v_max_f32", [M])
    e("v_sub_f32 v10, v10, v%d" % M)
    e("v_mul_f32 v10, s%d, v10" % sLog2e)
    e("v_exp_f32 v10, v10")
    e("s_waitcnt lgkmcnt(0)")
    for st in (4, 2, 1):
        for j in range(st):
            for c in range(4):
                e("v_add_f32 v%d, v%d, v%d" % (vO+4*j+c, vO+4*j+c, vO+4*(j+st)+c))
    for c in range(4):
        e("v_mul_f32 v%d, v%d, v10" % (vO+c, vO+c))
    e("v_mul_f32 v11, v11, v10")
    red8("v_add_f32", [vO, vO+1, vO+2, vO+3, 11])
    a0 = 16
    e("v_cmp_eq_u32 vcc, 1, v%d" % vG_)
    e("s_nop 1")
    e("v_cndmask_b32 v%d, v%d, v%d, vcc" % (a0, vO, vO+2))
    e("v_cndmask_b32 v%d, v%d, v%d, vcc" % (a0+2, vO+1, vO+3))
    e("v_lshl_add_u32 v%d, v%d, 1, v%d" % (T0, T1, vG_))
    e("v_cmp_eq_u32 vcc, 2, v%d" % vTid)
    e("s_nop 1")
    e("v_cndmask_b32 v%d, v%d, v%d, vcc" % (a0, a0, M))
    e("v_cndmask_b32 v%d, v%d, v11, vcc" % (a0+2, a0+2))
    e("v_mov_b32 v%d, 96" % T1)
    e("v_cndmask_b32 v%d, v%d, v%d, vcc" % (T0, T0, T1))
    e("v_cmp_gt_u32 s[88:89], 2, v%d" % vG_)
    e("s_or_b64 vcc, vcc, s[88:89]")
    e("v_mov_b32 v%d, s%d" % (a0+1, sT))
    e("v_mov_b32 v%d, s%d" % (a0+3, sT))
    e("s_lshl_b32 s%d, s%d, 11" % (sA, sJ))
    e("s_add_u32 s%d, s%d, %d" % (sA, sA, WS_O))
    e("v_lshlrev_b32 v%d, 4, v%d" % (T0, T0))
    e("s_and_saveexec_b64 s[88:89], vcc")
    e("buffer_store_dwordx4 v[%d:%d], v%d, %s, s%d offen sc1" % (a0, a0+3, T0, srd(sWS), sA))
    e("s_mov_b64 exec, s[88:89]")
    g.lab("L_nopub2")
    NPOLL = 1
    e("s_cmp_ge_u32 s%d, 5" % sW)
    e("s_cbranch_scc1 L_poller")
    vWt = 88
    aA, aB = 96, 104
    e("v_lshrrev_b32 v%d, 3, v%d" % (T0, vLane))
    e("v_lshlrev_b32 v%d, 2, v%d" % (T0, T0))
    e("v_mov_b32 v%d, %d" % (T2, L_GB))
    for i in range(2):
        e("ds_read_b32 v%d, v%d offset:%d" % (vWt+6+i, T0, L_HB + 32*i))
    e("ds_read_b64 v[12:13], v%d" % T2)
    e("s_mul_i32 s%d, s%d, 2560" % (sA, sJ))
    e("s_lshl_b32 s%d, s%d, 9" % (sB, sCB))
    e("s_add_u32 s%d, s%d, s%d" % (sA, sA, sB))
    e("s_add_u32 s%d, s%d, %d" % (sA, sA, WS_R))
    e("v_and_b32 v14, 7, v%d" % vLane)
    e("v_lshlrev_b32 v14, 6, v14")
    e("v_lshrrev_b32 v15, 4, v%d" % vLane)
    e("v_lshl_add_u32 v14, v15, 4, v14")
    e("s_waitcnt vmcnt(0) lgkmcnt(0)")
    for i in (6, 7):
        if i == 7: e("s_mov_b32 exec_hi, 0")
        first = i == 6
        e("v_lshrrev_b32 v%d, 16, v%d" % (T1, vWt+i))
        for k in range(4):
            c0 = "0" if first else "v%d" % (aB+2*k)
            c1 = "0" if first else "v%d" % (aB+2*k+1)
            e("v_dot2_f32_bf16 v%d, v%d, v%d, %s" % (aB+2*k, vWO+4*i+k, T1, c0))
            e("v_dot2_f32_bf16 v%d, v%d, v%d, %s" % (aB+2*k+1, vWO+4*i+k, vWt+i, c1))
    e("s_mov_b64 exec, -1")
    e("s_nop 2")
    for k in range(8):
        e("v_mul_f32 v%d, v%d, v13" % (aB+k, aB+k))
    e("v_mov_b32 v%d, s%d" % (113, sT))
    e("v_mov_b32 v%d, s%d" % (115, sT))
    e("v_mov_b32 v%d, %d" % (T2, L_F2))
    e("s_mov_b32 s%d, 0" % sCnt)
    g.lab("L_wwait")
    e("ds_read_b32 v%d, v%d" % (T1, T2))
    e("s_waitcnt lgkmcnt(0)")
    e("v_readfirstlane_b32 s%d, v%d" % (sB, T1))
    e("s_cmp_lg_u32 s%d, 0" % sB)
    e("s_cbranch_scc1 L_wready")
    e("s_add_u32 s%d, s%d, 1" % (sCnt, sCnt))
    e("s_cmp_gt_u32 s%d, 4000000" % sCnt)
    e("s_cbranch_scc1 L_wready")
    e("s_branch L_wwait")
    g.lab("L_wready")
    stamp(7)
    for i in range(6):
        e("ds_read_b32 v%d, v%d offset:%d" % (vWt+i, T0, L_WB + 32*i))
    for i in range(6):
        e("s_waitcnt lgkmcnt(%d)" % (5-i))
        first = i == 0
        e("v_lshrrev_b32 v%d, 16, v%d" % (T1, vWt+i))
        for k in range(4):
            c0 = "0" if first else "v%d" % (aA+2*k)
            c1 = "0" if first else "v%d" % (aA+2*k+1)
            e("v_dot2_f32_bf16 v%d, v%d, v%d, %s" % (aA+2*k, vWO+4*i+k, T1, c0))
            e("v_dot2_f32_bf16 v%d, v%d, v%d, %s" % (aA+2*k+1, vWO+4*i+k, vWt+i, c1))
    e("s_nop 2")
    for k in range(8):
        e("v_fma_f32 v%d, v%d, v12, v%d" % (aA+k, aA+k, aB+k))
    e("s_nop 1")
    for k in range(4):
        e("v_permlane32_swap_b32 v%d, v%d" % (aA+k, aA+k+4))
    e("s_nop 1")
    for k in range(4):
        e("v_add_f32 v%d, v%d, v%d" % (aA+k, aA+k, aA+k+4))
    e("s_nop 1")
    for k in range(2):
        e("v_permlane16_swap_b32 v%d, v%d" % (aA+k, aA+k+2))
    e("s_nop 1")
    e("v_add_f32 v112, v%d, v%d" % (aA, aA+2))
    e("v_add_f32 v114, v%d, v%d" % (aA+1, aA+3))
    e("s_nop 1")
    e("v_add_f32_dpp v112, v112, v112 row_ror:8 row_mask:0xf bank_mask:0xf")
    e("v_add_f32_dpp v114, v114, v114 row_ror:8 row_mask:0xf bank_mask:0xf")
    e("s_mov_b32 exec_lo, 0x00ff00ff")
    e("s_mov_b32 exec_hi, 0x00ff00ff")
    e("buffer_store_dwordx4 v[112:115], v14, %s, s%d offen sc1" % (srd(sWS), sA))
    stamp(8)
    e("s_branch L_fin")
    g.lab("L_poller")
    e("s_cmp_lg_u32 s%d, 7" % sW)
    e("s_cbranch_scc1 L_fin")
    if NPOLL > 1:
        st = g.new("stg")
        e("s_cmp_eq_u32 s%d, 0" % sW)
        e("s_cbranch_scc1 %s" % st)
        e("s_sleep %d" % opt.get("stagn", 6))
        e("s_cmp_eq_u32 s%d, 1" % sW)
        e("s_cbranch_scc1 %s" % st)
        e("s_sleep %d" % opt.get("stagn", 6))
        g.lab(st)
    G1, G2, G4, G3 = 64, 68, 72, 76
    a1, a3 = 8, 10
    e("v_lshrrev_b32 v%d, 3, v%d" % (a3, vLane))
    e("v_lshlrev_b32 v%d, 16, v%d" % (a3, a3))
    e("v_and_b32 v%d, 7, v%d" % (T1, vLane))
    e("v_lshl_add_u32 v%d, v%d, 4, v%d" % (a1, T1, a3))
    e("s_lshl_b32 s%d, s%d, 11" % (sA, sH))
    e("s_add_u32 s%d, s%d, %d" % (sA, sA, WS_O))
    e("s_lshr_b32 s%d, s%d, 1" % (sB, sS))
    e("s_mul_i32 s%d, s%d, 384" % (sB, sB))
    e("s_add_u32 s%d, s%d, s%d" % (sB, sB, sA))
    e("s_mov_b32 s%d, 0" % sCnt)
    g.lab("L_poll1")
    e("buffer_load_dwordx4 v[%d:%d], v%d, %s, s%d offen sc1" % (G1, G1+3, a1, srd(sWS), sB))
    e("buffer_load_dwordx4 v[%d:%d], v%d, %s, s%d offen offset:128 sc1" % (G2, G2+3, a1, srd(sWS), sB))
    e("buffer_load_dwordx4 v[%d:%d], v%d, %s, s%d offen offset:256 sc1" % (G4, G4+3, a1, srd(sWS), sB))
    e("buffer_load_dwordx4 v[%d:%d], v%d, %s, s%d offen offset:1536 sc1" % (G3, G3+3, a3, srd(sWS), sA))
    e("s_waitcnt vmcnt(0)")
    tagcheck([G1, G2, G4, G3], T1, T2)
    pollend("L_poll1", T1)
    def red345(op, regs, tmps):
        e("s_nop 1")
        for v in regs:
            e("%s_dpp v%d, v%d, v%d row_ror:8 row_mask:0xf bank_mask:0xf" % (op, v, v, v))
        for swap in ("v_permlane16_swap_b32", "v_permlane32_swap_b32"):
            for v, t in zip(regs, tmps):
                e("v_mov_b32 v%d, v%d" % (t, v))
            e("s_nop 1")
            for v, t in zip(regs, tmps):
                e("%s v%d, v%d" % (swap, v, t))
            e("s_nop 1")
            for v, t in zip(regs, tmps):
                e("%s v%d, v%d, v%d" % (op, v, v, t))
    Mx = 12
    e("v_mov_b32 v%d, v%d" % (Mx, G3))
    red345("v_max_f32", [Mx], [80])
    e("v_sub_f32 v%d, v%d, v%d" % (Mx, G3, Mx))
    e("v_mul_f32 v%d, s%d, v%d" % (Mx, sLog2e, Mx))
    e("v_exp_f32 v%d, v%d" % (Mx, Mx))
    e("s_nop 0")
    rr = [G1, G1+2, G2, G2+2, G4, G4+2, G3+2]
    for v in rr:
        e("v_mul_f32 v%d, v%d, v%d" % (v, v, Mx))
    red345("v_add_f32", rr, [80, 81, 82, 83, 84, 85, 86])
    e("v_rcp_f32 v%d, v%d" % (Mx, G3+2))
    e("s_nop 0")
    for v in rr[:6]:
        e("v_mul_f32 v%d, v%d, v%d" % (v, v, Mx))
        rne(v)
    e("v_and_b32 v%d, 7, v%d" % (T0, vLane))
    e("v_lshlrev_b32 v%d, 3, v%d" % (T0, T0))
    for Gx in (G1, G2, G4):
        e("v_mov_b32 v%d, v%d" % (Gx+1, Gx+2))
    e("s_mov_b64 exec, 0xff")
    for n, Gx in enumerate((G1, G2, G4)):
        e("ds_write_b64 v%d, v[%d:%d] offset:%d" % (T0, Gx, Gx+1, L_WB + 64*n))
    e("s_waitcnt lgkmcnt(0)")
    e("v_mov_b32 v%d, %d" % (T0, L_F2))
    e("v_mov_b32 v%d, 1" % T1)
    e("ds_write_b32 v%d, v%d" % (T0, T1))
    e("s_mov_b64 exec, -1")
    stamp(7)
    e("s_cmp_ge_u32 s%d, 160" % sJ)
    e("s_cbranch_scc1 L_fin")
    FR = 128
    e("v_bfe_u32 v%d, v%d, 1, 2" % (T0, vLane))
    e("v_lshlrev_b32 v%d, 3, v%d" % (T0, T0))
    e("v_bfe_u32 v%d, v%d, 3, 1" % (T1, vLane))
    e("v_add_u32 v%d, v%d, v%d" % (T0, T0, T1))
    e("v_lshrrev_b32 v%d, 4, v%d" % (T1, vLane))
    e("v_lshl_add_u32 v%d, v%d, 6, v%d" % (T0, T1, T0))
    e("v_mul_u32_u24 v%d, 2560, v%d" % (T0, T0))
    e("v_and_b32 v%d, 1, v%d" % (T1, vLane))
    e("v_lshl_add_u32 v%d, v%d, 4, v%d" % (T0, T1, T0))
    e("s_cmp_ge_u32 s%d, 80" % sJ)
    e("s_cselect_b32 s%d, 1, 0" % sB)
    e("s_mul_i32 s%d, s%d, 80" % (sA, sB))
    e("s_sub_u32 s%d, s%d, s%d" % (sA, sJ, sA))
    e("s_lshl_b32 s%d, s%d, 5" % (sA, sA))
    e("s_mul_i32 s%d, s%d, %d" % (sB, sB, 32*2560))
    e("s_add_u32 s%d, s%d, s%d" % (sA, sA, sB))
    e("s_add_u32 s40, s%d, %d" % (sA, WS_R))
    for n in range(1, 4):
        e("s_add_u32 s%d, s%d, 5120" % (40+n, 40+n-1))
    e("s_mov_b32 s%d, 0" % sC)
    if opt.get("pre2", 0): e("s_sleep %d" % opt.get("pre2", 0))
    e("s_mov_b32 s%d, 0" % sCnt)
    g.lab("L_poll2")
    for n in range(4):
        sk = g.new("sk")
        e("s_bitcmp1_b32 s%d, %d" % (sC, n))
        e("s_cbranch_scc1 %s" % sk)
        e("buffer_load_dwordx4 v[%d:%d], v%d, %s, s%d offen sc1" % (FR+4*n, FR+4*n+3, T0, srd(sWS), 40+n))
        g.lab(sk)
    e("s_waitcnt vmcnt(0)")
    for n in range(4):
        e("v_xor_b32 v%d, s%d, v%d" % (T1, sT, FR+4*n+1))
        e("v_xor_b32 v%d, s%d, v%d" % (T2, sT, FR+4*n+3))
        e("v_or_b32 v%d, v%d, v%d" % (T1, T1, T2))
        e("v_cmp_ne_u32 vcc, 0, v%d" % T1)
        e("s_nop 1")
        e("s_cmp_eq_u64 vcc, 0")
        e("s_cselect_b32 s%d, %d, 0" % (sB, 1 << n))
        e("s_or_b32 s%d, s%d, s%d" % (sC, sC, sB))
    e("s_cmp_eq_u32 s%d, 0xf" % sC)
    e("s_cbranch_scc1 L_p2done")
    e("s_add_u32 s%d, s%d, 1" % (sCnt, sCnt))
    e("s_cmp_lt_u32 s%d, 200000" % sCnt)
    e("s_cbranch_scc0 L_p2done")
    if SLEEP: e("s_sleep %d" % SLEEP)
    e("s_branch L_poll2")
    g.lab("L_p2done")
    for n in range(1, 4):
        e("v_add_f32 v%d, v%d, v%d" % (FR, FR, FR+4*n))
        e("v_add_f32 v%d, v%d, v%d" % (FR+2, FR+2, FR+4*n+2))
    for mode in ("quad_perm:[2,3,0,1]", "row_ror:4", "row_ror:8"):
        e("s_nop 1")
        for v in (FR, FR+2):
            e("v_add_f32_dpp v%d, v%d, v%d %s row_mask:0xf bank_mask:0xf" % (v, v, v, mode))
    for swap in ("v_permlane16_swap_b32", "v_permlane32_swap_b32"):
        e("v_mov_b32 v%d, v%d" % (FR+1, FR))
        e("v_mov_b32 v%d, v%d" % (FR+3, FR+2))
        e("s_nop 1")
        e("%s v%d, v%d" % (swap, FR, FR+1))
        e("%s v%d, v%d" % (swap, FR+2, FR+3))
        e("s_nop 1")
        e("v_add_f32 v%d, v%d, v%d" % (FR, FR, FR+1))
        e("v_add_f32 v%d, v%d, v%d" % (FR+2, FR+2, FR+3))
    e("v_cvt_pk_bf16_f32 v%d, v%d, v%d" % (FR, FR, FR+2))
    e("v_lshlrev_b32 v%d, 2, v%d" % (T0, vLane))
    e("s_lshl_b32 s%d, s%d, 3" % (sA, sJ))
    e("s_mov_b64 exec, 3")
    e("buffer_store_dword v%d, v%d, %s, s%d offen" % (FR, T0, srd(sOUT), sA))
    e("s_cmp_lg_u32 s%d, 0" % sJ)
    e("s_cbranch_scc1 L_fin")
    e("s_mov_b64 exec, 1")
    e("v_mov_b32 v%d, s%d" % (T0, sT))
    e("v_mov_b32 v%d, 0" % (T1))
    e("buffer_store_dword v%d, v%d, %s, 0 offen" % (T0, T1, srd(sWS)))
    g.lab("L_fin")
    stamp(9)
    stamp_flush()
    g.lab("L_end")
    e("s_endpgm")
    out += g.L
    out += ['.section .rodata,"a"', ".p2align 6", ".amdhsa_kernel %s_kernel" % KN,
        "  .amdhsa_next_free_vgpr 256", "  .amdhsa_next_free_sgpr 102", "  .amdhsa_accum_offset 256",
        "  .amdhsa_group_segment_fixed_size 0", "  .amdhsa_kernarg_size 104", "  .amdhsa_user_sgpr_count 2",
        "  .amdhsa_user_sgpr_kernarg_segment_ptr 1", "  .amdhsa_system_sgpr_workgroup_id_x 1", ".end_amdhsa_kernel", ""]
    return "\n".join(out)

if __name__ == "__main__":
    opt = {}
    outp = sys.argv[1]
    for a in sys.argv[2:]:
        k, v = a.split("=")
        opt[k] = int(v)
    open(outp, "w").write(gen(opt))
```

```python
import sys

KN = "gated_mix__sliding_block_cached__glu_gated_reglu__decode"

class G:
    def __init__(self):
        self.L = []
        self.uid = 0
    def e(self, s):
        self.L.append("    " + s)
    def lab(self, s):
        self.L.append(s + ":")
    def new(self, p):
        self.uid += 1
        return "L_%s_%d" % (p, self.uid)

def gen(opt):
    g = G()
    e = g.e
    NT = " nt" if opt.get("nt", 1) else ""
    PROF = opt.get("prof", 0)
    NK0 = opt.get("nk0", 6)
    SLEEP = opt.get("sleep", 0)
    sK, sV, sWQ, sWO, sF, sWD, sX, sGW, sOUT, sWS = [32 + 4*i for i in range(10)]
    def srd(b): return "s[%d:%d]" % (b, b+3)
    sH, sS, sW, sT, sJ = 72, 73, 74, 75, 76
    sA, sB, sC, sD = 77, 78, 79, 80
    sCnt = 81
    sLog2e = 82
    sKoff, sVoff = 83, 84
    sCB = 85
    WS_Q = 4096
    WS_O = WS_Q + 256*3072
    WS_R = WS_O + 256*2048
    WS_P = WS_R + 256*5120
    WS_END = WS_P + 256*8*64
    L_QP = 0
    L_PT = 24576
    L_QB = L_PT + 2048
    L_HB = L_QB + 512
    L_GB = L_HB + 64
    L_ST = L_GB + 64
    L_WB = L_ST + 64
    L_FL = L_WB + 5*128
    L_CN = L_FL + 4
    L_F2 = L_FL + 8
    L_C2 = L_FL + 12
    L_S = 32768
    SSTR = 7200
    L_END = L_S + 8*SSTR
    LDS = (L_END + 255)//256*256
    vTid, vLane, vOff16, vHalf, vC = 0, 1, 2, 3, 4
    T0, T1, T2 = 5, 6, 7
    vAcc = 8
    vAccF = 14
    vP0 = 20
    vTmp = 32
    def KS(i): return 64 + 4*i
    def VS(i): return 160 + 4*i
    vWQd = 160
    vFd = 180
    vXq = 192
    vXf = 197
    vGx = 200
    vGw = 205

    def stamp(k):
        if not PROF: return
        if PROF == 2 and k not in (0, 9): return
        e("s_memrealtime s[100:101]")
        e("s_waitcnt lgkmcnt(0)")
        e("s_mov_b32 s%d, s100" % (90+k))
    def stamp_flush():
        if not PROF: return
        e("s_mov_b64 exec, 1")
        for k in range(10):
            e("v_mov_b32 v%d, s%d" % (64+k, 90+k))
        e("s_lshl_b32 s%d, s%d, 3" % (sA, sJ))
        e("s_add_u32 s%d, s%d, s%d" % (sA, sA, sW))
        e("s_lshl_b32 s%d, s%d, 6" % (sA, sA))
        e("s_add_u32 s%d, s%d, %d" % (sA, sA, WS_P))
        e("v_mov_b32 v%d, 0" % T0)
        e("buffer_store_dwordx4 v[64:67], v%d, %s, s%d offen" % (T0, srd(sWS), sA))
        e("buffer_store_dwordx4 v[68:71], v%d, %s, s%d offen offset:16" % (T0, srd(sWS), sA))
        e("buffer_store_dwordx2 v[72:73], v%d, %s, s%d offen offset:32" % (T0, srd(sWS), sA))

    def tagcheck(groups, vbad, vt):
        first = True
        for b in groups:
            for o in (1, 3):
                if first:
                    e("v_xor_b32 v%d, s%d, v%d" % (vbad, sT, b+o)); first = False
                else:
                    e("v_xor_b32 v%d, s%d, v%d" % (vt, sT, b+o))
                    e("v_or_b32 v%d, v%d, v%d" % (vbad, vbad, vt))
    def pollend(label, vbad):
        done = g.new("pd")
        e("v_cmp_ne_u32 vcc, 0, v%d" % vbad)
        e("s_nop 1")
        e("s_cmp_eq_u64 vcc, 0")
        e("s_cbranch_scc1 %s" % done)
        e("s_add_u32 s%d, s%d, 1" % (sCnt, sCnt))
        e("s_cmp_lt_u32 s%d, 200000" % sCnt)
        e("s_cbranch_scc0 %s" % done)
        if SLEEP: e("s_sleep %d" % SLEEP)
        e("s_branch %s" % label)
        g.lab(done)
    hdr = open("cdna_kernels/%s.s.ref" % KN).read().split("\n")
    top = []
    for ln in hdr:
        if ln.startswith("; @launch"): break
        top.append(ln)
    out = top + ["; @launch grid=(256,1,1) block=(512,1,1) lds=%d" % LDS,
        '.amdgcn_target "amdgcn-amd-amdhsa--gfx950"', ".text", ".globl %s_kernel" % KN, ".p2align 8",
        ".type %s_kernel,@function" % KN, "%s_kernel:" % KN]

    e("s_cmp_ge_u32 s2, 256")
    e("s_cbranch_scc1 L_end")
    if PROF:
        for k in range(10): e("s_mov_b32 s%d, 0" % (90+k))
    stamp(0)
    e("s_load_dwordx16 s[4:19], s[0:1], 0")
    e("s_load_dwordx8 s[20:27], s[0:1], 64")
    e("s_load_dwordx2 s[28:29], s[0:1], 96")
    e("s_mov_b32 s%d, s2" % sJ)
    e("s_and_b32 s%d, s2, 31" % sH)
    e("s_lshr_b32 s%d, s2, 5" % sS)
    e("v_and_b32 v%d, 63, v0" % vLane)
    e("v_lshrrev_b32 v%d, 6, v0" % T0)
    e("v_lshlrev_b32 v%d, 4, v%d" % (vOff16, vLane))
    e("v_readfirstlane_b32 s%d, v%d" % (sW, T0))
    e("v_lshrrev_b32 v%d, 5, v%d" % (vHalf, vLane))
    e("v_and_b32 v%d, 31, v%d" % (vC, vLane))
    e("s_mov_b32 s%d, 0x3fb8aa3b" % sLog2e)
    e("s_waitcnt lgkmcnt(0)")
    e("s_load_dword s%d, s[28:29], 0" % sT)
    def mksrd(b, p, n):
        e("s_mov_b32 s%d, s%d" % (b, p)); e("s_mov_b32 s%d, s%d" % (b+1, p+1))
        e("s_mov_b32 s%d, %d" % (b+2, n)); e("s_mov_b32 s%d, 0x00020000" % (b+3))
    mksrd(sX, 4, 1280)
    mksrd(sWQ, 10, 640*6144*2)
    e("s_lshr_b32 s%d, s%d, 4" % (sA, sJ))
    e("s_cmp_lt_u32 s%d, 8" % sA)
    e("s_cselect_b32 s%d, s16, s18" % sF)
    e("s_cselect_b32 s%d, s17, s19" % (sF+1))
    e("s_mov_b32 s%d, %d" % (sF+2, 640*1536*2)); e("s_mov_b32 s%d, 0x00020000" % (sF+3))
    mksrd(sK, 6, 402653184)
    e("s_mul_i32 s%d, s%d, 80" % (sA, sS))
    e("s_mul_i32 s%d, s%d, 10" % (sB, sW))
    e("s_add_u32 s%d, s%d, s%d" % (sA, sA, sB))
    e("s_lshl_b32 s%d, s%d, 1" % (sB, sA))
    e("v_lshlrev_b32 v%d, 1, v%d" % (T0, vHalf))
    e("s_mul_i32 s%d, s%d, 12288" % (sA, sA))
    e("s_mul_i32 s%d, s%d, 384" % (sC, sH))
    e("s_add_u32 s%d, s%d, s%d" % (sA, sA, sC))
    e("v_mul_u32_u24 v%d, 12288, v%d" % (T1, vHalf))
    e("v_mul_u32_u24 v%d, 12, v%d" % (T2, vC))
    e("v_add_u32 v%d, v%d, v%d" % (T1, T1, T2))
    for i in range(5):
        e("buffer_load_dwordx3 v[%d:%d], v%d, %s, s%d offen%s" % (vWQd+4*i, vWQd+4*i+2, T1, srd(sWQ), sA, NT))
        if i < 4: e("s_add_u32 s%d, s%d, 24576" % (sA, sA))
    for i in range(5):
        e("buffer_load_ushort v%d, v%d, %s, s%d offen offset:%d" % (vXq+i, T0, srd(sX), sB, 4*i))
    e("s_and_b32 s%d, s%d, 15" % (sC, sJ))
    e("s_mul_i32 s%d, s%d, 40" % (sC, sC))
    e("s_mul_i32 s%d, s%d, 5" % (sD, sW))
    e("s_add_u32 s%d, s%d, s%d" % (sC, sC, sD))
    e("s_lshl_b32 s%d, s%d, 1" % (sD, sC))
    e("s_mul_i32 s%d, s%d, 3072" % (sC, sC))
    e("s_lshr_b32 s%d, s%d, 4" % (sB, sJ))
    e("s_and_b32 s%d, s%d, 7" % (sB, sB))
    e("s_mul_i32 s%d, s%d, 384" % (sB, sB))
    e("s_add_u32 s%d, s%d, s%d" % (sC, sC, sB))
    e("v_mul_u32_u24 v%d, 3072, v%d" % (T1, vHalf))
    e("v_add_u32 v%d, v%d, v%d" % (T1, T1, T2))
    for i in range(3):
        if i == 2: e("s_mov_b32 exec_hi, 0")
        e("buffer_load_dwordx3 v[%d:%d], v%d, %s, s%d offen%s" % (vFd+4*i, vFd+4*i+2, T1, srd(sF), sC, NT))
        if i < 2: e("s_add_u32 s%d, s%d, 6144" % (sC, sC))
    e("s_mov_b64 exec, -1")
    for i in range(3):
        e("buffer_load_ushort v%d, v%d, %s, s%d offen offset:%d" % (vXf+i, T0, srd(sX), sD, 4*i))
    mksrd(sGW, 22, 1280)
    e("s_cmp_lg_u32 s%d, 5" % sW)
    e("s_cbranch_scc1 L_nog1")
    e("v_lshlrev_b32 v%d, 2, v%d" % (T0, vLane))
    for k in range(5):
        e("buffer_load_dword v%d, v%d, %s, 0 offen offset:%d" % (vGx+k, T0, srd(sX), 256*k))
        e("buffer_load_dword v%d, v%d, %s, 0 offen offset:%d" % (vGw+k, T0, srd(sGW), 256*k))
    g.lab("L_nog1")
    e("s_mul_i32 s%d, s%d, 12582912" % (sA, sH))
    e("s_lshl_b32 s%d, s%d, 9" % (sB, sS))
    e("s_lshl_b32 s%d, s%d, 6" % (sC, sW))
    e("s_add_u32 s%d, s%d, s%d" % (sB, sB, sC))
    e("s_add_u32 s%d, s%d, 28672" % (sB, sB))
    e("s_mul_i32 s%d, s%d, 384" % (sB, sB))
    e("s_add_u32 s%d, s%d, s%d" % (sKoff, sA, sB))
    e("s_mov_b32 s%d, s%d" % (sVoff, sKoff))
    def stream_load(i, reg, s_srd, soff):
        if i and i % 4 == 0:
            e("s_add_u32 s%d, s%d, 4096" % (soff, soff))
        e("buffer_load_dwordx4 v[%d:%d], v%d, %s, s%d offen offset:%d%s" % (reg, reg+3, vOff16, srd(s_srd), soff, (i%4)*1024, NT))
    for i in range(NK0):
        stream_load(i, KS(i), sK, sKoff)
    mksrd(sV, 8, 402653184)
    mksrd(sWO, 12, 6144*640*2)
    mksrd(sWD, 20, 1536*640*2)
    mksrd(sOUT, 24, 1280)
    mksrd(sWS, 28, WS_END)
    e("v_mov_b32 v%d, %d" % (T0, L_FL))
    e("v_mov_b32 v%d, 0" % T1)
    e("v_mov_b32 v%d, 0" % T2)
    e("ds_write_b64 v%d, v[%d:%d]" % (T0, T1, T2))
    e("ds_write_b64 v%d, v[%d:%d] offset:8" % (T0, T1, T2))
    e("s_waitcnt lgkmcnt(0)")
    e("s_barrier")

    if not opt.get("nodep", 0): e("s_waitcnt vmcnt(%d)" % NK0)
    stamp(2)
    def vecmat_step(acc, d, xl, xh, first, n=3):
        for k in range(n):
            c0 = "0" if first else "v%d" % (acc+2*k)
            c1 = "0" if first else "v%d" % (acc+2*k+1)
            e("v_dot2_f32_bf16 v%d, v%d, v%d, %s" % (acc+2*k, d+k, xl, c0))
            e("v_dot2_f32_bf16 v%d, v%d, v%d, %s" % (acc+2*k+1, d+k, xh, c1))
    for i in range(5):
        e("v_lshlrev_b32 v%d, 16, v%d" % (vP0+i, vXq+i))
    for i in range(3):
        e("v_lshlrev_b32 v%d, 16, v%d" % (vP0+5+i, vXf+i))
    for i in range(5):
        vecmat_step(vAcc, vWQd+4*i, vXq+i, vP0+i, i == 0)
    for i in range(3):
        if i == 2: e("s_mov_b32 exec_hi, 0")
        vecmat_step(vAccF, vFd+4*i, vXf+i, vP0+5+i, i == 0)
    e("s_mov_b64 exec, -1")
    e("s_lshl_b32 s%d, s%d, 1" % (sA, sW))
    e("v_add_u32 v%d, s%d, v%d" % (T0, sA, vHalf))
    e("v_mul_u32_u24 v%d, 1536, v%d" % (T0, T0))
    e("v_mul_u32_u24 v%d, 24, v%d" % (T1, vC))
    e("v_add_u32 v%d, v%d, v%d" % (T0, T0, T1))
    e("s_nop 1")
    for k in range(3):
        e("ds_write_b64 v%d, v[%d:%d] offset:%d" % (T0, vAcc+2*k, vAcc+2*k+1, L_QP + 8*k))
    for k in range(3):
        e("ds_write_b64 v%d, v[%d:%d] offset:%d" % (T0, vAccF+2*k, vAccF+2*k+1, L_QP + 768 + 8*k))
    e("s_cmp_lg_u32 s%d, 5" % sW)
    e("s_cbranch_scc1 L_nog2")
    t0, t1, t2, t3 = vTmp, vTmp+1, vTmp+2, vTmp+3
    e("v_mov_b32 v%d, 0" % t3)
    for k in range(5):
        e("v_lshlrev_b32 v%d, 16, v%d" % (t0, vGx+k))
        e("v_lshlrev_b32 v%d, 16, v%d" % (t1, vGw+k))
        e("v_mul_f32 v%d, v%d, v%d" % (t0, t0, t1))
        e("v_and_b32 v%d, 0xffff0000, v%d" % (t1, vGx+k))
        e("v_and_b32 v%d, 0xffff0000, v%d" % (t2, vGw+k))
        e("v_mul_f32 v%d, v%d, v%d" % (t1, t1, t2))
        e("v_cvt_pk_bf16_f32 v%d, v%d, v%d" % (t0, t0, t1))
        e("v_and_b32 v%d, 0xffff0000, v%d" % (t1, t0))
        e("v_lshlrev_b32 v%d, 16, v%d" % (t0, t0))
        e("v_add_f32 v%d, v%d, v%d" % (t3, t3, t0))
        e("v_add_f32 v%d, v%d, v%d" % (t3, t3, t1))
    def wave_reduce(op, v, t):
        e("s_nop 1")
        e("%s_dpp v%d, v%d, v%d quad_perm:[1,0,3,2] row_mask:0xf bank_mask:0xf" % (op, v, v, v))
        e("s_nop 1")
        e("%s_dpp v%d, v%d, v%d quad_perm:[2,3,0,1] row_mask:0xf bank_mask:0xf" % (op, v, v, v))
        e("s_nop 1")
        e("%s_dpp v%d, v%d, v%d row_half_mirror row_mask:0xf bank_mask:0xf" % (op, v, v, v))
        e("s_nop 1")
        e("%s_dpp v%d, v%d, v%d row_mirror row_mask:0xf bank_mask:0xf" % (op, v, v, v))
        e("v_mov_b32 v%d, v%d" % (t, v))
        e("s_nop 1")
        e("v_permlane16_swap_b32 v%d, v%d" % (v, t))
        e("s_nop 1")
        e("%s v%d, v%d, v%d" % (op, v, v, t))
        e("v_mov_b32 v%d, v%d" % (t, v))
        e("s_nop 1")
        e("v_permlane32_swap_b32 v%d, v%d" % (v, t))
        e("s_nop 1")
        e("%s v%d, v%d, v%d" % (op, v, v, t))
    wave_reduce("v_add_f32", t3, t0)
    def rne(v):
        e("v_cvt_pk_bf16_f32 v%d, v%d, v%d" % (v, v, v))
        e("v_and_b32 v%d, 0xffff0000, v%d" % (v, v))
    rne(t3)
    e("v_mul_f32 v%d, s%d, v%d" % (t3, sLog2e, t3))
    e("v_sub_f32 v%d, 0, v%d" % (t3, t3))
    e("v_exp_f32 v%d, v%d" % (t3, t3))
    e("s_nop 0")
    e("v_add_f32 v%d, 1.0, v%d" % (t3, t3))
    e("v_rcp_f32 v%d, v%d" % (t3, t3))
    e("s_nop 0")
    rne(t3)
    e("v_sub_f32 v%d, 1.0, v%d" % (t2, t3))
    rne(t2)
    e("v_mov_b32 v%d, v%d" % (t0, t3))
    e("v_mov_b32 v%d, v%d" % (t1, t2))
    e("v_mov_b32 v%d, %d" % (t3, L_GB))
    e("ds_write_b64 v%d, v[%d:%d]" % (t3, t0, t1))
    g.lab("L_nog2")
    e("s_waitcnt lgkmcnt(0)")
    e("v_mov_b32 v%d, %d" % (T0, L_CN))
    e("v_mov_b32 v%d, 1" % T1)
    e("s_mov_b64 exec, 1")
    e("ds_add_u32 v%d, v%d" % (T0, T1))
    e("s_mov_b64 exec, -1")
    e("s_add_u32 s%d, s%d, 1" % (sT, sT))
    e("s_sub_u32 s%d, s%d, 2" % (sB, sW))
    e("s_cmp_ge_u32 s%d, 3" % sB)
    e("s_cbranch_scc1 L_krest")
    e("s_setprio 3")
    e("s_mov_b32 s%d, 0" % sCnt)
    g.lab("L_await")
    e("ds_read_b32 v%d, v%d" % (T1, T0))
    e("s_waitcnt lgkmcnt(0)")
    e("v_readfirstlane_b32 s%d, v%d" % (sB, T1))
    e("s_cmp_eq_u32 s%d, 8" % sB)
    e("s_cbranch_scc1 L_aready")
    e("s_add_u32 s%d, s%d, 1" % (sCnt, sCnt))
    e("s_cmp_gt_u32 s%d, 4000000" % sCnt)
    e("s_cbranch_scc1 L_aready")
    e("s_branch L_await")
    g.lab("L_aready")
    e("v_subrev_u32 v%d, 128, v%d" % (T2, vTid))
    e("v_lshlrev_b32 v%d, 3, v%d" % (T0, T2))
    for k in range(16):
        e("ds_read_b64 v[%d:%d], v%d offset:%d" % (vTmp+2*k, vTmp+2*k+1, T0, L_QP + 1536*k))
    for k in range(1, 16):
        e("s_waitcnt lgkmcnt(%d)" % (15-k))
        e("v_add_f32 v%d, v%d, v%d" % (vTmp, vTmp, vTmp+2*k))
        e("v_add_f32 v%d, v%d, v%d" % (vTmp+1, vTmp+1, vTmp+2*k+1))
    e("v_mov_b32 v%d, v%d" % (vTmp+2, vTmp+1))
    e("v_mov_b32 v%d, s%d" % (vTmp+1, sT))
    e("v_mov_b32 v%d, s%d" % (vTmp+3, sT))
    e("s_mul_i32 s%d, s%d, 3072" % (sA, sJ))
    e("s_add_u32 s%d, s%d, %d" % (sA, sA, WS_Q))
    e("v_lshlrev_b32 v%d, 4, v%d" % (T0, T2))
    e("buffer_store_dwordx4 v[%d:%d], v%d, %s, s%d offen sc1" % (vTmp, vTmp+3, T0, srd(sWS), sA))
    e("s_setprio 0")
    stamp(4)
    g.lab("L_krest")
    if opt.get("prio", 1):
        e("s_cmp_ge_u32 s%d, 2" % sW)
        e("s_cbranch_scc1 L_noprio")
        e("s_setprio 2")
        g.lab("L_noprio")
    for i in range(NK0, 24):
        stream_load(i, KS(i), sK, sKoff)
    NV1 = opt.get("nv1", 16)
    for i in range(NV1):
        stream_load(i, VS(i), sV, sVoff)
    e("s_cmp_ge_u32 s%d, 2" % sW)
    e("s_cbranch_scc1 L_nocomm")
    PA = vTmp
    PF = 12
    vB_, vF_ = 9, 10
    e("s_mul_i32 s%d, s%d, 3072" % (sA, sH))
    e("s_add_u32 s%d, s%d, %d" % (sA, sA, WS_Q))
    e("s_mov_b32 s%d, 0" % sCnt)
    e("s_cmp_eq_u32 s%d, 1" % sW)
    e("s_cbranch_scc1 L_commB")
    e("v_bfe_u32 v%d, v%d, 4, 1" % (vF_, vLane))
    e("v_mul_u32_u24 v%d, %d, v%d" % (vF_, 8*16*3072, vF_))
    e("v_and_b32 v%d, 15, v%d" % (T0, vLane))
    e("v_mul_u32_u24 v%d, 3072, v%d" % (T0, T0))
    e("v_add_u32 v%d, v%d, v%d" % (vF_, vF_, T0))
    e("v_mul_u32_u24 v%d, 48, v%d" % (T0, vHalf))
    e("v_add_u32 v%d, v%d, v%d" % (vF_, vF_, T0))
    e("s_lshl_b32 s%d, s%d, 2" % (sB, sH))
    e("s_lshr_b32 s%d, s%d, 1" % (sC, sS))
    e("s_add_u32 s%d, s%d, s%d" % (sB, sB, sC))
    e("s_lshr_b32 s%d, s%d, 4" % (sC, sB))
    e("s_mul_i32 s%d, s%d, %d" % (sC, sC, 16*3072))
    e("s_and_b32 s%d, s%d, 15" % (sB, sB))
    e("s_mul_i32 s%d, s%d, 96" % (sB, sB))
    e("s_add_u32 s%d, s%d, s%d" % (sB, sB, sC))
    e("s_add_u32 s%d, s%d, %d" % (sB, sB, WS_Q + 1536))
    g.lab("L_poll0")
    e("s_mov_b32 s%d, s%d" % (sC, sA))
    for n in range(8):
        e("buffer_load_dwordx4 v[%d:%d], v%d, %s, s%d offen sc1" % (PA+4*n, PA+4*n+3, vOff16, srd(sWS), sC))
        if n < 7: e("s_add_u32 s%d, s%d, %d" % (sC, sC, 32*3072))
    for n in range(3):
        e("buffer_load_dwordx4 v[%d:%d], v%d, %s, s%d offen offset:%d sc1" % (PF+4*n, PF+4*n+3, vF_, srd(sWS), sB, 16*n))
    e("s_waitcnt vmcnt(0)")
    tagcheck([PA+4*n for n in range(8)] + [PF+4*n for n in range(3)], T0, T1)
    pollend("L_poll0", T0)
    for n in range(1, 8):
        e("v_add_f32 v%d, v%d, v%d" % (PA, PA, PA+4*n))
        e("v_add_f32 v%d, v%d, v%d" % (PA+2, PA+2, PA+4*n+2))
    e("v_cvt_pk_bf16_f32 v%d, v%d, v%d" % (PA, PA, PA+2))
    e("v_lshlrev_b32 v%d, 2, v%d" % (T0, vLane))
    e("ds_write_b32 v%d, v%d offset:%d" % (T0, PA, L_QB))
    vals = [PF+4*n+o for n in range(3) for o in (0, 2)]
    for mode in ("quad_perm:[1,0,3,2]", "quad_perm:[2,3,0,1]", "row_half_mirror", "row_mirror"):
        e("s_nop 1")
        for v in vals:
            e("v_add_f32_dpp v%d, v%d, v%d %s row_mask:0xf bank_mask:0xf" % (v, v, v, mode))
    ups = [PF+4*n+o for n in range(3) for o in (1, 3)]
    for v, u in zip(vals, ups):
        e("v_mov_b32 v%d, v%d" % (u, v))
    e("s_nop 1")
    for v, u in zip(vals, ups):
        e("v_permlane16_swap_b32 v%d, v%d" % (v, u))
    e("s_nop 1")
    for v, u in zip(vals, ups):
        rne(v); rne(u)
        e("v_max_f32 v%d, 0, v%d" % (v, v))
        e("v_mul_f32 v%d, v%d, v%d" % (v, v, u))
        rne(v)
    e("v_mul_u32_u24 v%d, 24, v%d" % (T0, vHalf))
    for k, v in enumerate(vals):
        e("ds_write_b32 v%d, v%d offset:%d" % (T0, v, L_HB + 4*k))
    e("v_mov_b32 v%d, 0" % (T1))
    e("v_mov_b32 v%d, %d" % (T0, L_HB))
    for k in range(4):
        e("ds_write_b32 v%d, v%d offset:%d" % (T0, T1, 48 + 4*k))
    e("s_branch L_commdone")
    g.lab("L_commB")
    e("v_lshlrev_b32 v%d, 4, v%d" % (vB_, vC))
    e("v_add_u32 v%d, 1024, v%d" % (vB_, vB_))
    g.lab("L_poll0b")
    e("s_mov_b32 s%d, s%d" % (sC, sA))
    for n in range(8):
        e("buffer_load_dwordx4 v[%d:%d], v%d, %s, s%d offen sc1" % (PA+4*n, PA+4*n+3, vB_, srd(sWS), sC))
        if n < 7: e("s_add_u32 s%d, s%d, %d" % (sC, sC, 32*3072))
    e("s_waitcnt vmcnt(0)")
    tagcheck([PA+4*n for n in range(8)], T0, T1)
    pollend("L_poll0b", T0)
    for n in range(1, 8):
        e("v_add_f32 v%d, v%d, v%d" % (PA, PA, PA+4*n))
        e("v_add_f32 v%d, v%d, v%d" % (PA+2, PA+2, PA+4*n+2))
    e("v_cvt_pk_bf16_f32 v%d, v%d, v%d" % (PA, PA, PA+2))
    e("v_lshlrev_b32 v%d, 2, v%d" % (T1, vC))
    e("ds_write_b32 v%d, v%d offset:%d" % (T1, PA, L_QB + 256))
    g.lab("L_commdone")
    stamp(4)
    e("s_waitcnt lgkmcnt(0)")
    e("v_mov_b32 v%d, %d" % (T0, L_FL))
    e("v_mov_b32 v%d, 1" % T1)
    e("s_mov_b64 exec, 1")
    e("ds_add_u32 v%d, v%d" % (T0, T1))
    e("s_mov_b64 exec, -1")
    g.lab("L_nocomm")
    vWO = 32
    vKG = 20
    vCH = 23
    for t in range(3):
        e("v_add_u32 v%d, %d, v%d" % (T0, 64*t, vLane))
        e("v_mul_u32_u24 v%d, 2731, v%d" % (vKG+t, T0))
        e("v_lshrrev_b32 v%d, 16, v%d" % (vKG+t, vKG+t))
        e("v_mul_u32_u24 v%d, 24, v%d" % (T1, vKG+t))
        e("v_sub_u32 v%d, v%d, v%d" % (vCH+t, T0, T1))
    vSA = 26
    e("s_mul_i32 s%d, s%d, %d" % (sA, sW, SSTR))
    e("s_add_u32 s%d, s%d, %d" % (sA, sA, L_S))
    for t in range(3):
        e("v_mul_u32_u24 v%d, 112, v%d" % (T0, vKG+t))
        e("v_lshl_add_u32 v%d, v%d, 2, v%d" % (T0, vCH+t, T0))
        e("v_add_u32 v%d, s%d, v%d" % (vSA+t, sA, T0))
    e("v_mov_b32 v%d, %d" % (T0, L_FL))
    e("s_mov_b32 s%d, 0" % sCnt)
    g.lab("L_qwait")
    e("ds_read_b32 v%d, v%d" % (T1, T0))
    e("s_waitcnt lgkmcnt(0)")
    e("v_readfirstlane_b32 s%d, v%d" % (sB, T1))
    e("s_cmp_eq_u32 s%d, 2" % sB)
    e("s_cbranch_scc1 L_qready")
    e("s_add_u32 s%d, s%d, 1" % (sCnt, sCnt))
    e("s_cmp_gt_u32 s%d, 4000000" % sCnt)
    e("s_cbranch_scc1 L_qready")
    e("s_sleep 1")
    e("s_branch L_qwait")
    g.lab("L_qready")
    stamp(3)
    vQ = 8
    for t in range(3):
        e("v_lshlrev_b32 v%d, 4, v%d" % (T0, vCH+t))
        e("ds_read_b128 v[%d:%d], v%d offset:%d" % (vQ+4*t, vQ+4*t+3, T0, L_QB))
    e("s_waitcnt lgkmcnt(0)")
    vS = 29
    for i in range(24):
        e("s_waitcnt vmcnt(%d)" % (23 - i + NV1))
        t = vS + (i % 3)
        k = KS(i); q = vQ + 4*(i % 3)
        e("v_dot2_f32_bf16 v%d, v%d, v%d, 0" % (t, k, q))
        e("v_dot2_f32_bf16 v%d, v%d, v%d, v%d" % (t, k+1, q+1, t))
        e("v_dot2_f32_bf16 v%d, v%d, v%d, v%d" % (t, k+2, q+2, t))
        e("v_dot2_f32_bf16 v%d, v%d, v%d, v%d" % (t, k+3, q+3, t))
        if i >= 1:
            ip = i-1
            e("ds_write_b32 v%d, v%d offset:%d" % (vSA + ip % 3, vS + (ip % 3), 896*(ip//3)))
    e("s_nop 2")
    e("ds_write_b32 v%d, v%d offset:%d" % (vSA + 2, vS + 2, 896*7))
    for i in range(NV1, 24):
        stream_load(i, VS(i), sV, sVoff)
    e("v_mov_b32 v%d, %d" % (T0, L_C2))
    e("v_mov_b32 v%d, 1" % T1)
    e("s_mov_b64 exec, 1")
    e("ds_add_u32 v%d, v%d" % (T0, T1))
    e("s_mov_b64 exec, -1")
    stamp(1)
    vR = 64
    e("v_mul_u32_u24 v%d, 112, v%d" % (T0, vLane))
    e("v_add_u32 v%d, s%d, v%d" % (T0, sA, T0))
    e("s_waitcnt lgkmcnt(0)")
    for k in range(6):
        e("ds_read_b128 v[%d:%d], v%d offset:%d" % (vR+4*k, vR+4*k+3, T0, 16*k))
    e("s_waitcnt lgkmcnt(0)")
    for k in range(12):
        e("v_add_f32 v%d, v%d, v%d" % (vR+k, vR+k, vR+k+12))
    for k in range(6):
        e("v_add_f32 v%d, v%d, v%d" % (vR+k, vR+k, vR+k+6))
    for k in range(3):
        e("v_add_f32 v%d, v%d, v%d" % (vR+k, vR+k, vR+k+3))
    e("v_add_f32 v%d, v%d, v%d" % (vR, vR, vR+1))
    e("v_add_f32 v%d, v%d, v%d" % (vR, vR, vR+2))
    sc, mx, pp, tt = 8, 9, 10, 11
    e("v_mov_b32 v%d, v%d" % (sc, vR))
    rne(sc)
    e("v_mul_f32 v%d, 0x3d93cd3a, v%d" % (sc, sc))
    rne(sc)
    e("v_mov_b32 v%d, v%d" % (mx, sc))
    wave_reduce("v_max_f32", mx, tt)
    e("v_sub_f32 v%d, v%d, v%d" % (pp, sc, mx))
    e("v_mul_f32 v%d, s%d, v%d" % (pp, sLog2e, pp))
    e("v_exp_f32 v%d, v%d" % (pp, pp))
    e("s_nop 0")
    e("v_mov_b32 v%d, v%d" % (sc, pp))
    rne(sc)
    e("v_and_b32 v%d, 7, v%d" % (tt, vLane))
    e("v_lshlrev_b32 v%d, 5, v%d" % (tt, tt))
    e("v_lshrrev_b32 v%d, 3, v%d" % (T0, vLane))
    e("v_lshl_add_u32 v%d, v%d, 2, v%d" % (tt, T0, tt))
    e("s_lshl_b32 s%d, s%d, 8" % (sB, sW))
    e("v_add_u32 v%d, s%d, v%d" % (tt, sB, tt))
    e("ds_write_b32 v%d, v%d offset:%d" % (tt, sc, L_PT))
    wave_reduce("v_add_f32", pp, tt)
    e("s_lshl_b32 s%d, s%d, 3" % (sC, sW))
    e("v_mov_b32 v%d, s%d" % (tt, sC))
    e("v_mov_b32 v%d, v%d" % (sc, mx))
    e("v_mov_b32 v%d, v%d" % (mx, pp))
    e("ds_write_b64 v%d, v[%d:%d] offset:%d" % (tt, sc, mx, L_ST))
    vP = 64
    e("s_waitcnt lgkmcnt(0)")
    for t in range(3):
        e("v_lshlrev_b32 v%d, 5, v%d" % (T0, vKG+t))
        e("v_add_u32 v%d, s%d, v%d" % (T0, sB, T0))
        e("ds_read_b128 v[%d:%d], v%d offset:%d" % (vP+8*t, vP+8*t+3, T0, L_PT))
        e("ds_read_b128 v[%d:%d], v%d offset:%d" % (vP+8*t+4, vP+8*t+7, T0, L_PT + 16))
    e("s_waitcnt lgkmcnt(0)")
    vAc = 96
    vPl = 120
    def pv(extra):
        for i in range(24):
            t = i % 3; ii = i // 3
            e("v_lshrrev_b32 v%d, 16, v%d" % (vPl + (i % 4), vP+8*t+ii))
            e("s_waitcnt vmcnt(%d)" % (23 - i + extra))
            vecmat_step(vAc + 8*t, VS(i), vPl + (i % 4), vP+8*t+ii, ii == 0, n=4)
    pv(0)
    e("v_lshlrev_b32 v%d, 5, v%d" % (T0, vLane))
    e("v_add_u32 v%d, s%d, v%d" % (T0, sA, T0))
    e("s_nop 0")
    for t in range(3):
        e("ds_write_b128 v%d, v[%d:%d] offset:%d" % (T0, vAc+8*t, vAc+8*t+3, 2048*t))
        e("ds_write_b128 v%d, v[%d:%d] offset:%d" % (T0, vAc+8*t+4, vAc+8*t+7, 2048*t + 16))
    vWO = 32
    e("s_cmp_ge_u32 s%d, 5" % sW)
    e("s_cbranch_scc1 L_nowo")
    e("s_mov_b32 s%d, s%d" % (sCB, sW))
    e("s_cmp_eq_u32 s%d, 4" % sW)
    e("s_cbranch_scc1 L_wogo")
    e("v_mov_b32 v%d, %d" % (T2, L_C2))
    e("s_mov_b32 s%d, 0" % sCnt)
    g.lab("L_c2wait")
    e("ds_read_b32 v%d, v%d" % (T1, T2))
    e("s_waitcnt lgkmcnt(0)")
    e("v_readfirstlane_b32 s%d, v%d" % (sB, T1))
    e("s_cmp_eq_u32 s%d, 8" % sB)
    e("s_cbranch_scc1 L_wogo")
    e("s_add_u32 s%d, s%d, 1" % (sCnt, sCnt))
    e("s_cmp_gt_u32 s%d, 4000000" % sCnt)
    e("s_cbranch_scc1 L_wogo")
    e("s_sleep 1")
    e("s_branch L_c2wait")
    g.lab("L_wogo")
    e("v_lshrrev_b32 v%d, 3, v%d" % (T1, vLane))
    e("v_mul_u32_u24 v%d, 1280, v%d" % (T1, T1))
    e("v_and_b32 v%d, 7, v%d" % (T2, vLane))
    e("v_lshl_add_u32 v%d, v%d, 4, v%d" % (T1, T2, T1))
    e("s_and_b32 s%d, s%d, 1" % (sC, sS))
    e("s_mul_i32 s%d, s%d, 640" % (sC, sC))
    e("s_lshl_b32 s%d, s%d, 7" % (sB, sCB))
    e("s_add_u32 s%d, s%d, s%d" % (sC, sC, sB))
    e("s_lshr_b32 s%d, s%d, 1" % (sD, sS))
    e("s_mul_i32 s%d, s%d, 192" % (sB, sH))
    e("s_mul_i32 s88, s%d, 48" % sD)
    e("s_add_u32 s%d, s%d, s88" % (sB, sB))
    e("s_mul_i32 s%d, s%d, 1280" % (sB, sB))
    e("s_add_u32 s%d, s%d, s%d" % (sB, sB, sC))
    for i in range(6):
        e("buffer_load_dwordx4 v[%d:%d], v%d, %s, s%d offen%s" % (vWO+4*i, vWO+4*i+3, T1, srd(sWO), sB, NT))
        if i < 5: e("s_add_u32 s%d, s%d, 10240" % (sB, sB))
    e("s_lshl_b32 s%d, s%d, 2" % (sB, sH))
    e("s_add_u32 s%d, s%d, s%d" % (sB, sB, sD))
    e("s_mul_i32 s%d, s%d, 15360" % (sB, sB))
    e("s_add_u32 s%d, s%d, s%d" % (sB, sB, sC))
    e("buffer_load_dwordx4 v[%d:%d], v%d, %s, s%d offen%s" % (vWO+24, vWO+27, T1, srd(sWD), sB, NT))
    e("s_add_u32 s%d, s%d, 10240" % (sB, sB))
    e("s_mov_b32 exec_hi, 0")
    e("buffer_load_dwordx4 v[%d:%d], v%d, %s, s%d offen%s" % (vWO+28, vWO+31, T1, srd(sWD), sB, NT))
    e("s_mov_b64 exec, -1")
    g.lab("L_nowo")
    e("s_waitcnt lgkmcnt(0)")
    stamp(5)
    e("s_barrier")
    stamp(6)
    e("s_cmp_ge_u32 s%d, 6" % sW)
    e("s_cbranch_scc1 L_nopub2")
    vO = 64
    vG_ = 8
    e("v_and_b32 v%d, 7, v%d" % (vG_, vLane))
    e("v_lshrrev_b32 v%d, 3, v%d" % (T1, vTid))
    e("v_mul_u32_u24 v%d, %d, v%d" % (T0, SSTR, vG_))
    e("v_lshl_add_u32 v%d, v%d, 4, v%d" % (T0, T1, T0))
    e("v_add_u32 v%d, %d, v%d" % (T0, L_S, T0))
    e("v_lshlrev_b32 v%d, 3, v%d" % (T2, vG_))
    e("ds_read_b64 v[10:11], v%d offset:%d" % (T2, L_ST))
    for j in range(8):
        e("ds_read_b128 v[%d:%d], v%d offset:%d" % (vO+4*j, vO+4*j+3, T0, 768*j))
    e("s_waitcnt lgkmcnt(8)")
    M = 12
    e("v_mov_b32 v%d, v10" % M)
    def red8(op, regs):
        for mode in ("quad_perm:[1,0,3,2]", "quad_perm:[2,3,0,1]", "row_half_mirror"):
            e("s_nop 1")
            for v in regs:
                e("%s_dpp v%d, v%d, v%d %s row_mask:0xf bank_mask:0xf" % (op, v, v, v, mode))
    red8("v_max_f32", [M])
    e("v_sub_f32 v10, v10, v%d" % M)
    e("v_mul_f32 v10, s%d, v10" % sLog2e)
    e("v_exp_f32 v10, v10")
    e("s_waitcnt lgkmcnt(0)")
    for st in (4, 2, 1):
        for j in range(st):
            for c in range(4):
                e("v_add_f32 v%d, v%d, v%d" % (vO+4*j+c, vO+4*j+c, vO+4*(j+st)+c))
    for c in range(4):
        e("v_mul_f32 v%d, v%d, v10" % (vO+c, vO+c))
    e("v_mul_f32 v11, v11, v10")
    red8("v_add_f32", [vO, vO+1, vO+2, vO+3, 11])
    a0 = 16
    e("v_cmp_eq_u32 vcc, 1, v%d" % vG_)
    e("s_nop 1")
    e("v_cndmask_b32 v%d, v%d, v%d, vcc" % (a0, vO, vO+2))
    e("v_cndmask_b32 v%d, v%d, v%d, vcc" % (a0+2, vO+1, vO+3))
    e("v_lshl_add_u32 v%d, v%d, 1, v%d" % (T0, T1, vG_))
    e("v_cmp_eq_u32 vcc, 2, v%d" % vTid)
    e("s_nop 1")
    e("v_cndmask_b32 v%d, v%d, v%d, vcc" % (a0, a0, M))
    e("v_cndmask_b32 v%d, v%d, v11, vcc" % (a0+2, a0+2))
    e("v_mov_b32 v%d, 96" % T1)
    e("v_cndmask_b32 v%d, v%d, v%d, vcc" % (T0, T0, T1))
    e("v_cmp_gt_u32 s[88:89], 2, v%d" % vG_)
    e("s_or_b64 vcc, vcc, s[88:89]")
    e("v_mov_b32 v%d, s%d" % (a0+1, sT))
    e("v_mov_b32 v%d, s%d" % (a0+3, sT))
    e("s_lshl_b32 s%d, s%d, 11" % (sA, sJ))
    e("s_add_u32 s%d, s%d, %d" % (sA, sA, WS_O))
    e("v_lshlrev_b32 v%d, 4, v%d" % (T0, T0))
    e("s_and_saveexec_b64 s[88:89], vcc")
    e("buffer_store_dwordx4 v[%d:%d], v%d, %s, s%d offen sc1" % (a0, a0+3, T0, srd(sWS), sA))
    e("s_mov_b64 exec, s[88:89]")
    if opt.get("det", 0): stamp(2)
    g.lab("L_nopub2")
    NPOLL = 1
    e("s_cmp_ge_u32 s%d, 5" % sW)
    e("s_cbranch_scc1 L_poller")
    vWt = 88
    aA, aB = 96, 104
    e("v_lshrrev_b32 v%d, 3, v%d" % (T0, vLane))
    e("v_lshlrev_b32 v%d, 2, v%d" % (T0, T0))
    e("v_mov_b32 v%d, %d" % (T2, L_GB))
    for i in range(2):
        e("ds_read_b32 v%d, v%d offset:%d" % (vWt+6+i, T0, L_HB + 32*i))
    e("ds_read_b64 v[12:13], v%d" % T2)
    e("s_mul_i32 s%d, s%d, 2560" % (sA, sJ))
    e("s_lshl_b32 s%d, s%d, 9" % (sB, sCB))
    e("s_add_u32 s%d, s%d, s%d" % (sA, sA, sB))
    e("s_add_u32 s%d, s%d, %d" % (sA, sA, WS_R))
    e("v_and_b32 v14, 7, v%d" % vLane)
    e("v_lshlrev_b32 v14, 6, v14")
    e("v_lshrrev_b32 v15, 4, v%d" % vLane)
    e("v_lshl_add_u32 v14, v15, 4, v14")
    e("s_waitcnt vmcnt(0) lgkmcnt(0)")
    for i in (6, 7):
        if i == 7: e("s_mov_b32 exec_hi, 0")
        first = i == 6
        e("v_lshrrev_b32 v%d, 16, v%d" % (T1, vWt+i))
        for k in range(4):
            c0 = "0" if first else "v%d" % (aB+2*k)
            c1 = "0" if first else "v%d" % (aB+2*k+1)
            e("v_dot2_f32_bf16 v%d, v%d, v%d, %s" % (aB+2*k, vWO+4*i+k, T1, c0))
            e("v_dot2_f32_bf16 v%d, v%d, v%d, %s" % (aB+2*k+1, vWO+4*i+k, vWt+i, c1))
    e("s_mov_b64 exec, -1")
    e("s_nop 2")
    for k in range(8):
        e("v_mul_f32 v%d, v%d, v13" % (aB+k, aB+k))
    e("v_mov_b32 v%d, s%d" % (113, sT))
    e("v_mov_b32 v%d, s%d" % (115, sT))
    e("v_mov_b32 v%d, %d" % (T2, L_F2))
    e("s_mov_b32 s%d, 0" % sCnt)
    g.lab("L_wwait")
    e("ds_read_b32 v%d, v%d" % (T1, T2))
    e("s_waitcnt lgkmcnt(0)")
    e("v_readfirstlane_b32 s%d, v%d" % (sB, T1))
    e("s_cmp_lg_u32 s%d, 0" % sB)
    e("s_cbranch_scc1 L_wready")
    e("s_add_u32 s%d, s%d, 1" % (sCnt, sCnt))
    e("s_cmp_gt_u32 s%d, 4000000" % sCnt)
    e("s_cbranch_scc1 L_wready")
    e("s_branch L_wwait")
    g.lab("L_wready")
    stamp(7)
    for i in range(6):
        e("ds_read_b32 v%d, v%d offset:%d" % (vWt+i, T0, L_WB + 32*i))
    for i in range(6):
        e("s_waitcnt lgkmcnt(%d)" % (5-i))
        first = i == 0
        e("v_lshrrev_b32 v%d, 16, v%d" % (T1, vWt+i))
        for k in range(4):
            c0 = "0" if first else "v%d" % (aA+2*k)
            c1 = "0" if first else "v%d" % (aA+2*k+1)
            e("v_dot2_f32_bf16 v%d, v%d, v%d, %s" % (aA+2*k, vWO+4*i+k, T1, c0))
            e("v_dot2_f32_bf16 v%d, v%d, v%d, %s" % (aA+2*k+1, vWO+4*i+k, vWt+i, c1))
    e("s_nop 2")
    for k in range(8):
        e("v_fma_f32 v%d, v%d, v12, v%d" % (aA+k, aA+k, aB+k))
    e("s_nop 1")
    for k in range(4):
        e("v_permlane32_swap_b32 v%d, v%d" % (aA+k, aA+k+4))
    e("s_nop 1")
    for k in range(4):
        e("v_add_f32 v%d, v%d, v%d" % (aA+k, aA+k, aA+k+4))
    e("s_nop 1")
    for k in range(2):
        e("v_permlane16_swap_b32 v%d, v%d" % (aA+k, aA+k+2))
    e("s_nop 1")
    e("v_add_f32 v112, v%d, v%d" % (aA, aA+2))
    e("v_add_f32 v114, v%d, v%d" % (aA+1, aA+3))
    e("s_nop 1")
    e("v_add_f32_dpp v112, v112, v112 row_ror:8 row_mask:0xf bank_mask:0xf")
    e("v_add_f32_dpp v114, v114, v114 row_ror:8 row_mask:0xf bank_mask:0xf")
    e("s_mov_b32 exec_lo, 0x00ff00ff")
    e("s_mov_b32 exec_hi, 0x00ff00ff")
    e("buffer_store_dwordx4 v[112:115], v14, %s, s%d offen sc1" % (srd(sWS), sA))
    stamp(8)
    e("s_branch L_fin")
    g.lab("L_poller")
    e("s_cmp_lg_u32 s%d, 7" % sW)
    e("s_cbranch_scc1 L_fin")
    if NPOLL > 1:
        st = g.new("stg")
        e("s_cmp_eq_u32 s%d, 0" % sW)
        e("s_cbranch_scc1 %s" % st)
        e("s_sleep %d" % opt.get("stagn", 6))
        e("s_cmp_eq_u32 s%d, 1" % sW)
        e("s_cbranch_scc1 %s" % st)
        e("s_sleep %d" % opt.get("stagn", 6))
        g.lab(st)
    RING = opt.get("ring", 3)
    G1, G2, G4, G3 = 64, 68, 72, 76
    a1, a3 = 8, 10
    e("v_and_b32 v%d, 7, v%d" % (a3, vLane))
    e("v_lshlrev_b32 v%d, 16, v%d" % (a3, a3))
    e("v_lshrrev_b32 v%d, 3, v%d" % (T1, vLane))
    e("v_lshl_add_u32 v%d, v%d, 4, v%d" % (a1, T1, a3))
    e("s_lshl_b32 s%d, s%d, 11" % (sA, sH))
    e("s_add_u32 s%d, s%d, %d" % (sA, sA, WS_O))
    e("s_lshr_b32 s%d, s%d, 1" % (sB, sS))
    e("s_mul_i32 s%d, s%d, 384" % (sB, sB))
    e("s_add_u32 s%d, s%d, s%d" % (sB, sB, sA))
    e("s_mov_b32 s%d, 0" % sCnt)
    def RS(r): return 160 + 16*r
    def issue_set(r):
        b = RS(r)
        e("buffer_load_dwordx4 v[%d:%d], v%d, %s, s%d offen sc1" % (b, b+3, a1, srd(sWS), sB))
        e("buffer_load_dwordx4 v[%d:%d], v%d, %s, s%d offen offset:128 sc1" % (b+4, b+7, a1, srd(sWS), sB))
        e("buffer_load_dwordx4 v[%d:%d], v%d, %s, s%d offen offset:256 sc1" % (b+8, b+11, a1, srd(sWS), sB))
        e("buffer_load_dwordx4 v[%d:%d], v%d, %s, s%d offen offset:1536 sc1" % (b+12, b+15, a3, srd(sWS), sA))
    for r in range(RING):
        issue_set(r)
        if r < RING-1: e("s_sleep %d" % opt.get("rsl", 4))
    g.lab("L_poll1")
    for r in range(RING):
        b = RS(r)
        e("s_waitcnt vmcnt(%d)" % (4*(RING-1)))
        tagcheck([b, b+4, b+8, b+12], T1, T2)
        e("v_cmp_ne_u32 vcc, 0, v%d" % T1)
        e("s_nop 1")
        e("s_cmp_eq_u64 vcc, 0")
        e("s_cbranch_scc1 L_p1ok%d" % r)
        issue_set(r)
    e("s_add_u32 s%d, s%d, 1" % (sCnt, sCnt))
    e("s_cmp_lt_u32 s%d, 100000" % sCnt)
    e("s_cbranch_scc1 L_poll1")
    for r in range(RING):
        g.lab("L_p1ok%d" % r)
        b = RS(r)
        for (d, o) in ((G1, 0), (G1+2, 2), (G2, 4), (G2+2, 6), (G4, 8), (G4+2, 10), (G3, 12), (G3+2, 14)):
            e("v_mov_b32 v%d, v%d" % (d, b+o))
        if r < RING-1: e("s_branch L_p1done")
    g.lab("L_p1done")
    if opt.get("det", 0):
        stamp(2)
        e("s_mov_b32 s94, s%d" % sCnt)
    def red8(op, regs):
        for mode in ("quad_perm:[1,0,3,2]", "quad_perm:[2,3,0,1]", "row_half_mirror"):
            e("s_nop 1")
            for v in regs:
                e("%s_dpp v%d, v%d, v%d %s row_mask:0xf bank_mask:0xf" % (op, v, v, v, mode))
    Mx = 12
    e("v_mov_b32 v%d, v%d" % (Mx, G3))
    red8("v_max_f32", [Mx])
    e("v_sub_f32 v%d, v%d, v%d" % (Mx, G3, Mx))
    e("v_mul_f32 v%d, s%d, v%d" % (Mx, sLog2e, Mx))
    e("v_exp_f32 v%d, v%d" % (Mx, Mx))
    e("s_nop 0")
    rr = [G3+2, G1, G1+2, G2, G2+2, G4, G4+2]
    for v in rr:
        e("v_mul_f32 v%d, v%d, v%d" % (v, v, Mx))
    red8("v_add_f32", rr)
    e("v_rcp_f32 v%d, v%d" % (Mx, G3+2))
    e("v_lshrrev_b32 v%d, 3, v%d" % (T0, vLane))
    e("v_lshlrev_b32 v%d, 3, v%d" % (T0, T0))
    for v in rr[1:]:
        e("v_mul_f32 v%d, v%d, v%d" % (v, v, Mx))
    for Gx in (G1, G2, G4):
        e("v_cvt_pk_bf16_f32 v%d, v%d, v%d" % (Gx+2, Gx, Gx+2))
    for Gx in (G1, G2, G4):
        e("v_lshlrev_b32 v%d, 16, v%d" % (Gx, Gx+2))
        e("v_and_b32 v%d, 0xffff0000, v%d" % (Gx+1, Gx+2))
    e("s_mov_b32 exec_lo, 0x01010101")
    e("s_mov_b32 exec_hi, 0x01010101")
    for n, Gx in enumerate((G1, G2, G4)):
        e("ds_write_b64 v%d, v[%d:%d] offset:%d" % (T0, Gx, Gx+1, L_WB + 64*n))
    e("s_waitcnt lgkmcnt(0)")
    e("v_mov_b32 v%d, %d" % (T0, L_F2))
    e("v_mov_b32 v%d, 1" % T1)
    e("ds_write_b32 v%d, v%d" % (T0, T1))
    e("s_mov_b64 exec, -1")
    stamp(7)
    e("s_cmp_ge_u32 s%d, 160" % sJ)
    e("s_cbranch_scc1 L_fin")
    FR = 128
    e("v_bfe_u32 v%d, v%d, 1, 2" % (T0, vLane))
    e("v_lshlrev_b32 v%d, 3, v%d" % (T0, T0))
    e("v_bfe_u32 v%d, v%d, 3, 1" % (T1, vLane))
    e("v_add_u32 v%d, v%d, v%d" % (T0, T0, T1))
    e("v_lshrrev_b32 v%d, 4, v%d" % (T1, vLane))
    e("v_lshl_add_u32 v%d, v%d, 6, v%d" % (T0, T1, T0))
    e("v_mul_u32_u24 v%d, 2560, v%d" % (T0, T0))
    e("v_and_b32 v%d, 1, v%d" % (T1, vLane))
    e("v_lshl_add_u32 v%d, v%d, 4, v%d" % (T0, T1, T0))
    e("s_cmp_ge_u32 s%d, 80" % sJ)
    e("s_cselect_b32 s%d, 1, 0" % sB)
    e("s_mul_i32 s%d, s%d, 80" % (sA, sB))
    e("s_sub_u32 s%d, s%d, s%d" % (sA, sJ, sA))
    e("s_lshl_b32 s%d, s%d, 5" % (sA, sA))
    e("s_mul_i32 s%d, s%d, %d" % (sB, sB, 32*2560))
    e("s_add_u32 s%d, s%d, s%d" % (sA, sA, sB))
    e("s_add_u32 s40, s%d, %d" % (sA, WS_R))
    for n in range(1, 4):
        e("s_add_u32 s%d, s%d, 5120" % (40+n, 40+n-1))
    e("s_mov_b32 s%d, 0" % sC)
    if opt.get("pre2", 0): e("s_sleep %d" % opt.get("pre2", 0))
    e("s_mov_b32 s%d, 0" % sCnt)
    g.lab("L_poll2")
    for n in range(4):
        sk = g.new("sk")
        e("s_bitcmp1_b32 s%d, %d" % (sC, n))
        e("s_cbranch_scc1 %s" % sk)
        e("buffer_load_dwordx4 v[%d:%d], v%d, %s, s%d offen sc1" % (FR+4*n, FR+4*n+3, T0, srd(sWS), 40+n))
        g.lab(sk)
    e("s_waitcnt vmcnt(0)")
    for n in range(4):
        e("v_xor_b32 v%d, s%d, v%d" % (T1, sT, FR+4*n+1))
        e("v_xor_b32 v%d, s%d, v%d" % (T2, sT, FR+4*n+3))
        e("v_or_b32 v%d, v%d, v%d" % (T1, T1, T2))
        e("v_cmp_ne_u32 vcc, 0, v%d" % T1)
        e("s_nop 1")
        e("s_cmp_eq_u64 vcc, 0")
        e("s_cselect_b32 s%d, %d, 0" % (sB, 1 << n))
        e("s_or_b32 s%d, s%d, s%d" % (sC, sC, sB))
    e("s_cmp_eq_u32 s%d, 0xf" % sC)
    e("s_cbranch_scc1 L_p2done")
    e("s_add_u32 s%d, s%d, 1" % (sCnt, sCnt))
    e("s_cmp_lt_u32 s%d, 200000" % sCnt)
    e("s_cbranch_scc0 L_p2done")
    if SLEEP: e("s_sleep %d" % SLEEP)
    e("s_branch L_poll2")
    g.lab("L_p2done")
    for n in range(1, 4):
        e("v_add_f32 v%d, v%d, v%d" % (FR, FR, FR+4*n))
        e("v_add_f32 v%d, v%d, v%d" % (FR+2, FR+2, FR+4*n+2))
    for mode in ("quad_perm:[2,3,0,1]", "row_ror:4", "row_ror:8"):
        e("s_nop 1")
        for v in (FR, FR+2):
            e("v_add_f32_dpp v%d, v%d, v%d %s row_mask:0xf bank_mask:0xf" % (v, v, v, mode))
    for swap in ("v_permlane16_swap_b32", "v_permlane32_swap_b32"):
        e("v_mov_b32 v%d, v%d" % (FR+1, FR))
        e("v_mov_b32 v%d, v%d" % (FR+3, FR+2))
        e("s_nop 1")
        e("%s v%d, v%d" % (swap, FR, FR+1))
        e("%s v%d, v%d" % (swap, FR+2, FR+3))
        e("s_nop 1")
        e("v_add_f32 v%d, v%d, v%d" % (FR, FR, FR+1))
        e("v_add_f32 v%d, v%d, v%d" % (FR+2, FR+2, FR+3))
    e("v_cvt_pk_bf16_f32 v%d, v%d, v%d" % (FR, FR, FR+2))
    e("v_lshlrev_b32 v%d, 2, v%d" % (T0, vLane))
    e("s_lshl_b32 s%d, s%d, 3" % (sA, sJ))
    e("s_mov_b64 exec, 3")
    e("buffer_store_dword v%d, v%d, %s, s%d offen" % (FR, T0, srd(sOUT), sA))
    e("s_cmp_lg_u32 s%d, 0" % sJ)
    e("s_cbranch_scc1 L_fin")
    e("s_mov_b64 exec, 1")
    e("v_mov_b32 v%d, s%d" % (T0, sT))
    e("v_mov_b32 v%d, 0" % (T1))
    e("buffer_store_dword v%d, v%d, %s, 0 offen" % (T0, T1, srd(sWS)))
    g.lab("L_fin")
    stamp(9)
    stamp_flush()
    g.lab("L_end")
    e("s_endpgm")
    out += g.L
    out += ['.section .rodata,"a"', ".p2align 6", ".amdhsa_kernel %s_kernel" % KN,
        "  .amdhsa_next_free_vgpr 256", "  .amdhsa_next_free_sgpr 102", "  .amdhsa_accum_offset 256",
        "  .amdhsa_group_segment_fixed_size 0", "  .amdhsa_kernarg_size 104", "  .amdhsa_user_sgpr_count 2",
        "  .amdhsa_user_sgpr_kernarg_segment_ptr 1", "  .amdhsa_system_sgpr_workgroup_id_x 1", ".end_amdhsa_kernel", ""]
    return "\n".join(out)

if __name__ == "__main__":
    opt = {}
    outp = sys.argv[1]
    for a in sys.argv[2:]:
        k, v = a.split("=")
        opt[k] = int(v)
    open(outp, "w").write(gen(opt))
```

```python
import sys

KN = "gated_mix__sliding_block_cached__glu_gated_reglu__decode"

class G:
    def __init__(self):
        self.L = []
        self.uid = 0
    def e(self, s):
        self.L.append("    " + s)
    def lab(self, s):
        self.L.append(s + ":")
    def new(self, p):
        self.uid += 1
        return "L_%s_%d" % (p, self.uid)

def gen(opt):
    g = G()
    e = g.e
    NT = " nt" if opt.get("nt", 1) else ""
    PROF = opt.get("prof", 0)
    NK0 = opt.get("nk0", 6)
    SLEEP = opt.get("sleep", 0)
    sK, sV, sWQ, sWO, sF, sWD, sX, sGW, sOUT, sWS = [32 + 4*i for i in range(10)]
    def srd(b): return "s[%d:%d]" % (b, b+3)
    sH, sS, sW, sT, sJ = 72, 73, 74, 75, 76
    sA, sB, sC, sD = 77, 78, 79, 80
    sCnt = 81
    sLog2e = 82
    sKoff, sVoff = 83, 84
    sCB = 85
    WS_Q = 4096
    WS_O = WS_Q + 256*3072
    WS_R = WS_O + 256*2048
    WS_P = WS_R + 256*5120
    WS_END = WS_P + 256*8*64
    L_QP = 0
    L_PT = 24576
    L_QB = L_PT + 2048
    L_HB = L_QB + 512
    L_GB = L_HB + 64
    L_ST = L_GB + 64
    L_WB = L_ST + 64
    L_FL = L_WB + 5*128
    L_CN = L_FL + 4
    L_F2 = L_FL + 8
    L_C2 = L_FL + 12
    L_S = 32768
    SSTR = 7200
    L_END = L_S + 8*SSTR
    LDS = (L_END + 255)//256*256
    vTid, vLane, vOff16, vHalf, vC = 0, 1, 2, 3, 4
    T0, T1, T2 = 5, 6, 7
    vAcc = 8
    vAccF = 14
    vP0 = 20
    vTmp = 32
    def KS(i): return 64 + 4*i
    def VS(i): return 160 + 4*i
    vWQd = 160
    vFd = 180
    vXq = 200
    vXf = 205
    vGx = 210
    vGw = 215
    PAR = opt.get("par", 0)

    def stamp(k):
        if not PROF: return
        if PROF == 2 and k not in (0, 9): return
        e("s_memrealtime s[100:101]")
        e("s_waitcnt lgkmcnt(0)")
        e("s_mov_b32 s%d, s100" % (90+k))
    def stamp_flush():
        if not PROF: return
        e("s_mov_b64 exec, 1")
        for k in range(10):
            e("v_mov_b32 v%d, s%d" % (64+k, 90+k))
        e("s_lshl_b32 s%d, s%d, 3" % (sA, sJ))
        e("s_add_u32 s%d, s%d, s%d" % (sA, sA, sW))
        e("s_lshl_b32 s%d, s%d, 6" % (sA, sA))
        e("s_add_u32 s%d, s%d, %d" % (sA, sA, WS_P))
        e("v_mov_b32 v%d, 0" % T0)
        e("buffer_store_dwordx4 v[64:67], v%d, %s, s%d offen" % (T0, srd(sWS), sA))
        e("buffer_store_dwordx4 v[68:71], v%d, %s, s%d offen offset:16" % (T0, srd(sWS), sA))
        e("buffer_store_dwordx2 v[72:73], v%d, %s, s%d offen offset:32" % (T0, srd(sWS), sA))

    def tagcheck(groups, vbad, vt):
        first = True
        for b in groups:
            for o in (1, 3):
                if first:
                    e("v_xor_b32 v%d, s%d, v%d" % (vbad, sT, b+o)); first = False
                else:
                    e("v_xor_b32 v%d, s%d, v%d" % (vt, sT, b+o))
                    e("v_or_b32 v%d, v%d, v%d" % (vbad, vbad, vt))
    def pollend(label, vbad):
        done = g.new("pd")
        e("v_cmp_ne_u32 vcc, 0, v%d" % vbad)
        e("s_nop 1")
        e("s_cmp_eq_u64 vcc, 0")
        e("s_cbranch_scc1 %s" % done)
        e("s_add_u32 s%d, s%d, 1" % (sCnt, sCnt))
        e("s_cmp_lt_u32 s%d, 200000" % sCnt)
        e("s_cbranch_scc0 %s" % done)
        if SLEEP: e("s_sleep %d" % SLEEP)
        e("s_branch %s" % label)
        g.lab(done)
    hdr = open("cdna_kernels/%s.s.ref" % KN).read().split("\n")
    top = []
    for ln in hdr:
        if ln.startswith("; @launch"): break
        top.append(ln)
    out = top + ["; @launch grid=(256,1,1) block=(512,1,1) lds=%d" % LDS,
        '.amdgcn_target "amdgcn-amd-amdhsa--gfx950"', ".text", ".globl %s_kernel" % KN, ".p2align 8",
        ".type %s_kernel,@function" % KN, "%s_kernel:" % KN]

    e("s_cmp_ge_u32 s2, 256")
    e("s_cbranch_scc1 L_end")
    if PROF:
        for k in range(10): e("s_mov_b32 s%d, 0" % (90+k))
    stamp(0)
    e("s_load_dwordx16 s[4:19], s[0:1], 0")
    e("s_load_dwordx8 s[20:27], s[0:1], 64")
    e("s_load_dwordx2 s[28:29], s[0:1], 96")
    e("s_mov_b32 s%d, s2" % sJ)
    e("s_and_b32 s%d, s2, 31" % sH)
    e("s_lshr_b32 s%d, s2, 5" % sS)
    e("v_and_b32 v%d, 63, v0" % vLane)
    e("v_lshrrev_b32 v%d, 6, v0" % T0)
    e("v_lshlrev_b32 v%d, 4, v%d" % (vOff16, vLane))
    e("v_readfirstlane_b32 s%d, v%d" % (sW, T0))
    e("v_lshrrev_b32 v%d, 5, v%d" % (vHalf, vLane))
    e("v_and_b32 v%d, 31, v%d" % (vC, vLane))
    e("s_mov_b32 s%d, 0x3fb8aa3b" % sLog2e)
    e("s_mul_i32 s%d, s%d, 12582912" % (sA, sH))
    e("s_lshl_b32 s%d, s%d, 9" % (sB, sS))
    e("s_lshl_b32 s%d, s%d, 6" % (sC, sW))
    e("s_add_u32 s%d, s%d, s%d" % (sB, sB, sC))
    e("s_add_u32 s%d, s%d, 28672" % (sB, sB))
    e("s_mul_i32 s%d, s%d, 384" % (sB, sB))
    e("s_add_u32 s%d, s%d, s%d" % (sKoff, sA, sB))
    e("s_mov_b32 s%d, s%d" % (sVoff, sKoff))
    def stream_load(i, reg, s_srd, soff):
        if i and i % 4 == 0:
            e("s_add_u32 s%d, s%d, 4096" % (soff, soff))
        e("buffer_load_dwordx4 v[%d:%d], v%d, %s, s%d offen offset:%d%s" % (reg, reg+3, vOff16, srd(s_srd), soff, (i%4)*1024, NT))
    NKF = opt.get("nkf", 4)
    e("s_mov_b32 s%d, %d" % (sK+2, 402653184)); e("s_mov_b32 s%d, 0x00020000" % (sK+3))
    e("s_waitcnt lgkmcnt(0)")
    e("s_mov_b32 s%d, s6" % sK); e("s_mov_b32 s%d, s7" % (sK+1))
    for i in range(NKF):
        stream_load(i, KS(i), sK, sKoff)
    e("s_load_dword s%d, s[28:29], 0" % sT)
    def mksrd(b, p, n):
        e("s_mov_b32 s%d, s%d" % (b, p)); e("s_mov_b32 s%d, s%d" % (b+1, p+1))
        e("s_mov_b32 s%d, %d" % (b+2, n)); e("s_mov_b32 s%d, 0x00020000" % (b+3))
    mksrd(sX, 4, 1280)
    mksrd(sWQ, 10, 640*6144*2)
    e("s_lshr_b32 s%d, s%d, 4" % (sA, sJ))
    e("s_cmp_lt_u32 s%d, 8" % sA)
    e("s_cselect_b32 s%d, s16, s18" % sF)
    e("s_cselect_b32 s%d, s17, s19" % (sF+1))
    e("s_mov_b32 s%d, %d" % (sF+2, 640*1536*2)); e("s_mov_b32 s%d, 0x00020000" % (sF+3))
    e("s_mul_i32 s%d, s%d, 80" % (sA, sS))
    e("s_mul_i32 s%d, s%d, 10" % (sB, sW))
    e("s_add_u32 s%d, s%d, s%d" % (sA, sA, sB))
    e("s_lshl_b32 s%d, s%d, 1" % (sB, sA))
    e("v_lshlrev_b32 v%d, 1, v%d" % (T0, vHalf))
    e("s_mul_i32 s%d, s%d, 12288" % (sA, sA))
    e("s_mul_i32 s%d, s%d, 384" % (sC, sH))
    e("s_add_u32 s%d, s%d, s%d" % (sA, sA, sC))
    e("v_mul_u32_u24 v%d, 12288, v%d" % (T1, vHalf))
    e("v_mul_u32_u24 v%d, 12, v%d" % (T2, vC))
    e("v_add_u32 v%d, v%d, v%d" % (T1, T1, T2))
    for i in range(5):
        e("buffer_load_dwordx3 v[%d:%d], v%d, %s, s%d offen%s" % (vWQd+4*i, vWQd+4*i+2, T1, srd(sWQ), sA, NT))
        if i < 4: e("s_add_u32 s%d, s%d, 24576" % (sA, sA))
    for i in range(5):
        e("buffer_load_ushort v%d, v%d, %s, s%d offen offset:%d" % (vXq+i, T0, srd(sX), sB, 4*i))
    e("s_and_b32 s%d, s%d, 1" % (sC, sJ))
    e("s_cmp_lg_u32 s%d, %d" % (sC, PAR))
    e("s_cbranch_scc1 L_noffn1")
    e("s_lshr_b32 s%d, s%d, 1" % (sC, sJ))
    e("s_and_b32 s%d, s%d, 7" % (sC, sC))
    e("s_mul_i32 s%d, s%d, 80" % (sC, sC))
    e("s_mul_i32 s%d, s%d, 10" % (sD, sW))
    e("s_add_u32 s%d, s%d, s%d" % (sC, sC, sD))
    e("s_lshl_b32 s%d, s%d, 1" % (sD, sC))
    e("s_mul_i32 s%d, s%d, 3072" % (sC, sC))
    e("s_lshr_b32 s%d, s%d, 4" % (sB, sJ))
    e("s_and_b32 s%d, s%d, 7" % (sB, sB))
    e("s_mul_i32 s%d, s%d, 384" % (sB, sB))
    e("s_add_u32 s%d, s%d, s%d" % (sC, sC, sB))
    e("v_mul_u32_u24 v%d, 3072, v%d" % (T1, vHalf))
    e("v_add_u32 v%d, v%d, v%d" % (T1, T1, T2))
    for i in range(5):
        e("buffer_load_dwordx3 v[%d:%d], v%d, %s, s%d offen%s" % (vFd+4*i, vFd+4*i+2, T1, srd(sF), sC, NT))
        if i < 4: e("s_add_u32 s%d, s%d, 6144" % (sC, sC))
    for i in range(5):
        e("buffer_load_ushort v%d, v%d, %s, s%d offen offset:%d" % (vXf+i, T0, srd(sX), sD, 4*i))
    g.lab("L_noffn1")
    mksrd(sGW, 22, 1280)
    e("s_cmp_lg_u32 s%d, 5" % sW)
    e("s_cbranch_scc1 L_nog1")
    e("v_lshlrev_b32 v%d, 2, v%d" % (T0, vLane))
    for k in range(5):
        e("buffer_load_dword v%d, v%d, %s, 0 offen offset:%d" % (vGx+k, T0, srd(sX), 256*k))
        e("buffer_load_dword v%d, v%d, %s, 0 offen offset:%d" % (vGw+k, T0, srd(sGW), 256*k))
    g.lab("L_nog1")
    for i in range(NKF, NK0):
        stream_load(i, KS(i), sK, sKoff)
    mksrd(sV, 8, 402653184)
    mksrd(sWO, 12, 6144*640*2)
    mksrd(sWD, 20, 1536*640*2)
    mksrd(sOUT, 24, 1280)
    mksrd(sWS, 28, WS_END)
    e("v_mov_b32 v%d, %d" % (T0, L_FL))
    e("v_mov_b32 v%d, 0" % T1)
    e("v_mov_b32 v%d, 0" % T2)
    e("ds_write_b64 v%d, v[%d:%d]" % (T0, T1, T2))
    e("ds_write_b64 v%d, v[%d:%d] offset:8" % (T0, T1, T2))
    e("s_waitcnt lgkmcnt(0)")
    e("s_barrier")

    e("s_waitcnt vmcnt(%d)" % (NK0 - NKF))
    stamp(2)
    def vecmat_step(acc, d, xl, xh, first, n=3):
        for k in range(n):
            c0 = "0" if first else "v%d" % (acc+2*k)
            c1 = "0" if first else "v%d" % (acc+2*k+1)
            e("v_dot2_f32_bf16 v%d, v%d, v%d, %s" % (acc+2*k, d+k, xl, c0))
            e("v_dot2_f32_bf16 v%d, v%d, v%d, %s" % (acc+2*k+1, d+k, xh, c1))
    for i in range(5):
        e("v_lshlrev_b32 v%d, 16, v%d" % (vP0+i, vXq+i))
    for i in range(5):
        e("v_lshlrev_b32 v%d, 16, v%d" % (vP0+5+i, vXf+i))
    for i in range(5):
        vecmat_step(vAcc, vWQd+4*i, vXq+i, vP0+i, i == 0)
    for i in range(5):
        vecmat_step(vAccF, vFd+4*i, vXf+i, vP0+5+i, i == 0)
    e("s_lshl_b32 s%d, s%d, 1" % (sA, sW))
    e("v_add_u32 v%d, s%d, v%d" % (T0, sA, vHalf))
    e("v_mul_u32_u24 v%d, 1536, v%d" % (T0, T0))
    e("v_mul_u32_u24 v%d, 24, v%d" % (T1, vC))
    e("v_add_u32 v%d, v%d, v%d" % (T0, T0, T1))
    e("s_nop 1")
    for k in range(3):
        e("ds_write_b64 v%d, v[%d:%d] offset:%d" % (T0, vAcc+2*k, vAcc+2*k+1, L_QP + 8*k))
    for k in range(3):
        e("ds_write_b64 v%d, v[%d:%d] offset:%d" % (T0, vAccF+2*k, vAccF+2*k+1, L_QP + 768 + 8*k))
    e("s_cmp_lg_u32 s%d, 5" % sW)
    e("s_cbranch_scc1 L_nog2")
    t0, t1, t2, t3 = vTmp, vTmp+1, vTmp+2, vTmp+3
    e("v_mov_b32 v%d, 0" % t3)
    for k in range(5):
        e("v_lshlrev_b32 v%d, 16, v%d" % (t0, vGx+k))
        e("v_lshlrev_b32 v%d, 16, v%d" % (t1, vGw+k))
        e("v_mul_f32 v%d, v%d, v%d" % (t0, t0, t1))
        e("v_and_b32 v%d, 0xffff0000, v%d" % (t1, vGx+k))
        e("v_and_b32 v%d, 0xffff0000, v%d" % (t2, vGw+k))
        e("v_mul_f32 v%d, v%d, v%d" % (t1, t1, t2))
        e("v_cvt_pk_bf16_f32 v%d, v%d, v%d" % (t0, t0, t1))
        e("v_and_b32 v%d, 0xffff0000, v%d" % (t1, t0))
        e("v_lshlrev_b32 v%d, 16, v%d" % (t0, t0))
        e("v_add_f32 v%d, v%d, v%d" % (t3, t3, t0))
        e("v_add_f32 v%d, v%d, v%d" % (t3, t3, t1))
    def wave_reduce(op, v, t):
        e("s_nop 1")
        e("%s_dpp v%d, v%d, v%d quad_perm:[1,0,3,2] row_mask:0xf bank_mask:0xf" % (op, v, v, v))
        e("s_nop 1")
        e("%s_dpp v%d, v%d, v%d quad_perm:[2,3,0,1] row_mask:0xf bank_mask:0xf" % (op, v, v, v))
        e("s_nop 1")
        e("%s_dpp v%d, v%d, v%d row_half_mirror row_mask:0xf bank_mask:0xf" % (op, v, v, v))
        e("s_nop 1")
        e("%s_dpp v%d, v%d, v%d row_mirror row_mask:0xf bank_mask:0xf" % (op, v, v, v))
        e("v_mov_b32 v%d, v%d" % (t, v))
        e("s_nop 1")
        e("v_permlane16_swap_b32 v%d, v%d" % (v, t))
        e("s_nop 1")
        e("%s v%d, v%d, v%d" % (op, v, v, t))
        e("v_mov_b32 v%d, v%d" % (t, v))
        e("s_nop 1")
        e("v_permlane32_swap_b32 v%d, v%d" % (v, t))
        e("s_nop 1")
        e("%s v%d, v%d, v%d" % (op, v, v, t))
    wave_reduce("v_add_f32", t3, t0)
    def rne(v):
        e("v_cvt_pk_bf16_f32 v%d, v%d, v%d" % (v, v, v))
        e("v_and_b32 v%d, 0xffff0000, v%d" % (v, v))
    rne(t3)
    e("v_mul_f32 v%d, s%d, v%d" % (t3, sLog2e, t3))
    e("v_sub_f32 v%d, 0, v%d" % (t3, t3))
    e("v_exp_f32 v%d, v%d" % (t3, t3))
    e("s_nop 0")
    e("v_add_f32 v%d, 1.0, v%d" % (t3, t3))
    e("v_rcp_f32 v%d, v%d" % (t3, t3))
    e("s_nop 0")
    rne(t3)
    e("v_sub_f32 v%d, 1.0, v%d" % (t2, t3))
    rne(t2)
    e("v_mov_b32 v%d, v%d" % (t0, t3))
    e("v_mov_b32 v%d, v%d" % (t1, t2))
    e("v_mov_b32 v%d, %d" % (t3, L_GB))
    e("ds_write_b64 v%d, v[%d:%d]" % (t3, t0, t1))
    g.lab("L_nog2")
    e("s_waitcnt lgkmcnt(0)")
    e("v_mov_b32 v%d, %d" % (T0, L_CN))
    e("v_mov_b32 v%d, 1" % T1)
    e("s_mov_b64 exec, 1")
    e("ds_add_u32 v%d, v%d" % (T0, T1))
    e("s_mov_b64 exec, -1")
    e("s_add_u32 s%d, s%d, 1" % (sT, sT))
    e("s_sub_u32 s%d, s%d, 2" % (sB, sW))
    e("s_cmp_ge_u32 s%d, 3" % sB)
    e("s_cbranch_scc1 L_krest")
    e("s_setprio 3")
    e("s_mov_b32 s%d, 0" % sCnt)
    g.lab("L_await")
    e("ds_read_b32 v%d, v%d" % (T1, T0))
    e("s_waitcnt lgkmcnt(0)")
    e("v_readfirstlane_b32 s%d, v%d" % (sB, T1))
    e("s_cmp_eq_u32 s%d, 8" % sB)
    e("s_cbranch_scc1 L_aready")
    e("s_add_u32 s%d, s%d, 1" % (sCnt, sCnt))
    e("s_cmp_gt_u32 s%d, 4000000" % sCnt)
    e("s_cbranch_scc1 L_aready")
    e("s_branch L_await")
    g.lab("L_aready")
    e("v_subrev_u32 v%d, 128, v%d" % (T2, vTid))
    e("v_lshlrev_b32 v%d, 3, v%d" % (T0, T2))
    for k in range(16):
        e("ds_read_b64 v[%d:%d], v%d offset:%d" % (vTmp+2*k, vTmp+2*k+1, T0, L_QP + 1536*k))
    for k in range(1, 16):
        e("s_waitcnt lgkmcnt(%d)" % (15-k))
        e("v_add_f32 v%d, v%d, v%d" % (vTmp, vTmp, vTmp+2*k))
        e("v_add_f32 v%d, v%d, v%d" % (vTmp+1, vTmp+1, vTmp+2*k+1))
    e("v_mov_b32 v%d, v%d" % (vTmp+2, vTmp+1))
    e("v_mov_b32 v%d, s%d" % (vTmp+1, sT))
    e("v_mov_b32 v%d, s%d" % (vTmp+3, sT))
    e("s_mul_i32 s%d, s%d, 3072" % (sA, sJ))
    e("s_add_u32 s%d, s%d, %d" % (sA, sA, WS_Q))
    e("v_lshlrev_b32 v%d, 4, v%d" % (T0, T2))
    e("s_and_b32 s%d, s%d, 1" % (sB, sJ))
    e("s_cmp_eq_u32 s%d, %d" % (sB, PAR))
    e("s_cselect_b32 s%d, 2, 1" % sB)
    e("s_mul_i32 s%d, s%d, 96" % (sB, sB))
    e("v_cmp_gt_u32 vcc, s%d, v%d" % (sB, T2))
    e("s_and_saveexec_b64 s[88:89], vcc")
    e("s_cbranch_execz L_nopst")
    e("buffer_store_dwordx4 v[%d:%d], v%d, %s, s%d offen sc1" % (vTmp, vTmp+3, T0, srd(sWS), sA))
    g.lab("L_nopst")
    e("s_mov_b64 exec, s[88:89]")
    e("s_setprio 0")
    stamp(4)
    g.lab("L_krest")
    if opt.get("prio", 1):
        e("s_cmp_ge_u32 s%d, 2" % sW)
        e("s_cbranch_scc1 L_noprio")
        e("s_setprio 2")
        g.lab("L_noprio")
    for i in range(NK0, 24):
        stream_load(i, KS(i), sK, sKoff)
    NV1 = opt.get("nv1", 16)
    for i in range(NV1):
        stream_load(i, VS(i), sV, sVoff)
    e("s_cmp_ge_u32 s%d, 2" % sW)
    e("s_cbranch_scc1 L_nocomm")
    PA = vTmp
    PF = 12
    vB_, vF_ = 9, 10
    e("s_mul_i32 s%d, s%d, 3072" % (sA, sH))
    e("s_add_u32 s%d, s%d, %d" % (sA, sA, WS_Q))
    e("s_mov_b32 s%d, 0" % sCnt)
    e("s_cmp_eq_u32 s%d, 1" % sW)
    e("s_cbranch_scc1 L_commB")
    e("v_bfe_u32 v%d, v%d, 3, 1" % (vF_, vLane))
    e("v_mul_u32_u24 v%d, %d, v%d" % (vF_, 8*8*2*3072, vF_))
    e("v_and_b32 v%d, 7, v%d" % (T0, vLane))
    e("v_mul_u32_u24 v%d, 6144, v%d" % (T0, T0))
    e("v_add_u32 v%d, v%d, v%d" % (vF_, vF_, T0))
    e("v_lshrrev_b32 v%d, 4, v%d" % (T0, vLane))
    e("v_and_b32 v%d, 1, v%d" % (T1, T0))
    e("v_lshl_add_u32 v11, v%d, 4, v%d" % (T1, vF_))
    e("v_add_u32 v11, 64, v11")
    e("v_lshl_add_u32 v%d, v%d, 4, v%d" % (vF_, T0, vF_))
    e("s_lshl_b32 s%d, s%d, 2" % (sB, sH))
    e("s_lshr_b32 s%d, s%d, 1" % (sC, sS))
    e("s_add_u32 s%d, s%d, s%d" % (sB, sB, sC))
    e("s_lshr_b32 s%d, s%d, 4" % (sC, sB))
    e("s_mul_i32 s%d, s%d, %d" % (sC, sC, 8*2*3072))
    e("s_and_b32 s%d, s%d, 15" % (sB, sB))
    e("s_mul_i32 s%d, s%d, 96" % (sB, sB))
    e("s_add_u32 s%d, s%d, s%d" % (sB, sB, sC))
    e("s_add_u32 s%d, s%d, %d" % (sB, sB, WS_Q + 1536 + PAR*3072))
    g.lab("L_poll0")
    e("s_mov_b32 s%d, s%d" % (sC, sA))
    for n in range(8):
        e("buffer_load_dwordx4 v[%d:%d], v%d, %s, s%d offen sc1" % (PA+4*n, PA+4*n+3, vOff16, srd(sWS), sC))
        if n < 7: e("s_add_u32 s%d, s%d, %d" % (sC, sC, 32*3072))
    e("buffer_load_dwordx4 v[%d:%d], v%d, %s, s%d offen sc1" % (PF, PF+3, vF_, srd(sWS), sB))
    e("buffer_load_dwordx4 v[%d:%d], v11, %s, s%d offen sc1" % (PF+4, PF+7, srd(sWS), sB))
    e("s_waitcnt vmcnt(0)")
    tagcheck([PA+4*n for n in range(8)] + [PF+4*n for n in range(2)], T0, T1)
    pollend("L_poll0", T0)
    for n in range(1, 8):
        e("v_add_f32 v%d, v%d, v%d" % (PA, PA, PA+4*n))
        e("v_add_f32 v%d, v%d, v%d" % (PA+2, PA+2, PA+4*n+2))
    e("v_cvt_pk_bf16_f32 v%d, v%d, v%d" % (PA, PA, PA+2))
    e("v_lshlrev_b32 v%d, 2, v%d" % (T0, vLane))
    e("ds_write_b32 v%d, v%d offset:%d" % (T0, PA, L_QB))
    vals = [PF, PF+2, PF+4, PF+6]
    for mode in ("quad_perm:[1,0,3,2]", "quad_perm:[2,3,0,1]", "row_half_mirror"):
        e("s_nop 1")
        for v in vals:
            e("v_add_f32_dpp v%d, v%d, v%d %s row_mask:0xf bank_mask:0xf" % (v, v, v, mode))
    ups = [PF+1, PF+3, PF+5, PF+7]
    e("s_nop 1")
    for v, u in zip(vals, ups):
        e("v_mov_b32_dpp v%d, v%d row_ror:8 row_mask:0xf bank_mask:0xf" % (u, v))
    for v, u in zip(vals, ups):
        rne(v); rne(u)
        e("v_max_f32 v%d, 0, v%d" % (v, v))
        e("v_mul_f32 v%d, v%d, v%d" % (v, v, u))
        rne(v)
    e("v_lshrrev_b32 v%d, 4, v%d" % (T0, vLane))
    e("v_lshlrev_b32 v%d, 3, v%d" % (T0, T0))
    e("s_mov_b32 exec_lo, 0x00010001")
    e("s_mov_b32 exec_hi, 0x00010001")
    e("ds_write_b32 v%d, v%d offset:%d" % (T0, PF, L_HB))
    e("ds_write_b32 v%d, v%d offset:%d" % (T0, PF+2, L_HB + 4))
    e("s_mov_b32 exec_hi, 0")
    e("ds_write_b32 v%d, v%d offset:%d" % (T0, PF+4, L_HB + 32))
    e("ds_write_b32 v%d, v%d offset:%d" % (T0, PF+6, L_HB + 36))
    e("s_mov_b64 exec, -1")
    e("v_mov_b32 v%d, 0" % (T1))
    e("v_mov_b32 v%d, %d" % (T0, L_HB))
    for k in range(4):
        e("ds_write_b32 v%d, v%d offset:%d" % (T0, T1, 48 + 4*k))
    e("s_branch L_commdone")
    g.lab("L_commB")
    e("v_lshlrev_b32 v%d, 4, v%d" % (vB_, vC))
    e("v_add_u32 v%d, 1024, v%d" % (vB_, vB_))
    g.lab("L_poll0b")
    e("s_mov_b32 s%d, s%d" % (sC, sA))
    for n in range(8):
        e("buffer_load_dwordx4 v[%d:%d], v%d, %s, s%d offen sc1" % (PA+4*n, PA+4*n+3, vB_, srd(sWS), sC))
        if n < 7: e("s_add_u32 s%d, s%d, %d" % (sC, sC, 32*3072))
    e("s_waitcnt vmcnt(0)")
    tagcheck([PA+4*n for n in range(8)], T0, T1)
    pollend("L_poll0b", T0)
    for n in range(1, 8):
        e("v_add_f32 v%d, v%d, v%d" % (PA, PA, PA+4*n))
        e("v_add_f32 v%d, v%d, v%d" % (PA+2, PA+2, PA+4*n+2))
    e("v_cvt_pk_bf16_f32 v%d, v%d, v%d" % (PA, PA, PA+2))
    e("v_lshlrev_b32 v%d, 2, v%d" % (T1, vC))
    e("ds_write_b32 v%d, v%d offset:%d" % (T1, PA, L_QB + 256))
    g.lab("L_commdone")
    stamp(4)
    e("s_waitcnt lgkmcnt(0)")
    e("v_mov_b32 v%d, %d" % (T0, L_FL))
    e("v_mov_b32 v%d, 1" % T1)
    e("s_mov_b64 exec, 1")
    e("ds_add_u32 v%d, v%d" % (T0, T1))
    e("s_mov_b64 exec, -1")
    g.lab("L_nocomm")
    vWO = 32
    vKG = 20
    vCH = 23
    for t in range(3):
        e("v_add_u32 v%d, %d, v%d" % (T0, 64*t, vLane))
        e("v_mul_u32_u24 v%d, 2731, v%d" % (vKG+t, T0))
        e("v_lshrrev_b32 v%d, 16, v%d" % (vKG+t, vKG+t))
        e("v_mul_u32_u24 v%d, 24, v%d" % (T1, vKG+t))
        e("v_sub_u32 v%d, v%d, v%d" % (vCH+t, T0, T1))
    vSA = 26
    e("s_mul_i32 s%d, s%d, %d" % (sA, sW, SSTR))
    e("s_add_u32 s%d, s%d, %d" % (sA, sA, L_S))
    for t in range(3):
        e("v_mul_u32_u24 v%d, 112, v%d" % (T0, vKG+t))
        e("v_lshl_add_u32 v%d, v%d, 2, v%d" % (T0, vCH+t, T0))
        e("v_add_u32 v%d, s%d, v%d" % (vSA+t, sA, T0))
    e("v_mov_b32 v%d, %d" % (T0, L_FL))
    e("s_mov_b32 s%d, 0" % sCnt)
    g.lab("L_qwait")
    e("ds_read_b32 v%d, v%d" % (T1, T0))
    e("s_waitcnt lgkmcnt(0)")
    e("v_readfirstlane_b32 s%d, v%d" % (sB, T1))
    e("s_cmp_eq_u32 s%d, 2" % sB)
    e("s_cbranch_scc1 L_qready")
    e("s_add_u32 s%d, s%d, 1" % (sCnt, sCnt))
    e("s_cmp_gt_u32 s%d, 4000000" % sCnt)
    e("s_cbranch_scc1 L_qready")
    e("s_sleep 1")
    e("s_branch L_qwait")
    g.lab("L_qready")
    stamp(3)
    vQ = 8
    for t in range(3):
        e("v_lshlrev_b32 v%d, 4, v%d" % (T0, vCH+t))
        e("ds_read_b128 v[%d:%d], v%d offset:%d" % (vQ+4*t, vQ+4*t+3, T0, L_QB))
    e("s_waitcnt lgkmcnt(0)")
    vS = 29
    for i in range(24):
        e("s_waitcnt vmcnt(%d)" % (23 - i + NV1))
        t = vS + (i % 3)
        k = KS(i); q = vQ + 4*(i % 3)
        e("v_dot2_f32_bf16 v%d, v%d, v%d, 0" % (t, k, q))
        e("v_dot2_f32_bf16 v%d, v%d, v%d, v%d" % (t, k+1, q+1, t))
        e("v_dot2_f32_bf16 v%d, v%d, v%d, v%d" % (t, k+2, q+2, t))
        e("v_dot2_f32_bf16 v%d, v%d, v%d, v%d" % (t, k+3, q+3, t))
        if i >= 1:
            ip = i-1
            e("ds_write_b32 v%d, v%d offset:%d" % (vSA + ip % 3, vS + (ip % 3), 896*(ip//3)))
    e("s_nop 2")
    e("ds_write_b32 v%d, v%d offset:%d" % (vSA + 2, vS + 2, 896*7))
    for i in range(NV1, 24):
        stream_load(i, VS(i), sV, sVoff)
    e("v_mov_b32 v%d, %d" % (T0, L_C2))
    e("v_mov_b32 v%d, 1" % T1)
    e("s_mov_b64 exec, 1")
    e("ds_add_u32 v%d, v%d" % (T0, T1))
    e("s_mov_b64 exec, -1")
    stamp(1)
    vR = 64
    e("v_mul_u32_u24 v%d, 112, v%d" % (T0, vLane))
    e("v_add_u32 v%d, s%d, v%d" % (T0, sA, T0))
    e("s_waitcnt lgkmcnt(0)")
    for k in range(6):
        e("ds_read_b128 v[%d:%d], v%d offset:%d" % (vR+4*k, vR+4*k+3, T0, 16*k))
    e("s_waitcnt lgkmcnt(0)")
    for k in range(12):
        e("v_add_f32 v%d, v%d, v%d" % (vR+k, vR+k, vR+k+12))
    for k in range(6):
        e("v_add_f32 v%d, v%d, v%d" % (vR+k, vR+k, vR+k+6))
    for k in range(3):
        e("v_add_f32 v%d, v%d, v%d" % (vR+k, vR+k, vR+k+3))
    e("v_add_f32 v%d, v%d, v%d" % (vR, vR, vR+1))
    e("v_add_f32 v%d, v%d, v%d" % (vR, vR, vR+2))
    sc, mx, pp, tt = 8, 9, 10, 11
    e("v_mov_b32 v%d, v%d" % (sc, vR))
    rne(sc)
    e("v_mul_f32 v%d, 0x3d93cd3a, v%d" % (sc, sc))
    rne(sc)
    e("v_mov_b32 v%d, v%d" % (mx, sc))
    wave_reduce("v_max_f32", mx, tt)
    e("v_sub_f32 v%d, v%d, v%d" % (pp, sc, mx))
    e("v_mul_f32 v%d, s%d, v%d" % (pp, sLog2e, pp))
    e("v_exp_f32 v%d, v%d" % (pp, pp))
    e("s_nop 0")
    e("v_mov_b32 v%d, v%d" % (sc, pp))
    rne(sc)
    e("v_and_b32 v%d, 7, v%d" % (tt, vLane))
    e("v_lshlrev_b32 v%d, 5, v%d" % (tt, tt))
    e("v_lshrrev_b32 v%d, 3, v%d" % (T0, vLane))
    e("v_lshl_add_u32 v%d, v%d, 2, v%d" % (tt, T0, tt))
    e("s_lshl_b32 s%d, s%d, 8" % (sB, sW))
    e("v_add_u32 v%d, s%d, v%d" % (tt, sB, tt))
    e("ds_write_b32 v%d, v%d offset:%d" % (tt, sc, L_PT))
    wave_reduce("v_add_f32", pp, tt)
    e("s_lshl_b32 s%d, s%d, 3" % (sC, sW))
    e("v_mov_b32 v%d, s%d" % (tt, sC))
    e("v_mov_b32 v%d, v%d" % (sc, mx))
    e("v_mov_b32 v%d, v%d" % (mx, pp))
    e("ds_write_b64 v%d, v[%d:%d] offset:%d" % (tt, sc, mx, L_ST))
    vP = 64
    e("s_waitcnt lgkmcnt(0)")
    for t in range(3):
        e("v_lshlrev_b32 v%d, 5, v%d" % (T0, vKG+t))
        e("v_add_u32 v%d, s%d, v%d" % (T0, sB, T0))
        e("ds_read_b128 v[%d:%d], v%d offset:%d" % (vP+8*t, vP+8*t+3, T0, L_PT))
        e("ds_read_b128 v[%d:%d], v%d offset:%d" % (vP+8*t+4, vP+8*t+7, T0, L_PT + 16))
    e("s_waitcnt lgkmcnt(0)")
    vAc = 96
    vPl = 120
    def pv(extra):
        for i in range(24):
            t = i % 3; ii = i // 3
            e("v_lshrrev_b32 v%d, 16, v%d" % (vPl + (i % 4), vP+8*t+ii))
            e("s_waitcnt vmcnt(%d)" % (23 - i + extra))
            vecmat_step(vAc + 8*t, VS(i), vPl + (i % 4), vP+8*t+ii, ii == 0, n=4)
    pv(0)
    e("v_lshlrev_b32 v%d, 5, v%d" % (T0, vLane))
    e("v_add_u32 v%d, s%d, v%d" % (T0, sA, T0))
    e("s_nop 0")
    for t in range(3):
        e("ds_write_b128 v%d, v[%d:%d] offset:%d" % (T0, vAc+8*t, vAc+8*t+3, 2048*t))
        e("ds_write_b128 v%d, v[%d:%d] offset:%d" % (T0, vAc+8*t+4, vAc+8*t+7, 2048*t + 16))
    vWO = 32
    e("s_cmp_ge_u32 s%d, 5" % sW)
    e("s_cbranch_scc1 L_nowo")
    e("s_mov_b32 s%d, s%d" % (sCB, sW))
    e("s_cmp_eq_u32 s%d, 4" % sW)
    e("s_cbranch_scc1 L_wogo")
    e("v_mov_b32 v%d, %d" % (T2, L_C2))
    e("s_mov_b32 s%d, 0" % sCnt)
    g.lab("L_c2wait")
    e("ds_read_b32 v%d, v%d" % (T1, T2))
    e("s_waitcnt lgkmcnt(0)")
    e("v_readfirstlane_b32 s%d, v%d" % (sB, T1))
    e("s_cmp_eq_u32 s%d, 8" % sB)
    e("s_cbranch_scc1 L_wogo")
    e("s_add_u32 s%d, s%d, 1" % (sCnt, sCnt))
    e("s_cmp_gt_u32 s%d, 4000000" % sCnt)
    e("s_cbranch_scc1 L_wogo")
    e("s_sleep 1")
    e("s_branch L_c2wait")
    g.lab("L_wogo")
    e("v_lshrrev_b32 v%d, 3, v%d" % (T1, vLane))
    e("v_mul_u32_u24 v%d, 1280, v%d" % (T1, T1))
    e("v_and_b32 v%d, 7, v%d" % (T2, vLane))
    e("v_lshl_add_u32 v%d, v%d, 4, v%d" % (T1, T2, T1))
    e("s_and_b32 s%d, s%d, 1" % (sC, sS))
    e("s_mul_i32 s%d, s%d, 640" % (sC, sC))
    e("s_lshl_b32 s%d, s%d, 7" % (sB, sCB))
    e("s_add_u32 s%d, s%d, s%d" % (sC, sC, sB))
    e("s_lshr_b32 s%d, s%d, 1" % (sD, sS))
    e("s_mul_i32 s%d, s%d, 192" % (sB, sH))
    e("s_mul_i32 s88, s%d, 48" % sD)
    e("s_add_u32 s%d, s%d, s88" % (sB, sB))
    e("s_mul_i32 s%d, s%d, 1280" % (sB, sB))
    e("s_add_u32 s%d, s%d, s%d" % (sB, sB, sC))
    for i in range(6):
        e("buffer_load_dwordx4 v[%d:%d], v%d, %s, s%d offen%s" % (vWO+4*i, vWO+4*i+3, T1, srd(sWO), sB, NT))
        if i < 5: e("s_add_u32 s%d, s%d, 10240" % (sB, sB))
    e("s_lshl_b32 s%d, s%d, 2" % (sB, sH))
    e("s_add_u32 s%d, s%d, s%d" % (sB, sB, sD))
    e("s_mul_i32 s%d, s%d, 15360" % (sB, sB))
    e("s_add_u32 s%d, s%d, s%d" % (sB, sB, sC))
    e("buffer_load_dwordx4 v[%d:%d], v%d, %s, s%d offen%s" % (vWO+24, vWO+27, T1, srd(sWD), sB, NT))
    e("s_add_u32 s%d, s%d, 10240" % (sB, sB))
    e("s_mov_b32 exec_hi, 0")
    e("buffer_load_dwordx4 v[%d:%d], v%d, %s, s%d offen%s" % (vWO+28, vWO+31, T1, srd(sWD), sB, NT))
    e("s_mov_b64 exec, -1")
    g.lab("L_nowo")
    e("s_waitcnt lgkmcnt(0)")
    stamp(5)
    e("s_barrier")
    stamp(6)
    e("s_cmp_ge_u32 s%d, 6" % sW)
    e("s_cbranch_scc1 L_nopub2")
    vO = 64
    vG_ = 8
    e("v_and_b32 v%d, 7, v%d" % (vG_, vLane))
    e("v_lshrrev_b32 v%d, 3, v%d" % (T1, vTid))
    e("v_mul_u32_u24 v%d, %d, v%d" % (T0, SSTR, vG_))
    e("v_lshl_add_u32 v%d, v%d, 4, v%d" % (T0, T1, T0))
    e("v_add_u32 v%d, %d, v%d" % (T0, L_S, T0))
    e("v_lshlrev_b32 v%d, 3, v%d" % (T2, vG_))
    e("ds_read_b64 v[10:11], v%d offset:%d" % (T2, L_ST))
    for j in range(8):
        e("ds_read_b128 v[%d:%d], v%d offset:%d" % (vO+4*j, vO+4*j+3, T0, 768*j))
    e("s_waitcnt lgkmcnt(8)")
    M = 12
    e("v_mov_b32 v%d, v10" % M)
    def red8(op, regs):
        for mode in ("quad_perm:[1,0,3,2]", "quad_perm:[2,3,0,1]", "row_half_mirror"):
            e("s_nop 1")
            for v in regs:
                e("%s_dpp v%d, v%d, v%d %s row_mask:0xf bank_mask:0xf" % (op, v, v, v, mode))
    red8("v_max_f32", [M])
    e("v_sub_f32 v10, v10, v%d" % M)
    e("v_mul_f32 v10, s%d, v10" % sLog2e)
    e("v_exp_f32 v10, v10")
    e("s_waitcnt lgkmcnt(0)")
    for st in (4, 2, 1):
        for j in range(st):
            for c in range(4):
                e("v_add_f32 v%d, v%d, v%d" % (vO+4*j+c, vO+4*j+c, vO+4*(j+st)+c))
    for c in range(4):
        e("v_mul_f32 v%d, v%d, v10" % (vO+c, vO+c))
    e("v_mul_f32 v11, v11, v10")
    red8("v_add_f32", [vO, vO+1, vO+2, vO+3, 11])
    a0 = 16
    e("v_cmp_eq_u32 vcc, 1, v%d" % vG_)
    e("s_nop 1")
    e("v_cndmask_b32 v%d, v%d, v%d, vcc" % (a0, vO, vO+2))
    e("v_cndmask_b32 v%d, v%d, v%d, vcc" % (a0+2, vO+1, vO+3))
    e("v_lshl_add_u32 v%d, v%d, 1, v%d" % (T0, T1, vG_))
    e("v_cmp_eq_u32 vcc, 2, v%d" % vTid)
    e("s_nop 1")
    e("v_cndmask_b32 v%d, v%d, v%d, vcc" % (a0, a0, M))
    e("v_cndmask_b32 v%d, v%d, v11, vcc" % (a0+2, a0+2))
    e("v_mov_b32 v%d, 96" % T1)
    e("v_cndmask_b32 v%d, v%d, v%d, vcc" % (T0, T0, T1))
    e("v_cmp_gt_u32 s[88:89], 2, v%d" % vG_)
    e("s_or_b64 vcc, vcc, s[88:89]")
    e("v_mov_b32 v%d, s%d" % (a0+1, sT))
    e("v_mov_b32 v%d, s%d" % (a0+3, sT))
    e("s_lshl_b32 s%d, s%d, 11" % (sA, sJ))
    e("s_add_u32 s%d, s%d, %d" % (sA, sA, WS_O))
    e("v_lshlrev_b32 v%d, 4, v%d" % (T0, T0))
    e("s_and_saveexec_b64 s[88:89], vcc")
    e("buffer_store_dwordx4 v[%d:%d], v%d, %s, s%d offen sc1" % (a0, a0+3, T0, srd(sWS), sA))
    e("s_mov_b64 exec, s[88:89]")
    if opt.get("det", 0): stamp(2)
    g.lab("L_nopub2")
    NPOLL = 1
    e("s_cmp_ge_u32 s%d, 5" % sW)
    e("s_cbranch_scc1 L_poller")
    vWt = 88
    aA, aB = 96, 104
    e("v_lshrrev_b32 v%d, 3, v%d" % (T0, vLane))
    e("v_lshlrev_b32 v%d, 2, v%d" % (T0, T0))
    e("v_mov_b32 v%d, %d" % (T2, L_GB))
    for i in range(2):
        e("ds_read_b32 v%d, v%d offset:%d" % (vWt+6+i, T0, L_HB + 32*i))
    e("ds_read_b64 v[12:13], v%d" % T2)
    e("s_mul_i32 s%d, s%d, 2560" % (sA, sJ))
    e("s_lshl_b32 s%d, s%d, 9" % (sB, sCB))
    e("s_add_u32 s%d, s%d, s%d" % (sA, sA, sB))
    e("s_add_u32 s%d, s%d, %d" % (sA, sA, WS_R))
    e("v_and_b32 v14, 7, v%d" % vLane)
    e("v_lshlrev_b32 v14, 6, v14")
    e("v_lshrrev_b32 v15, 4, v%d" % vLane)
    e("v_lshl_add_u32 v14, v15, 4, v14")
    e("s_waitcnt vmcnt(0) lgkmcnt(0)")
    for i in (6, 7):
        if i == 7: e("s_mov_b32 exec_hi, 0")
        first = i == 6
        e("v_lshrrev_b32 v%d, 16, v%d" % (T1, vWt+i))
        for k in range(4):
            c0 = "0" if first else "v%d" % (aB+2*k)
            c1 = "0" if first else "v%d" % (aB+2*k+1)
            e("v_dot2_f32_bf16 v%d, v%d, v%d, %s" % (aB+2*k, vWO+4*i+k, T1, c0))
            e("v_dot2_f32_bf16 v%d, v%d, v%d, %s" % (aB+2*k+1, vWO+4*i+k, vWt+i, c1))
    e("s_mov_b64 exec, -1")
    e("s_nop 2")
    for k in range(8):
        e("v_mul_f32 v%d, v%d, v13" % (aB+k, aB+k))
    e("v_mov_b32 v%d, s%d" % (113, sT))
    e("v_mov_b32 v%d, s%d" % (115, sT))
    e("v_mov_b32 v%d, %d" % (T2, L_F2))
    e("s_mov_b32 s%d, 0" % sCnt)
    g.lab("L_wwait")
    e("ds_read_b32 v%d, v%d" % (T1, T2))
    e("s_waitcnt lgkmcnt(0)")
    e("v_readfirstlane_b32 s%d, v%d" % (sB, T1))
    e("s_cmp_lg_u32 s%d, 0" % sB)
    e("s_cbranch_scc1 L_wready")
    e("s_add_u32 s%d, s%d, 1" % (sCnt, sCnt))
    e("s_cmp_gt_u32 s%d, 4000000" % sCnt)
    e("s_cbranch_scc1 L_wready")
    e("s_branch L_wwait")
    g.lab("L_wready")
    stamp(7)
    for i in range(6):
        e("ds_read_b32 v%d, v%d offset:%d" % (vWt+i, T0, L_WB + 32*i))
    for i in range(6):
        e("s_waitcnt lgkmcnt(%d)" % (5-i))
        first = i == 0
        e("v_lshrrev_b32 v%d, 16, v%d" % (T1, vWt+i))
        for k in range(4):
            c0 = "0" if first else "v%d" % (aA+2*k)
            c1 = "0" if first else "v%d" % (aA+2*k+1)
            e("v_dot2_f32_bf16 v%d, v%d, v%d, %s" % (aA+2*k, vWO+4*i+k, T1, c0))
            e("v_dot2_f32_bf16 v%d, v%d, v%d, %s" % (aA+2*k+1, vWO+4*i+k, vWt+i, c1))
    e("s_nop 2")
    for k in range(8):
        e("v_fma_f32 v%d, v%d, v12, v%d" % (aA+k, aA+k, aB+k))
    e("s_nop 1")
    for k in range(4):
        e("v_permlane32_swap_b32 v%d, v%d" % (aA+k, aA+k+4))
    e("s_nop 1")
    for k in range(4):
        e("v_add_f32 v%d, v%d, v%d" % (aA+k, aA+k, aA+k+4))
    e("s_nop 1")
    for k in range(2):
        e("v_permlane16_swap_b32 v%d, v%d" % (aA+k, aA+k+2))
    e("s_nop 1")
    e("v_add_f32 v112, v%d, v%d" % (aA, aA+2))
    e("v_add_f32 v114, v%d, v%d" % (aA+1, aA+3))
    e("s_nop 1")
    e("v_add_f32_dpp v112, v112, v112 row_ror:8 row_mask:0xf bank_mask:0xf")
    e("v_add_f32_dpp v114, v114, v114 row_ror:8 row_mask:0xf bank_mask:0xf")
    e("s_mov_b32 exec_lo, 0x00ff00ff")
    e("s_mov_b32 exec_hi, 0x00ff00ff")
    e("buffer_store_dwordx4 v[112:115], v14, %s, s%d offen sc1" % (srd(sWS), sA))
    stamp(8)
    e("s_branch L_fin")
    g.lab("L_poller")
    e("s_cmp_lg_u32 s%d, 7" % sW)
    e("s_cbranch_scc1 L_fin")
    if NPOLL > 1:
        st = g.new("stg")
        e("s_cmp_eq_u32 s%d, 0" % sW)
        e("s_cbranch_scc1 %s" % st)
        e("s_sleep %d" % opt.get("stagn", 6))
        e("s_cmp_eq_u32 s%d, 1" % sW)
        e("s_cbranch_scc1 %s" % st)
        e("s_sleep %d" % opt.get("stagn", 6))
        g.lab(st)
    RING = opt.get("ring", 3)
    G1, G2, G4, G3 = 64, 68, 72, 76
    a1, a3 = 8, 10
    e("v_and_b32 v%d, 7, v%d" % (a3, vLane))
    e("v_lshlrev_b32 v%d, 16, v%d" % (a3, a3))
    e("v_lshrrev_b32 v%d, 3, v%d" % (T1, vLane))
    e("v_lshl_add_u32 v%d, v%d, 4, v%d" % (a1, T1, a3))
    e("s_lshl_b32 s%d, s%d, 11" % (sA, sH))
    e("s_add_u32 s%d, s%d, %d" % (sA, sA, WS_O))
    e("s_lshr_b32 s%d, s%d, 1" % (sB, sS))
    e("s_mul_i32 s%d, s%d, 384" % (sB, sB))
    e("s_add_u32 s%d, s%d, s%d" % (sB, sB, sA))
    e("s_mov_b32 s%d, 0" % sCnt)
    def RS(r): return 160 + 16*r
    def issue_set(r):
        b = RS(r)
        e("buffer_load_dwordx4 v[%d:%d], v%d, %s, s%d offen sc1" % (b, b+3, a1, srd(sWS), sB))
        e("buffer_load_dwordx4 v[%d:%d], v%d, %s, s%d offen offset:128 sc1" % (b+4, b+7, a1, srd(sWS), sB))
        e("buffer_load_dwordx4 v[%d:%d], v%d, %s, s%d offen offset:256 sc1" % (b+8, b+11, a1, srd(sWS), sB))
        e("buffer_load_dwordx4 v[%d:%d], v%d, %s, s%d offen offset:1536 sc1" % (b+12, b+15, a3, srd(sWS), sA))
    for r in range(RING):
        issue_set(r)
        if r < RING-1: e("s_sleep %d" % opt.get("rsl", 4))
    g.lab("L_poll1")
    for r in range(RING):
        b = RS(r)
        e("s_waitcnt vmcnt(%d)" % (4*(RING-1)))
        tagcheck([b, b+4, b+8, b+12], T1, T2)
        e("v_cmp_ne_u32 vcc, 0, v%d" % T1)
        e("s_nop 1")
        e("s_cmp_eq_u64 vcc, 0")
        e("s_cbranch_scc1 L_p1ok%d" % r)
        issue_set(r)
    e("s_add_u32 s%d, s%d, 1" % (sCnt, sCnt))
    e("s_cmp_lt_u32 s%d, 100000" % sCnt)
    e("s_cbranch_scc1 L_poll1")
    for r in range(RING):
        g.lab("L_p1ok%d" % r)
        b = RS(r)
        for (d, o) in ((G1, 0), (G1+2, 2), (G2, 4), (G2+2, 6), (G4, 8), (G4+2, 10), (G3, 12), (G3+2, 14)):
            e("v_mov_b32 v%d, v%d" % (d, b+o))
        if r < RING-1: e("s_branch L_p1done")
    g.lab("L_p1done")
    if opt.get("det", 0):
        stamp(2)
        e("s_mov_b32 s94, s%d" % sCnt)
    def red8(op, regs):
        for mode in ("quad_perm:[1,0,3,2]", "quad_perm:[2,3,0,1]", "row_half_mirror"):
            e("s_nop 1")
            for v in regs:
                e("%s_dpp v%d, v%d, v%d %s row_mask:0xf bank_mask:0xf" % (op, v, v, v, mode))
    Mx = 12
    e("v_mov_b32 v%d, v%d" % (Mx, G3))
    red8("v_max_f32", [Mx])
    e("v_sub_f32 v%d, v%d, v%d" % (Mx, G3, Mx))
    e("v_mul_f32 v%d, s%d, v%d" % (Mx, sLog2e, Mx))
    e("v_exp_f32 v%d, v%d" % (Mx, Mx))
    e("s_nop 0")
    rr = [G3+2, G1, G1+2, G2, G2+2, G4, G4+2]
    for v in rr:
        e("v_mul_f32 v%d, v%d, v%d" % (v, v, Mx))
    red8("v_add_f32", rr)
    e("v_rcp_f32 v%d, v%d" % (Mx, G3+2))
    e("v_lshrrev_b32 v%d, 3, v%d" % (T0, vLane))
    e("v_lshlrev_b32 v%d, 3, v%d" % (T0, T0))
    for v in rr[1:]:
        e("v_mul_f32 v%d, v%d, v%d" % (v, v, Mx))
    for Gx in (G1, G2, G4):
        e("v_cvt_pk_bf16_f32 v%d, v%d, v%d" % (Gx+2, Gx, Gx+2))
    for Gx in (G1, G2, G4):
        e("v_lshlrev_b32 v%d, 16, v%d" % (Gx, Gx+2))
        e("v_and_b32 v%d, 0xffff0000, v%d" % (Gx+1, Gx+2))
    e("s_mov_b32 exec_lo, 0x01010101")
    e("s_mov_b32 exec_hi, 0x01010101")
    for n, Gx in enumerate((G1, G2, G4)):
        e("ds_write_b64 v%d, v[%d:%d] offset:%d" % (T0, Gx, Gx+1, L_WB + 64*n))
    e("s_waitcnt lgkmcnt(0)")
    e("v_mov_b32 v%d, %d" % (T0, L_F2))
    e("v_mov_b32 v%d, 1" % T1)
    e("ds_write_b32 v%d, v%d" % (T0, T1))
    e("s_mov_b64 exec, -1")
    stamp(7)
    e("s_cmp_ge_u32 s%d, 160" % sJ)
    e("s_cbranch_scc1 L_fin")
    FR = 128
    e("v_bfe_u32 v%d, v%d, 1, 2" % (T0, vLane))
    e("v_lshlrev_b32 v%d, 3, v%d" % (T0, T0))
    e("v_bfe_u32 v%d, v%d, 3, 1" % (T1, vLane))
    e("v_add_u32 v%d, v%d, v%d" % (T0, T0, T1))
    e("v_lshrrev_b32 v%d, 4, v%d" % (T1, vLane))
    e("v_lshl_add_u32 v%d, v%d, 6, v%d" % (T0, T1, T0))
    e("v_mul_u32_u24 v%d, 2560, v%d" % (T0, T0))
    e("v_and_b32 v%d, 1, v%d" % (T1, vLane))
    e("v_lshl_add_u32 v%d, v%d, 4, v%d" % (T0, T1, T0))
    e("s_cmp_ge_u32 s%d, 80" % sJ)
    e("s_cselect_b32 s%d, 1, 0" % sB)
    e("s_mul_i32 s%d, s%d, 80" % (sA, sB))
    e("s_sub_u32 s%d, s%d, s%d" % (sA, sJ, sA))
    e("s_lshl_b32 s%d, s%d, 5" % (sA, sA))
    e("s_mul_i32 s%d, s%d, %d" % (sB, sB, 32*2560))
    e("s_add_u32 s%d, s%d, s%d" % (sA, sA, sB))
    e("s_add_u32 s40, s%d, %d" % (sA, WS_R))
    for n in range(1, 4):
        e("s_add_u32 s%d, s%d, 5120" % (40+n, 40+n-1))
    e("s_mov_b32 s%d, 0" % sC)
    if opt.get("pre2", 0): e("s_sleep %d" % opt.get("pre2", 0))
    e("s_mov_b32 s%d, 0" % sCnt)
    g.lab("L_poll2")
    for n in range(4):
        sk = g.new("sk")
        e("s_bitcmp1_b32 s%d, %d" % (sC, n))
        e("s_cbranch_scc1 %s" % sk)
        e("buffer_load_dwordx4 v[%d:%d], v%d, %s, s%d offen sc1" % (FR+4*n, FR+4*n+3, T0, srd(sWS), 40+n))
        g.lab(sk)
    e("s_waitcnt vmcnt(0)")
    for n in range(4):
        e("v_xor_b32 v%d, s%d, v%d" % (T1, sT, FR+4*n+1))
        e("v_xor_b32 v%d, s%d, v%d" % (T2, sT, FR+4*n+3))
        e("v_or_b32 v%d, v%d, v%d" % (T1, T1, T2))
        e("v_cmp_ne_u32 vcc, 0, v%d" % T1)
        e("s_nop 1")
        e("s_cmp_eq_u64 vcc, 0")
        e("s_cselect_b32 s%d, %d, 0" % (sB, 1 << n))
        e("s_or_b32 s%d, s%d, s%d" % (sC, sC, sB))
    e("s_cmp_eq_u32 s%d, 0xf" % sC)
    e("s_cbranch_scc1 L_p2done")
    e("s_add_u32 s%d, s%d, 1" % (sCnt, sCnt))
    e("s_cmp_lt_u32 s%d, 200000" % sCnt)
    e("s_cbranch_scc0 L_p2done")
    if SLEEP: e("s_sleep %d" % SLEEP)
    e("s_branch L_poll2")
    g.lab("L_p2done")
    for n in range(1, 4):
        e("v_add_f32 v%d, v%d, v%d" % (FR, FR, FR+4*n))
        e("v_add_f32 v%d, v%d, v%d" % (FR+2, FR+2, FR+4*n+2))
    for mode in ("quad_perm:[2,3,0,1]", "row_ror:4", "row_ror:8"):
        e("s_nop 1")
        for v in (FR, FR+2):
            e("v_add_f32_dpp v%d, v%d, v%d %s row_mask:0xf bank_mask:0xf" % (v, v, v, mode))
    for swap in ("v_permlane16_swap_b32", "v_permlane32_swap_b32"):
        e("v_mov_b32 v%d, v%d" % (FR+1, FR))
        e("v_mov_b32 v%d, v%d" % (FR+3, FR+2))
        e("s_nop 1")
        e("%s v%d, v%d" % (swap, FR, FR+1))
        e("%s v%d, v%d" % (swap, FR+2, FR+3))
        e("s_nop 1")
        e("v_add_f32 v%d, v%d, v%d" % (FR, FR, FR+1))
        e("v_add_f32 v%d, v%d, v%d" % (FR+2, FR+2, FR+3))
    e("v_cvt_pk_bf16_f32 v%d, v%d, v%d" % (FR, FR, FR+2))
    e("v_lshlrev_b32 v%d, 2, v%d" % (T0, vLane))
    e("s_lshl_b32 s%d, s%d, 3" % (sA, sJ))
    e("s_mov_b64 exec, 3")
    e("buffer_store_dword v%d, v%d, %s, s%d offen" % (FR, T0, srd(sOUT), sA))
    e("s_cmp_lg_u32 s%d, 0" % sJ)
    e("s_cbranch_scc1 L_fin")
    e("s_mov_b64 exec, 1")
    e("v_mov_b32 v%d, s%d" % (T0, sT))
    e("v_mov_b32 v%d, 0" % (T1))
    e("buffer_store_dword v%d, v%d, %s, 0 offen" % (T0, T1, srd(sWS)))
    g.lab("L_fin")
    stamp(9)
    stamp_flush()
    g.lab("L_end")
    e("s_endpgm")
    out += g.L
    out += ['.section .rodata,"a"', ".p2align 6", ".amdhsa_kernel %s_kernel" % KN,
        "  .amdhsa_next_free_vgpr 256", "  .amdhsa_next_free_sgpr 102", "  .amdhsa_accum_offset 256",
        "  .amdhsa_group_segment_fixed_size 0", "  .amdhsa_kernarg_size 104", "  .amdhsa_user_sgpr_count 2",
        "  .amdhsa_user_sgpr_kernarg_segment_ptr 1", "  .amdhsa_system_sgpr_workgroup_id_x 1", ".end_amdhsa_kernel", ""]
    return "\n".join(out)

if __name__ == "__main__":
    opt = {}
    outp = sys.argv[1]
    for a in sys.argv[2:]:
        k, v = a.split("=")
        opt[k] = int(v)
    open(outp, "w").write(gen(opt))
```

```python
import sys

KN = "gated_mix__sliding_block_cached__glu_gated_reglu__decode"

class G:
    def __init__(self):
        self.L = []
        self.uid = 0
    def e(self, s):
        self.L.append("    " + s)
    def lab(self, s):
        self.L.append(s + ":")
    def new(self, p):
        self.uid += 1
        return "L_%s_%d" % (p, self.uid)

def gen(opt):
    g = G()
    e = g.e
    NT = " nt" if opt.get("nt", 1) else ""
    PROF = opt.get("prof", 0)
    NK0 = opt.get("nk0", 6)
    SLEEP = opt.get("sleep", 0)
    sK, sV, sWQ, sWO, sF, sWD, sX, sGW, sOUT, sWS = [32 + 4*i for i in range(10)]
    def srd(b): return "s[%d:%d]" % (b, b+3)
    sH, sS, sW, sT, sJ = 72, 73, 74, 75, 76
    sA, sB, sC, sD = 77, 78, 79, 80
    sCnt = 81
    sLog2e = 82
    sKoff, sVoff = 83, 84
    sCB = 85
    WS_Q = 4096
    WS_O = WS_Q + 256*3072
    WS_R = WS_O + 256*2048
    WS_P = WS_R + 256*5120
    WS_END = WS_P + 256*8*64
    L_QP = 0
    L_PT = 24576
    L_QB = L_PT + 2048
    L_HB = L_QB + 512
    L_GB = L_HB + 64
    L_ST = L_GB + 64
    L_WB = L_ST + 64
    L_FL = L_WB + 5*128
    L_CN = L_FL + 4
    L_F2 = L_FL + 8
    L_C2 = L_FL + 12
    L_S = 32768
    SSTR = 7200
    L_END = L_S + 8*SSTR
    LDS = (L_END + 255)//256*256
    vTid, vLane, vOff16, vHalf, vC = 0, 1, 2, 3, 4
    T0, T1, T2 = 5, 6, 7
    vAcc = 8
    vAccF = 14
    vP0 = 20
    vTmp = 32
    def KS(i): return 64 + 4*i
    def VS(i): return 160 + 4*i
    vWQd = 160
    vFd = 180
    vXq = 200
    vXf = 205
    vGx = 210
    vGw = 215
    PAR = opt.get("par", 0)

    def stamp(k):
        if not PROF: return
        if PROF == 2 and k not in (0, 9): return
        e("s_memrealtime s[100:101]")
        e("s_waitcnt lgkmcnt(0)")
        e("s_mov_b32 s%d, s100" % (90+k))
    def stamp_flush():
        if not PROF: return
        e("s_mov_b64 exec, 1")
        for k in range(10):
            e("v_mov_b32 v%d, s%d" % (64+k, 90+k))
        e("s_lshl_b32 s%d, s%d, 3" % (sA, sJ))
        e("s_add_u32 s%d, s%d, s%d" % (sA, sA, sW))
        e("s_lshl_b32 s%d, s%d, 6" % (sA, sA))
        e("s_add_u32 s%d, s%d, %d" % (sA, sA, WS_P))
        e("v_mov_b32 v%d, 0" % T0)
        e("buffer_store_dwordx4 v[64:67], v%d, %s, s%d offen" % (T0, srd(sWS), sA))
        e("buffer_store_dwordx4 v[68:71], v%d, %s, s%d offen offset:16" % (T0, srd(sWS), sA))
        e("buffer_store_dwordx2 v[72:73], v%d, %s, s%d offen offset:32" % (T0, srd(sWS), sA))

    def tagcheck(groups, vbad, vt):
        first = True
        for b in groups:
            for o in (1, 3):
                if first:
                    e("v_xor_b32 v%d, s%d, v%d" % (vbad, sT, b+o)); first = False
                else:
                    e("v_xor_b32 v%d, s%d, v%d" % (vt, sT, b+o))
                    e("v_or_b32 v%d, v%d, v%d" % (vbad, vbad, vt))
    def pollend(label, vbad):
        done = g.new("pd")
        e("v_cmp_ne_u32 vcc, 0, v%d" % vbad)
        e("s_nop 1")
        e("s_cmp_eq_u64 vcc, 0")
        e("s_cbranch_scc1 %s" % done)
        e("s_add_u32 s%d, s%d, 1" % (sCnt, sCnt))
        e("s_cmp_lt_u32 s%d, 200000" % sCnt)
        e("s_cbranch_scc0 %s" % done)
        if SLEEP: e("s_sleep %d" % SLEEP)
        e("s_branch %s" % label)
        g.lab(done)
    hdr = open("cdna_kernels/%s.s.ref" % KN).read().split("\n")
    top = []
    for ln in hdr:
        if ln.startswith("; @launch"): break
        top.append(ln)
    out = top + ["; @launch grid=(256,1,1) block=(512,1,1) lds=%d" % LDS,
        '.amdgcn_target "amdgcn-amd-amdhsa--gfx950"', ".text", ".globl %s_kernel" % KN, ".p2align 8",
        ".type %s_kernel,@function" % KN, "%s_kernel:" % KN]

    e("s_cmp_ge_u32 s2, 256")
    e("s_cbranch_scc1 L_end")
    if PROF:
        for k in range(10): e("s_mov_b32 s%d, 0" % (90+k))
    stamp(0)
    e("s_load_dwordx16 s[4:19], s[0:1], 0")
    e("s_load_dwordx8 s[20:27], s[0:1], 64")
    e("s_load_dwordx2 s[28:29], s[0:1], 96")
    e("s_mov_b32 s%d, s2" % sJ)
    e("s_and_b32 s%d, s2, 31" % sH)
    e("s_lshr_b32 s%d, s2, 5" % sS)
    e("v_and_b32 v%d, 63, v0" % vLane)
    e("v_lshrrev_b32 v%d, 6, v0" % T0)
    e("v_lshlrev_b32 v%d, 4, v%d" % (vOff16, vLane))
    e("v_readfirstlane_b32 s%d, v%d" % (sW, T0))
    e("v_lshrrev_b32 v%d, 5, v%d" % (vHalf, vLane))
    e("v_and_b32 v%d, 31, v%d" % (vC, vLane))
    e("s_mov_b32 s%d, 0x3fb8aa3b" % sLog2e)
    e("s_mul_i32 s%d, s%d, 12582912" % (sA, sH))
    e("s_lshl_b32 s%d, s%d, 9" % (sB, sS))
    e("s_lshl_b32 s%d, s%d, 6" % (sC, sW))
    e("s_add_u32 s%d, s%d, s%d" % (sB, sB, sC))
    e("s_add_u32 s%d, s%d, 28672" % (sB, sB))
    e("s_mul_i32 s%d, s%d, 384" % (sB, sB))
    e("s_add_u32 s%d, s%d, s%d" % (sKoff, sA, sB))
    e("s_mov_b32 s%d, s%d" % (sVoff, sKoff))
    def stream_load(i, reg, s_srd, soff):
        if i and i % 4 == 0:
            e("s_add_u32 s%d, s%d, 4096" % (soff, soff))
        e("buffer_load_dwordx4 v[%d:%d], v%d, %s, s%d offen offset:%d%s" % (reg, reg+3, vOff16, srd(s_srd), soff, (i%4)*1024, NT))
    NKF = opt.get("nkf", 4)
    e("s_mov_b32 s%d, %d" % (sK+2, 402653184)); e("s_mov_b32 s%d, 0x00020000" % (sK+3))
    e("s_waitcnt lgkmcnt(0)")
    e("s_mov_b32 s%d, s6" % sK); e("s_mov_b32 s%d, s7" % (sK+1))
    for i in range(NKF):
        stream_load(i, KS(i), sK, sKoff)
    e("s_load_dword s%d, s[28:29], 0" % sT)
    def mksrd(b, p, n):
        e("s_mov_b32 s%d, s%d" % (b, p)); e("s_mov_b32 s%d, s%d" % (b+1, p+1))
        e("s_mov_b32 s%d, %d" % (b+2, n)); e("s_mov_b32 s%d, 0x00020000" % (b+3))
    mksrd(sX, 4, 1280)
    mksrd(sWQ, 10, 640*6144*2)
    e("s_lshr_b32 s%d, s%d, 4" % (sA, sJ))
    e("s_cmp_lt_u32 s%d, 8" % sA)
    e("s_cselect_b32 s%d, s16, s18" % sF)
    e("s_cselect_b32 s%d, s17, s19" % (sF+1))
    e("s_mov_b32 s%d, %d" % (sF+2, 640*1536*2)); e("s_mov_b32 s%d, 0x00020000" % (sF+3))
    e("s_mul_i32 s%d, s%d, 80" % (sA, sS))
    e("s_mul_i32 s%d, s%d, 10" % (sB, sW))
    e("s_add_u32 s%d, s%d, s%d" % (sA, sA, sB))
    e("s_lshl_b32 s%d, s%d, 1" % (sB, sA))
    e("v_lshlrev_b32 v%d, 1, v%d" % (T0, vHalf))
    e("s_mul_i32 s%d, s%d, 12288" % (sA, sA))
    e("s_mul_i32 s%d, s%d, 384" % (sC, sH))
    e("s_add_u32 s%d, s%d, s%d" % (sA, sA, sC))
    e("v_mul_u32_u24 v%d, 12288, v%d" % (T1, vHalf))
    e("v_mul_u32_u24 v%d, 12, v%d" % (T2, vC))
    e("v_add_u32 v%d, v%d, v%d" % (T1, T1, T2))
    for i in range(5):
        e("buffer_load_dwordx3 v[%d:%d], v%d, %s, s%d offen%s" % (vWQd+4*i, vWQd+4*i+2, T1, srd(sWQ), sA, NT))
        if i < 4: e("s_add_u32 s%d, s%d, 24576" % (sA, sA))
    for i in range(5):
        e("buffer_load_ushort v%d, v%d, %s, s%d offen offset:%d" % (vXq+i, T0, srd(sX), sB, 4*i))
    e("s_and_b32 s%d, s%d, 1" % (sC, sJ))
    e("s_cmp_lg_u32 s%d, %d" % (sC, PAR))
    e("s_cbranch_scc1 L_noffn1")
    e("s_lshr_b32 s%d, s%d, 1" % (sC, sJ))
    e("s_and_b32 s%d, s%d, 7" % (sC, sC))
    e("s_mul_i32 s%d, s%d, 80" % (sC, sC))
    e("s_mul_i32 s%d, s%d, 10" % (sD, sW))
    e("s_add_u32 s%d, s%d, s%d" % (sC, sC, sD))
    e("s_lshl_b32 s%d, s%d, 1" % (sD, sC))
    e("s_mul_i32 s%d, s%d, 3072" % (sC, sC))
    e("s_lshr_b32 s%d, s%d, 4" % (sB, sJ))
    e("s_and_b32 s%d, s%d, 7" % (sB, sB))
    e("s_mul_i32 s%d, s%d, 384" % (sB, sB))
    e("s_add_u32 s%d, s%d, s%d" % (sC, sC, sB))
    e("v_mul_u32_u24 v%d, 3072, v%d" % (T1, vHalf))
    e("v_add_u32 v%d, v%d, v%d" % (T1, T1, T2))
    for i in range(5):
        e("buffer_load_dwordx3 v[%d:%d], v%d, %s, s%d offen%s" % (vFd+4*i, vFd+4*i+2, T1, srd(sF), sC, NT))
        if i < 4: e("s_add_u32 s%d, s%d, 6144" % (sC, sC))
    for i in range(5):
        e("buffer_load_ushort v%d, v%d, %s, s%d offen offset:%d" % (vXf+i, T0, srd(sX), sD, 4*i))
    g.lab("L_noffn1")
    mksrd(sGW, 22, 1280)
    e("s_cmp_lg_u32 s%d, 5" % sW)
    e("s_cbranch_scc1 L_nog1")
    e("v_lshlrev_b32 v%d, 2, v%d" % (T0, vLane))
    for k in range(5):
        e("buffer_load_dword v%d, v%d, %s, 0 offen offset:%d" % (vGx+k, T0, srd(sX), 256*k))
        e("buffer_load_dword v%d, v%d, %s, 0 offen offset:%d" % (vGw+k, T0, srd(sGW), 256*k))
    g.lab("L_nog1")
    for i in range(NKF, NK0):
        stream_load(i, KS(i), sK, sKoff)
    mksrd(sV, 8, 402653184)
    mksrd(sWO, 12, 6144*640*2)
    mksrd(sWD, 20, 1536*640*2)
    mksrd(sOUT, 24, 1280)
    mksrd(sWS, 28, WS_END)
    e("v_mov_b32 v%d, %d" % (T0, L_FL))
    e("v_mov_b32 v%d, 0" % T1)
    e("v_mov_b32 v%d, 0" % T2)
    e("ds_write_b64 v%d, v[%d:%d]" % (T0, T1, T2))
    e("ds_write_b64 v%d, v[%d:%d] offset:8" % (T0, T1, T2))
    e("s_waitcnt lgkmcnt(0)")
    e("s_barrier")

    e("s_waitcnt vmcnt(%d)" % (NK0 - NKF))
    stamp(2)
    def vecmat_step(acc, d, xl, xh, first, n=3):
        for k in range(n):
            c0 = "0" if first else "v%d" % (acc+2*k)
            c1 = "0" if first else "v%d" % (acc+2*k+1)
            e("v_dot2_f32_bf16 v%d, v%d, v%d, %s" % (acc+2*k, d+k, xl, c0))
            e("v_dot2_f32_bf16 v%d, v%d, v%d, %s" % (acc+2*k+1, d+k, xh, c1))
    for i in range(5):
        e("v_lshlrev_b32 v%d, 16, v%d" % (vP0+i, vXq+i))
    for i in range(5):
        e("v_lshlrev_b32 v%d, 16, v%d" % (vP0+5+i, vXf+i))
    for i in range(5):
        vecmat_step(vAcc, vWQd+4*i, vXq+i, vP0+i, i == 0)
    for i in range(5):
        vecmat_step(vAccF, vFd+4*i, vXf+i, vP0+5+i, i == 0)
    e("s_lshl_b32 s%d, s%d, 1" % (sA, sW))
    e("v_add_u32 v%d, s%d, v%d" % (T0, sA, vHalf))
    e("v_mul_u32_u24 v%d, 1536, v%d" % (T0, T0))
    e("v_mul_u32_u24 v%d, 24, v%d" % (T1, vC))
    e("v_add_u32 v%d, v%d, v%d" % (T0, T0, T1))
    e("s_nop 1")
    for k in range(3):
        e("ds_write_b64 v%d, v[%d:%d] offset:%d" % (T0, vAcc+2*k, vAcc+2*k+1, L_QP + 8*k))
    for k in range(3):
        e("ds_write_b64 v%d, v[%d:%d] offset:%d" % (T0, vAccF+2*k, vAccF+2*k+1, L_QP + 768 + 8*k))
    e("s_cmp_lg_u32 s%d, 5" % sW)
    e("s_cbranch_scc1 L_nog2")
    t0, t1, t2, t3 = vTmp, vTmp+1, vTmp+2, vTmp+3
    e("v_mov_b32 v%d, 0" % t3)
    for k in range(5):
        e("v_lshlrev_b32 v%d, 16, v%d" % (t0, vGx+k))
        e("v_lshlrev_b32 v%d, 16, v%d" % (t1, vGw+k))
        e("v_mul_f32 v%d, v%d, v%d" % (t0, t0, t1))
        e("v_and_b32 v%d, 0xffff0000, v%d" % (t1, vGx+k))
        e("v_and_b32 v%d, 0xffff0000, v%d" % (t2, vGw+k))
        e("v_mul_f32 v%d, v%d, v%d" % (t1, t1, t2))
        e("v_cvt_pk_bf16_f32 v%d, v%d, v%d" % (t0, t0, t1))
        e("v_and_b32 v%d, 0xffff0000, v%d" % (t1, t0))
        e("v_lshlrev_b32 v%d, 16, v%d" % (t0, t0))
        e("v_add_f32 v%d, v%d, v%d" % (t3, t3, t0))
        e("v_add_f32 v%d, v%d, v%d" % (t3, t3, t1))
    def wave_reduce(op, v, t):
        e("s_nop 1")
        e("%s_dpp v%d, v%d, v%d quad_perm:[1,0,3,2] row_mask:0xf bank_mask:0xf" % (op, v, v, v))
        e("s_nop 1")
        e("%s_dpp v%d, v%d, v%d quad_perm:[2,3,0,1] row_mask:0xf bank_mask:0xf" % (op, v, v, v))
        e("s_nop 1")
        e("%s_dpp v%d, v%d, v%d row_half_mirror row_mask:0xf bank_mask:0xf" % (op, v, v, v))
        e("s_nop 1")
        e("%s_dpp v%d, v%d, v%d row_mirror row_mask:0xf bank_mask:0xf" % (op, v, v, v))
        e("v_mov_b32 v%d, v%d" % (t, v))
        e("s_nop 1")
        e("v_permlane16_swap_b32 v%d, v%d" % (v, t))
        e("s_nop 1")
        e("%s v%d, v%d, v%d" % (op, v, v, t))
        e("v_mov_b32 v%d, v%d" % (t, v))
        e("s_nop 1")
        e("v_permlane32_swap_b32 v%d, v%d" % (v, t))
        e("s_nop 1")
        e("%s v%d, v%d, v%d" % (op, v, v, t))
    wave_reduce("v_add_f32", t3, t0)
    def rne(v):
        e("v_cvt_pk_bf16_f32 v%d, v%d, v%d" % (v, v, v))
        e("v_and_b32 v%d, 0xffff0000, v%d" % (v, v))
    rne(t3)
    e("v_mul_f32 v%d, s%d, v%d" % (t3, sLog2e, t3))
    e("v_sub_f32 v%d, 0, v%d" % (t3, t3))
    e("v_exp_f32 v%d, v%d" % (t3, t3))
    e("s_nop 0")
    e("v_add_f32 v%d, 1.0, v%d" % (t3, t3))
    e("v_rcp_f32 v%d, v%d" % (t3, t3))
    e("s_nop 0")
    rne(t3)
    e("v_sub_f32 v%d, 1.0, v%d" % (t2, t3))
    rne(t2)
    e("v_mov_b32 v%d, v%d" % (t0, t3))
    e("v_mov_b32 v%d, v%d" % (t1, t2))
    e("v_mov_b32 v%d, %d" % (t3, L_GB))
    e("ds_write_b64 v%d, v[%d:%d]" % (t3, t0, t1))
    g.lab("L_nog2")
    e("s_waitcnt lgkmcnt(0)")
    e("v_mov_b32 v%d, %d" % (T0, L_CN))
    e("v_mov_b32 v%d, 1" % T1)
    e("s_mov_b64 exec, 1")
    e("ds_add_u32 v%d, v%d" % (T0, T1))
    e("s_mov_b64 exec, -1")
    e("s_add_u32 s%d, s%d, 1" % (sT, sT))
    e("s_sub_u32 s%d, s%d, 2" % (sB, sW))
    e("s_cmp_ge_u32 s%d, 3" % sB)
    e("s_cbranch_scc1 L_krest")
    e("s_setprio 3")
    e("s_mov_b32 s%d, 0" % sCnt)
    g.lab("L_await")
    e("ds_read_b32 v%d, v%d" % (T1, T0))
    e("s_waitcnt lgkmcnt(0)")
    e("v_readfirstlane_b32 s%d, v%d" % (sB, T1))
    e("s_cmp_eq_u32 s%d, 8" % sB)
    e("s_cbranch_scc1 L_aready")
    e("s_add_u32 s%d, s%d, 1" % (sCnt, sCnt))
    e("s_cmp_gt_u32 s%d, 4000000" % sCnt)
    e("s_cbranch_scc1 L_aready")
    e("s_branch L_await")
    g.lab("L_aready")
    e("v_subrev_u32 v%d, 128, v%d" % (T2, vTid))
    e("v_lshlrev_b32 v%d, 3, v%d" % (T0, T2))
    for k in range(16):
        e("ds_read_b64 v[%d:%d], v%d offset:%d" % (vTmp+2*k, vTmp+2*k+1, T0, L_QP + 1536*k))
    for k in range(1, 16):
        e("s_waitcnt lgkmcnt(%d)" % (15-k))
        e("v_add_f32 v%d, v%d, v%d" % (vTmp, vTmp, vTmp+2*k))
        e("v_add_f32 v%d, v%d, v%d" % (vTmp+1, vTmp+1, vTmp+2*k+1))
    e("v_mov_b32 v%d, v%d" % (vTmp+2, vTmp+1))
    e("v_mov_b32 v%d, s%d" % (vTmp+1, sT))
    e("v_mov_b32 v%d, s%d" % (vTmp+3, sT))
    e("s_mul_i32 s%d, s%d, 3072" % (sA, sJ))
    e("s_add_u32 s%d, s%d, %d" % (sA, sA, WS_Q))
    e("v_lshlrev_b32 v%d, 4, v%d" % (T0, T2))
    e("s_and_b32 s%d, s%d, 1" % (sB, sJ))
    e("s_cmp_eq_u32 s%d, %d" % (sB, PAR))
    e("s_cselect_b32 s%d, 2, 1" % sB)
    e("s_mul_i32 s%d, s%d, 96" % (sB, sB))
    e("v_cmp_gt_u32 vcc, s%d, v%d" % (sB, T2))
    e("s_and_saveexec_b64 s[88:89], vcc")
    e("s_cbranch_execz L_nopst")
    e("buffer_store_dwordx4 v[%d:%d], v%d, %s, s%d offen sc1" % (vTmp, vTmp+3, T0, srd(sWS), sA))
    g.lab("L_nopst")
    e("s_mov_b64 exec, s[88:89]")
    e("s_setprio 0")
    stamp(4)
    g.lab("L_krest")
    if opt.get("prio", 1):
        e("s_cmp_ge_u32 s%d, 2" % sW)
        e("s_cbranch_scc1 L_noprio")
        e("s_setprio 2")
        g.lab("L_noprio")
    BK = opt.get("bk", 0)
    for i in range(NK0, 24):
        stream_load(i, KS(i), sK, sKoff)
        if BK and (i + 1) % BK == 0 and i < 23: e("s_barrier")
    if opt.get("bk1", 1): e("s_barrier")
    NV1 = opt.get("nv1", 16)
    BV = opt.get("bv", 0)
    for i in range(NV1):
        stream_load(i, VS(i), sV, sVoff)
        if BV and (i + 1) % BV == 0: e("s_barrier")
    e("s_cmp_ge_u32 s%d, 2" % sW)
    e("s_cbranch_scc1 L_nocomm")
    PA = vTmp
    PF = 12
    vB_, vF_ = 9, 10
    e("s_mul_i32 s%d, s%d, 3072" % (sA, sH))
    e("s_add_u32 s%d, s%d, %d" % (sA, sA, WS_Q))
    e("s_mov_b32 s%d, 0" % sCnt)
    e("s_cmp_eq_u32 s%d, 1" % sW)
    e("s_cbranch_scc1 L_commB")
    e("v_bfe_u32 v%d, v%d, 3, 1" % (vF_, vLane))
    e("v_mul_u32_u24 v%d, %d, v%d" % (vF_, 8*8*2*3072, vF_))
    e("v_and_b32 v%d, 7, v%d" % (T0, vLane))
    e("v_mul_u32_u24 v%d, 6144, v%d" % (T0, T0))
    e("v_add_u32 v%d, v%d, v%d" % (vF_, vF_, T0))
    e("v_lshrrev_b32 v%d, 4, v%d" % (T0, vLane))
    e("v_and_b32 v%d, 1, v%d" % (T1, T0))
    e("v_lshl_add_u32 v11, v%d, 4, v%d" % (T1, vF_))
    e("v_add_u32 v11, 64, v11")
    e("v_lshl_add_u32 v%d, v%d, 4, v%d" % (vF_, T0, vF_))
    e("s_lshl_b32 s%d, s%d, 2" % (sB, sH))
    e("s_lshr_b32 s%d, s%d, 1" % (sC, sS))
    e("s_add_u32 s%d, s%d, s%d" % (sB, sB, sC))
    e("s_lshr_b32 s%d, s%d, 4" % (sC, sB))
    e("s_mul_i32 s%d, s%d, %d" % (sC, sC, 8*2*3072))
    e("s_and_b32 s%d, s%d, 15" % (sB, sB))
    e("s_mul_i32 s%d, s%d, 96" % (sB, sB))
    e("s_add_u32 s%d, s%d, s%d" % (sB, sB, sC))
    e("s_add_u32 s%d, s%d, %d" % (sB, sB, WS_Q + 1536 + PAR*3072))
    g.lab("L_poll0")
    e("s_mov_b32 s%d, s%d" % (sC, sA))
    for n in range(8):
        e("buffer_load_dwordx4 v[%d:%d], v%d, %s, s%d offen sc1" % (PA+4*n, PA+4*n+3, vOff16, srd(sWS), sC))
        if n < 7: e("s_add_u32 s%d, s%d, %d" % (sC, sC, 32*3072))
    e("buffer_load_dwordx4 v[%d:%d], v%d, %s, s%d offen sc1" % (PF, PF+3, vF_, srd(sWS), sB))
    e("buffer_load_dwordx4 v[%d:%d], v11, %s, s%d offen sc1" % (PF+4, PF+7, srd(sWS), sB))
    e("s_waitcnt vmcnt(0)")
    tagcheck([PA+4*n for n in range(8)] + [PF+4*n for n in range(2)], T0, T1)
    pollend("L_poll0", T0)
    for n in range(1, 8):
        e("v_add_f32 v%d, v%d, v%d" % (PA, PA, PA+4*n))
        e("v_add_f32 v%d, v%d, v%d" % (PA+2, PA+2, PA+4*n+2))
    e("v_cvt_pk_bf16_f32 v%d, v%d, v%d" % (PA, PA, PA+2))
    e("v_lshlrev_b32 v%d, 2, v%d" % (T0, vLane))
    e("ds_write_b32 v%d, v%d offset:%d" % (T0, PA, L_QB))
    vals = [PF, PF+2, PF+4, PF+6]
    for mode in ("quad_perm:[1,0,3,2]", "quad_perm:[2,3,0,1]", "row_half_mirror"):
        e("s_nop 1")
        for v in vals:
            e("v_add_f32_dpp v%d, v%d, v%d %s row_mask:0xf bank_mask:0xf" % (v, v, v, mode))
    ups = [PF+1, PF+3, PF+5, PF+7]
    e("s_nop 1")
    for v, u in zip(vals, ups):
        e("v_mov_b32_dpp v%d, v%d row_ror:8 row_mask:0xf bank_mask:0xf" % (u, v))
    for v, u in zip(vals, ups):
        rne(v); rne(u)
        e("v_max_f32 v%d, 0, v%d" % (v, v))
        e("v_mul_f32 v%d, v%d, v%d" % (v, v, u))
        rne(v)
    e("v_lshrrev_b32 v%d, 4, v%d" % (T0, vLane))
    e("v_lshlrev_b32 v%d, 3, v%d" % (T0, T0))
    e("s_mov_b32 exec_lo, 0x00010001")
    e("s_mov_b32 exec_hi, 0x00010001")
    e("ds_write_b32 v%d, v%d offset:%d" % (T0, PF, L_HB))
    e("ds_write_b32 v%d, v%d offset:%d" % (T0, PF+2, L_HB + 4))
    e("s_mov_b32 exec_hi, 0")
    e("ds_write_b32 v%d, v%d offset:%d" % (T0, PF+4, L_HB + 32))
    e("ds_write_b32 v%d, v%d offset:%d" % (T0, PF+6, L_HB + 36))
    e("s_mov_b64 exec, -1")
    e("v_mov_b32 v%d, 0" % (T1))
    e("v_mov_b32 v%d, %d" % (T0, L_HB))
    for k in range(4):
        e("ds_write_b32 v%d, v%d offset:%d" % (T0, T1, 48 + 4*k))
    e("s_branch L_commdone")
    g.lab("L_commB")
    e("v_lshlrev_b32 v%d, 4, v%d" % (vB_, vC))
    e("v_add_u32 v%d, 1024, v%d" % (vB_, vB_))
    g.lab("L_poll0b")
    e("s_mov_b32 s%d, s%d" % (sC, sA))
    for n in range(8):
        e("buffer_load_dwordx4 v[%d:%d], v%d, %s, s%d offen sc1" % (PA+4*n, PA+4*n+3, vB_, srd(sWS), sC))
        if n < 7: e("s_add_u32 s%d, s%d, %d" % (sC, sC, 32*3072))
    e("s_waitcnt vmcnt(0)")
    tagcheck([PA+4*n for n in range(8)], T0, T1)
    pollend("L_poll0b", T0)
    for n in range(1, 8):
        e("v_add_f32 v%d, v%d, v%d" % (PA, PA, PA+4*n))
        e("v_add_f32 v%d, v%d, v%d" % (PA+2, PA+2, PA+4*n+2))
    e("v_cvt_pk_bf16_f32 v%d, v%d, v%d" % (PA, PA, PA+2))
    e("v_lshlrev_b32 v%d, 2, v%d" % (T1, vC))
    e("ds_write_b32 v%d, v%d offset:%d" % (T1, PA, L_QB + 256))
    g.lab("L_commdone")
    stamp(4)
    e("s_waitcnt lgkmcnt(0)")
    e("v_mov_b32 v%d, %d" % (T0, L_FL))
    e("v_mov_b32 v%d, 1" % T1)
    e("s_mov_b64 exec, 1")
    e("ds_add_u32 v%d, v%d" % (T0, T1))
    e("s_mov_b64 exec, -1")
    g.lab("L_nocomm")
    vWO = 32
    vKG = 20
    vCH = 23
    for t in range(3):
        e("v_add_u32 v%d, %d, v%d" % (T0, 64*t, vLane))
        e("v_mul_u32_u24 v%d, 2731, v%d" % (vKG+t, T0))
        e("v_lshrrev_b32 v%d, 16, v%d" % (vKG+t, vKG+t))
        e("v_mul_u32_u24 v%d, 24, v%d" % (T1, vKG+t))
        e("v_sub_u32 v%d, v%d, v%d" % (vCH+t, T0, T1))
    vSA = 26
    e("s_mul_i32 s%d, s%d, %d" % (sA, sW, SSTR))
    e("s_add_u32 s%d, s%d, %d" % (sA, sA, L_S))
    for t in range(3):
        e("v_mul_u32_u24 v%d, 112, v%d" % (T0, vKG+t))
        e("v_lshl_add_u32 v%d, v%d, 2, v%d" % (T0, vCH+t, T0))
        e("v_add_u32 v%d, s%d, v%d" % (vSA+t, sA, T0))
    e("v_mov_b32 v%d, %d" % (T0, L_FL))
    e("s_mov_b32 s%d, 0" % sCnt)
    g.lab("L_qwait")
    e("ds_read_b32 v%d, v%d" % (T1, T0))
    e("s_waitcnt lgkmcnt(0)")
    e("v_readfirstlane_b32 s%d, v%d" % (sB, T1))
    e("s_cmp_eq_u32 s%d, 2" % sB)
    e("s_cbranch_scc1 L_qready")
    e("s_add_u32 s%d, s%d, 1" % (sCnt, sCnt))
    e("s_cmp_gt_u32 s%d, 4000000" % sCnt)
    e("s_cbranch_scc1 L_qready")
    e("s_sleep 1")
    e("s_branch L_qwait")
    g.lab("L_qready")
    stamp(3)
    vQ = 8
    for t in range(3):
        e("v_lshlrev_b32 v%d, 4, v%d" % (T0, vCH+t))
        e("ds_read_b128 v[%d:%d], v%d offset:%d" % (vQ+4*t, vQ+4*t+3, T0, L_QB))
    e("s_waitcnt lgkmcnt(0)")
    vS = 29
    for i in range(24):
        e("s_waitcnt vmcnt(%d)" % (23 - i + NV1))
        t = vS + (i % 3)
        k = KS(i); q = vQ + 4*(i % 3)
        e("v_dot2_f32_bf16 v%d, v%d, v%d, 0" % (t, k, q))
        e("v_dot2_f32_bf16 v%d, v%d, v%d, v%d" % (t, k+1, q+1, t))
        e("v_dot2_f32_bf16 v%d, v%d, v%d, v%d" % (t, k+2, q+2, t))
        e("v_dot2_f32_bf16 v%d, v%d, v%d, v%d" % (t, k+3, q+3, t))
        if i >= 1:
            ip = i-1
            e("ds_write_b32 v%d, v%d offset:%d" % (vSA + ip % 3, vS + (ip % 3), 896*(ip//3)))
    e("s_nop 2")
    e("ds_write_b32 v%d, v%d offset:%d" % (vSA + 2, vS + 2, 896*7))
    for i in range(NV1, 24):
        stream_load(i, VS(i), sV, sVoff)
    e("v_mov_b32 v%d, %d" % (T0, L_C2))
    e("v_mov_b32 v%d, 1" % T1)
    e("s_mov_b64 exec, 1")
    e("ds_add_u32 v%d, v%d" % (T0, T1))
    e("s_mov_b64 exec, -1")
    stamp(1)
    vR = 64
    e("v_mul_u32_u24 v%d, 112, v%d" % (T0, vLane))
    e("v_add_u32 v%d, s%d, v%d" % (T0, sA, T0))
    e("s_waitcnt lgkmcnt(0)")
    for k in range(6):
        e("ds_read_b128 v[%d:%d], v%d offset:%d" % (vR+4*k, vR+4*k+3, T0, 16*k))
    e("s_waitcnt lgkmcnt(0)")
    for k in range(12):
        e("v_add_f32 v%d, v%d, v%d" % (vR+k, vR+k, vR+k+12))
    for k in range(6):
        e("v_add_f32 v%d, v%d, v%d" % (vR+k, vR+k, vR+k+6))
    for k in range(3):
        e("v_add_f32 v%d, v%d, v%d" % (vR+k, vR+k, vR+k+3))
    e("v_add_f32 v%d, v%d, v%d" % (vR, vR, vR+1))
    e("v_add_f32 v%d, v%d, v%d" % (vR, vR, vR+2))
    sc, mx, pp, tt = 8, 9, 10, 11
    e("v_mov_b32 v%d, v%d" % (sc, vR))
    rne(sc)
    e("v_mul_f32 v%d, 0x3d93cd3a, v%d" % (sc, sc))
    rne(sc)
    e("v_mov_b32 v%d, v%d" % (mx, sc))
    wave_reduce("v_max_f32", mx, tt)
    e("v_sub_f32 v%d, v%d, v%d" % (pp, sc, mx))
    e("v_mul_f32 v%d, s%d, v%d" % (pp, sLog2e, pp))
    e("v_exp_f32 v%d, v%d" % (pp, pp))
    e("s_nop 0")
    e("v_mov_b32 v%d, v%d" % (sc, pp))
    rne(sc)
    e("v_and_b32 v%d, 7, v%d" % (tt, vLane))
    e("v_lshlrev_b32 v%d, 5, v%d" % (tt, tt))
    e("v_lshrrev_b32 v%d, 3, v%d" % (T0, vLane))
    e("v_lshl_add_u32 v%d, v%d, 2, v%d" % (tt, T0, tt))
    e("s_lshl_b32 s%d, s%d, 8" % (sB, sW))
    e("v_add_u32 v%d, s%d, v%d" % (tt, sB, tt))
    e("ds_write_b32 v%d, v%d offset:%d" % (tt, sc, L_PT))
    wave_reduce("v_add_f32", pp, tt)
    e("s_lshl_b32 s%d, s%d, 3" % (sC, sW))
    e("v_mov_b32 v%d, s%d" % (tt, sC))
    e("v_mov_b32 v%d, v%d" % (sc, mx))
    e("v_mov_b32 v%d, v%d" % (mx, pp))
    e("ds_write_b64 v%d, v[%d:%d] offset:%d" % (tt, sc, mx, L_ST))
    vP = 64
    e("s_waitcnt lgkmcnt(0)")
    for t in range(3):
        e("v_lshlrev_b32 v%d, 5, v%d" % (T0, vKG+t))
        e("v_add_u32 v%d, s%d, v%d" % (T0, sB, T0))
        e("ds_read_b128 v[%d:%d], v%d offset:%d" % (vP+8*t, vP+8*t+3, T0, L_PT))
        e("ds_read_b128 v[%d:%d], v%d offset:%d" % (vP+8*t+4, vP+8*t+7, T0, L_PT + 16))
    e("s_waitcnt lgkmcnt(0)")
    vAc = 96
    vPl = 120
    def pv(extra):
        for i in range(24):
            t = i % 3; ii = i // 3
            e("v_lshrrev_b32 v%d, 16, v%d" % (vPl + (i % 4), vP+8*t+ii))
            e("s_waitcnt vmcnt(%d)" % (23 - i + extra))
            vecmat_step(vAc + 8*t, VS(i), vPl + (i % 4), vP+8*t+ii, ii == 0, n=4)
    pv(0)
    e("v_lshlrev_b32 v%d, 5, v%d" % (T0, vLane))
    e("v_add_u32 v%d, s%d, v%d" % (T0, sA, T0))
    e("s_nop 0")
    for t in range(3):
        e("ds_write_b128 v%d, v[%d:%d] offset:%d" % (T0, vAc+8*t, vAc+8*t+3, 2048*t))
        e("ds_write_b128 v%d, v[%d:%d] offset:%d" % (T0, vAc+8*t+4, vAc+8*t+7, 2048*t + 16))
    vWO = 32
    e("s_cmp_ge_u32 s%d, 5" % sW)
    e("s_cbranch_scc1 L_nowo")
    e("s_mov_b32 s%d, s%d" % (sCB, sW))
    e("s_cmp_eq_u32 s%d, 4" % sW)
    e("s_cbranch_scc1 L_wogo")
    e("v_mov_b32 v%d, %d" % (T2, L_C2))
    e("s_mov_b32 s%d, 0" % sCnt)
    g.lab("L_c2wait")
    e("ds_read_b32 v%d, v%d" % (T1, T2))
    e("s_waitcnt lgkmcnt(0)")
    e("v_readfirstlane_b32 s%d, v%d" % (sB, T1))
    e("s_cmp_eq_u32 s%d, 8" % sB)
    e("s_cbranch_scc1 L_wogo")
    e("s_add_u32 s%d, s%d, 1" % (sCnt, sCnt))
    e("s_cmp_gt_u32 s%d, 4000000" % sCnt)
    e("s_cbranch_scc1 L_wogo")
    e("s_sleep 1")
    e("s_branch L_c2wait")
    g.lab("L_wogo")
    e("v_lshrrev_b32 v%d, 3, v%d" % (T1, vLane))
    e("v_mul_u32_u24 v%d, 1280, v%d" % (T1, T1))
    e("v_and_b32 v%d, 7, v%d" % (T2, vLane))
    e("v_lshl_add_u32 v%d, v%d, 4, v%d" % (T1, T2, T1))
    e("s_and_b32 s%d, s%d, 1" % (sC, sS))
    e("s_mul_i32 s%d, s%d, 640" % (sC, sC))
    e("s_lshl_b32 s%d, s%d, 7" % (sB, sCB))
    e("s_add_u32 s%d, s%d, s%d" % (sC, sC, sB))
    e("s_lshr_b32 s%d, s%d, 1" % (sD, sS))
    e("s_mul_i32 s%d, s%d, 192" % (sB, sH))
    e("s_mul_i32 s88, s%d, 48" % sD)
    e("s_add_u32 s%d, s%d, s88" % (sB, sB))
    e("s_mul_i32 s%d, s%d, 1280" % (sB, sB))
    e("s_add_u32 s%d, s%d, s%d" % (sB, sB, sC))
    for i in range(6):
        e("buffer_load_dwordx4 v[%d:%d], v%d, %s, s%d offen%s" % (vWO+4*i, vWO+4*i+3, T1, srd(sWO), sB, NT))
        if i < 5: e("s_add_u32 s%d, s%d, 10240" % (sB, sB))
    e("s_lshl_b32 s%d, s%d, 2" % (sB, sH))
    e("s_add_u32 s%d, s%d, s%d" % (sB, sB, sD))
    e("s_mul_i32 s%d, s%d, 15360" % (sB, sB))
    e("s_add_u32 s%d, s%d, s%d" % (sB, sB, sC))
    e("buffer_load_dwordx4 v[%d:%d], v%d, %s, s%d offen%s" % (vWO+24, vWO+27, T1, srd(sWD), sB, NT))
    e("s_add_u32 s%d, s%d, 10240" % (sB, sB))
    e("s_mov_b32 exec_hi, 0")
    e("buffer_load_dwordx4 v[%d:%d], v%d, %s, s%d offen%s" % (vWO+28, vWO+31, T1, srd(sWD), sB, NT))
    e("s_mov_b64 exec, -1")
    g.lab("L_nowo")
    e("s_waitcnt lgkmcnt(0)")
    stamp(5)
    e("s_barrier")
    stamp(6)
    e("s_cmp_ge_u32 s%d, 6" % sW)
    e("s_cbranch_scc1 L_nopub2")
    vO = 64
    vG_ = 8
    e("v_and_b32 v%d, 7, v%d" % (vG_, vLane))
    e("v_lshrrev_b32 v%d, 3, v%d" % (T1, vTid))
    e("v_mul_u32_u24 v%d, %d, v%d" % (T0, SSTR, vG_))
    e("v_lshl_add_u32 v%d, v%d, 4, v%d" % (T0, T1, T0))
    e("v_add_u32 v%d, %d, v%d" % (T0, L_S, T0))
    e("v_lshlrev_b32 v%d, 3, v%d" % (T2, vG_))
    e("ds_read_b64 v[10:11], v%d offset:%d" % (T2, L_ST))
    for j in range(8):
        e("ds_read_b128 v[%d:%d], v%d offset:%d" % (vO+4*j, vO+4*j+3, T0, 768*j))
    e("s_waitcnt lgkmcnt(8)")
    M = 12
    e("v_mov_b32 v%d, v10" % M)
    def red8(op, regs):
        for mode in ("quad_perm:[1,0,3,2]", "quad_perm:[2,3,0,1]", "row_half_mirror"):
            e("s_nop 1")
            for v in regs:
                e("%s_dpp v%d, v%d, v%d %s row_mask:0xf bank_mask:0xf" % (op, v, v, v, mode))
    red8("v_max_f32", [M])
    e("v_sub_f32 v10, v10, v%d" % M)
    e("v_mul_f32 v10, s%d, v10" % sLog2e)
    e("v_exp_f32 v10, v10")
    e("s_waitcnt lgkmcnt(0)")
    for st in (4, 2, 1):
        for j in range(st):
            for c in range(4):
                e("v_add_f32 v%d, v%d, v%d" % (vO+4*j+c, vO+4*j+c, vO+4*(j+st)+c))
    for c in range(4):
        e("v_mul_f32 v%d, v%d, v10" % (vO+c, vO+c))
    e("v_mul_f32 v11, v11, v10")
    red8("v_add_f32", [vO, vO+1, vO+2, vO+3, 11])
    a0 = 16
    e("v_cmp_eq_u32 vcc, 1, v%d" % vG_)
    e("s_nop 1")
    e("v_cndmask_b32 v%d, v%d, v%d, vcc" % (a0, vO, vO+2))
    e("v_cndmask_b32 v%d, v%d, v%d, vcc" % (a0+2, vO+1, vO+3))
    e("v_lshl_add_u32 v%d, v%d, 1, v%d" % (T0, T1, vG_))
    e("v_cmp_eq_u32 vcc, 2, v%d" % vTid)
    e("s_nop 1")
    e("v_cndmask_b32 v%d, v%d, v%d, vcc" % (a0, a0, M))
    e("v_cndmask_b32 v%d, v%d, v11, vcc" % (a0+2, a0+2))
    e("v_mov_b32 v%d, 96" % T1)
    e("v_cndmask_b32 v%d, v%d, v%d, vcc" % (T0, T0, T1))
    e("v_cmp_gt_u32 s[88:89], 2, v%d" % vG_)
    e("s_or_b64 vcc, vcc, s[88:89]")
    e("v_mov_b32 v%d, s%d" % (a0+1, sT))
    e("v_mov_b32 v%d, s%d" % (a0+3, sT))
    e("s_lshl_b32 s%d, s%d, 11" % (sA, sJ))
    e("s_add_u32 s%d, s%d, %d" % (sA, sA, WS_O))
    e("v_lshlrev_b32 v%d, 4, v%d" % (T0, T0))
    e("s_and_saveexec_b64 s[88:89], vcc")
    e("buffer_store_dwordx4 v[%d:%d], v%d, %s, s%d offen sc1" % (a0, a0+3, T0, srd(sWS), sA))
    e("s_mov_b64 exec, s[88:89]")
    if opt.get("det", 0): stamp(2)
    g.lab("L_nopub2")
    NPOLL = 1
    e("s_cmp_ge_u32 s%d, 5" % sW)
    e("s_cbranch_scc1 L_poller")
    vWt = 88
    aA, aB = 96, 104
    e("v_lshrrev_b32 v%d, 3, v%d" % (T0, vLane))
    e("v_lshlrev_b32 v%d, 2, v%d" % (T0, T0))
    e("v_mov_b32 v%d, %d" % (T2, L_GB))
    for i in range(2):
        e("ds_read_b32 v%d, v%d offset:%d" % (vWt+6+i, T0, L_HB + 32*i))
    e("ds_read_b64 v[12:13], v%d" % T2)
    e("s_mul_i32 s%d, s%d, 2560" % (sA, sJ))
    e("s_lshl_b32 s%d, s%d, 9" % (sB, sCB))
    e("s_add_u32 s%d, s%d, s%d" % (sA, sA, sB))
    e("s_add_u32 s%d, s%d, %d" % (sA, sA, WS_R))
    e("v_and_b32 v14, 7, v%d" % vLane)
    e("v_lshlrev_b32 v14, 6, v14")
    e("v_lshrrev_b32 v15, 4, v%d" % vLane)
    e("v_lshl_add_u32 v14, v15, 4, v14")
    e("s_waitcnt vmcnt(0) lgkmcnt(0)")
    for i in (6, 7):
        if i == 7: e("s_mov_b32 exec_hi, 0")
        first = i == 6
        e("v_lshrrev_b32 v%d, 16, v%d" % (T1, vWt+i))
        for k in range(4):
            c0 = "0" if first else "v%d" % (aB+2*k)
            c1 = "0" if first else "v%d" % (aB+2*k+1)
            e("v_dot2_f32_bf16 v%d, v%d, v%d, %s" % (aB+2*k, vWO+4*i+k, T1, c0))
            e("v_dot2_f32_bf16 v%d, v%d, v%d, %s" % (aB+2*k+1, vWO+4*i+k, vWt+i, c1))
    e("s_mov_b64 exec, -1")
    e("s_nop 2")
    for k in range(8):
        e("v_mul_f32 v%d, v%d, v13" % (aB+k, aB+k))
    e("v_mov_b32 v%d, s%d" % (113, sT))
    e("v_mov_b32 v%d, s%d" % (115, sT))
    e("v_mov_b32 v%d, %d" % (T2, L_F2))
    e("s_mov_b32 s%d, 0" % sCnt)
    g.lab("L_wwait")
    e("ds_read_b32 v%d, v%d" % (T1, T2))
    e("s_waitcnt lgkmcnt(0)")
    e("v_readfirstlane_b32 s%d, v%d" % (sB, T1))
    e("s_cmp_lg_u32 s%d, 0" % sB)
    e("s_cbranch_scc1 L_wready")
    e("s_add_u32 s%d, s%d, 1" % (sCnt, sCnt))
    e("s_cmp_gt_u32 s%d, 4000000" % sCnt)
    e("s_cbranch_scc1 L_wready")
    e("s_branch L_wwait")
    g.lab("L_wready")
    stamp(7)
    for i in range(6):
        e("ds_read_b32 v%d, v%d offset:%d" % (vWt+i, T0, L_WB + 32*i))
    for i in range(6):
        e("s_waitcnt lgkmcnt(%d)" % (5-i))
        first = i == 0
        e("v_lshrrev_b32 v%d, 16, v%d" % (T1, vWt+i))
        for k in range(4):
            c0 = "0" if first else "v%d" % (aA+2*k)
            c1 = "0" if first else "v%d" % (aA+2*k+1)
            e("v_dot2_f32_bf16 v%d, v%d, v%d, %s" % (aA+2*k, vWO+4*i+k, T1, c0))
            e("v_dot2_f32_bf16 v%d, v%d, v%d, %s" % (aA+2*k+1, vWO+4*i+k, vWt+i, c1))
    e("s_nop 2")
    for k in range(8):
        e("v_fma_f32 v%d, v%d, v12, v%d" % (aA+k, aA+k, aB+k))
    e("s_nop 1")
    for k in range(4):
        e("v_permlane32_swap_b32 v%d, v%d" % (aA+k, aA+k+4))
    e("s_nop 1")
    for k in range(4):
        e("v_add_f32 v%d, v%d, v%d" % (aA+k, aA+k, aA+k+4))
    e("s_nop 1")
    for k in range(2):
        e("v_permlane16_swap_b32 v%d, v%d" % (aA+k, aA+k+2))
    e("s_nop 1")
    e("v_add_f32 v112, v%d, v%d" % (aA, aA+2))
    e("v_add_f32 v114, v%d, v%d" % (aA+1, aA+3))
    e("s_nop 1")
    e("v_add_f32_dpp v112, v112, v112 row_ror:8 row_mask:0xf bank_mask:0xf")
    e("v_add_f32_dpp v114, v114, v114 row_ror:8 row_mask:0xf bank_mask:0xf")
    e("s_mov_b32 exec_lo, 0x00ff00ff")
    e("s_mov_b32 exec_hi, 0x00ff00ff")
    e("buffer_store_dwordx4 v[112:115], v14, %s, s%d offen sc1" % (srd(sWS), sA))
    stamp(8)
    e("s_branch L_fin")
    g.lab("L_poller")
    e("s_cmp_lg_u32 s%d, 7" % sW)
    e("s_cbranch_scc1 L_fin")
    if NPOLL > 1:
        st = g.new("stg")
        e("s_cmp_eq_u32 s%d, 0" % sW)
        e("s_cbranch_scc1 %s" % st)
        e("s_sleep %d" % opt.get("stagn", 6))
        e("s_cmp_eq_u32 s%d, 1" % sW)
        e("s_cbranch_scc1 %s" % st)
        e("s_sleep %d" % opt.get("stagn", 6))
        g.lab(st)
    RING = opt.get("ring", 3)
    G1, G2, G4, G3 = 64, 68, 72, 76
    a1, a3 = 8, 10
    e("v_and_b32 v%d, 7, v%d" % (a3, vLane))
    e("v_lshlrev_b32 v%d, 16, v%d" % (a3, a3))
    e("v_lshrrev_b32 v%d, 3, v%d" % (T1, vLane))
    e("v_lshl_add_u32 v%d, v%d, 4, v%d" % (a1, T1, a3))
    e("s_lshl_b32 s%d, s%d, 11" % (sA, sH))
    e("s_add_u32 s%d, s%d, %d" % (sA, sA, WS_O))
    e("s_lshr_b32 s%d, s%d, 1" % (sB, sS))
    e("s_mul_i32 s%d, s%d, 384" % (sB, sB))
    e("s_add_u32 s%d, s%d, s%d" % (sB, sB, sA))
    e("s_mov_b32 s%d, 0" % sCnt)
    def RS(r): return 160 + 16*r
    def issue_set(r):
        b = RS(r)
        e("buffer_load_dwordx4 v[%d:%d], v%d, %s, s%d offen sc1" % (b, b+3, a1, srd(sWS), sB))
        e("buffer_load_dwordx4 v[%d:%d], v%d, %s, s%d offen offset:128 sc1" % (b+4, b+7, a1, srd(sWS), sB))
        e("buffer_load_dwordx4 v[%d:%d], v%d, %s, s%d offen offset:256 sc1" % (b+8, b+11, a1, srd(sWS), sB))
        e("buffer_load_dwordx4 v[%d:%d], v%d, %s, s%d offen offset:1536 sc1" % (b+12, b+15, a3, srd(sWS), sA))
    for r in range(RING):
        issue_set(r)
        if r < RING-1: e("s_sleep %d" % opt.get("rsl", 4))
    g.lab("L_poll1")
    for r in range(RING):
        b = RS(r)
        e("s_waitcnt vmcnt(%d)" % (4*(RING-1)))
        tagcheck([b, b+4, b+8, b+12], T1, T2)
        e("v_cmp_ne_u32 vcc, 0, v%d" % T1)
        e("s_nop 1")
        e("s_cmp_eq_u64 vcc, 0")
        e("s_cbranch_scc1 L_p1ok%d" % r)
        issue_set(r)
    e("s_add_u32 s%d, s%d, 1" % (sCnt, sCnt))
    e("s_cmp_lt_u32 s%d, 100000" % sCnt)
    e("s_cbranch_scc1 L_poll1")
    for r in range(RING):
        g.lab("L_p1ok%d" % r)
        b = RS(r)
        for (d, o) in ((G1, 0), (G1+2, 2), (G2, 4), (G2+2, 6), (G4, 8), (G4+2, 10), (G3, 12), (G3+2, 14)):
            e("v_mov_b32 v%d, v%d" % (d, b+o))
        if r < RING-1: e("s_branch L_p1done")
    g.lab("L_p1done")
    if opt.get("det", 0):
        stamp(2)
        e("s_mov_b32 s94, s%d" % sCnt)
    def red8(op, regs):
        for mode in ("quad_perm:[1,0,3,2]", "quad_perm:[2,3,0,1]", "row_half_mirror"):
            e("s_nop 1")
            for v in regs:
                e("%s_dpp v%d, v%d, v%d %s row_mask:0xf bank_mask:0xf" % (op, v, v, v, mode))
    Mx = 12
    e("v_mov_b32 v%d, v%d" % (Mx, G3))
    red8("v_max_f32", [Mx])
    e("v_sub_f32 v%d, v%d, v%d" % (Mx, G3, Mx))
    e("v_mul_f32 v%d, s%d, v%d" % (Mx, sLog2e, Mx))
    e("v_exp_f32 v%d, v%d" % (Mx, Mx))
    e("s_nop 0")
    rr = [G3+2, G1, G1+2, G2, G2+2, G4, G4+2]
    for v in rr:
        e("v_mul_f32 v%d, v%d, v%d" % (v, v, Mx))
    red8("v_add_f32", rr)
    e("v_rcp_f32 v%d, v%d" % (Mx, G3+2))
    e("v_lshrrev_b32 v%d, 3, v%d" % (T0, vLane))
    e("v_lshlrev_b32 v%d, 3, v%d" % (T0, T0))
    for v in rr[1:]:
        e("v_mul_f32 v%d, v%d, v%d" % (v, v, Mx))
    for Gx in (G1, G2, G4):
        e("v_cvt_pk_bf16_f32 v%d, v%d, v%d" % (Gx+2, Gx, Gx+2))
    for Gx in (G1, G2, G4):
        e("v_lshlrev_b32 v%d, 16, v%d" % (Gx, Gx+2))
        e("v_and_b32 v%d, 0xffff0000, v%d" % (Gx+1, Gx+2))
    e("s_mov_b32 exec_lo, 0x01010101")
    e("s_mov_b32 exec_hi, 0x01010101")
    for n, Gx in enumerate((G1, G2, G4)):
        e("ds_write_b64 v%d, v[%d:%d] offset:%d" % (T0, Gx, Gx+1, L_WB + 64*n))
    e("s_waitcnt lgkmcnt(0)")
    e("v_mov_b32 v%d, %d" % (T0, L_F2))
    e("v_mov_b32 v%d, 1" % T1)
    e("ds_write_b32 v%d, v%d" % (T0, T1))
    e("s_mov_b64 exec, -1")
    stamp(7)
    e("s_cmp_ge_u32 s%d, 160" % sJ)
    e("s_cbranch_scc1 L_fin")
    FR = 128
    e("v_bfe_u32 v%d, v%d, 1, 2" % (T0, vLane))
    e("v_lshlrev_b32 v%d, 3, v%d" % (T0, T0))
    e("v_bfe_u32 v%d, v%d, 3, 1" % (T1, vLane))
    e("v_add_u32 v%d, v%d, v%d" % (T0, T0, T1))
    e("v_lshrrev_b32 v%d, 4, v%d" % (T1, vLane))
    e("v_lshl_add_u32 v%d, v%d, 6, v%d" % (T0, T1, T0))
    e("v_mul_u32_u24 v%d, 2560, v%d" % (T0, T0))
    e("v_and_b32 v%d, 1, v%d" % (T1, vLane))
    e("v_lshl_add_u32 v%d, v%d, 4, v%d" % (T0, T1, T0))
    e("s_cmp_ge_u32 s%d, 80" % sJ)
    e("s_cselect_b32 s%d, 1, 0" % sB)
    e("s_mul_i32 s%d, s%d, 80" % (sA, sB))
    e("s_sub_u32 s%d, s%d, s%d" % (sA, sJ, sA))
    e("s_lshl_b32 s%d, s%d, 5" % (sA, sA))
    e("s_mul_i32 s%d, s%d, %d" % (sB, sB, 32*2560))
    e("s_add_u32 s%d, s%d, s%d" % (sA, sA, sB))
    e("s_add_u32 s40, s%d, %d" % (sA, WS_R))
    for n in range(1, 4):
        e("s_add_u32 s%d, s%d, 5120" % (40+n, 40+n-1))
    e("s_mov_b32 s%d, 0" % sC)
    if opt.get("pre2", 0): e("s_sleep %d" % opt.get("pre2", 0))
    e("s_mov_b32 s%d, 0" % sCnt)
    g.lab("L_poll2")
    for n in range(4):
        sk = g.new("sk")
        e("s_bitcmp1_b32 s%d, %d" % (sC, n))
        e("s_cbranch_scc1 %s" % sk)
        e("buffer_load_dwordx4 v[%d:%d], v%d, %s, s%d offen sc1" % (FR+4*n, FR+4*n+3, T0, srd(sWS), 40+n))
        g.lab(sk)
    e("s_waitcnt vmcnt(0)")
    for n in range(4):
        e("v_xor_b32 v%d, s%d, v%d" % (T1, sT, FR+4*n+1))
        e("v_xor_b32 v%d, s%d, v%d" % (T2, sT, FR+4*n+3))
        e("v_or_b32 v%d, v%d, v%d" % (T1, T1, T2))
        e("v_cmp_ne_u32 vcc, 0, v%d" % T1)
        e("s_nop 1")
        e("s_cmp_eq_u64 vcc, 0")
        e("s_cselect_b32 s%d, %d, 0" % (sB, 1 << n))
        e("s_or_b32 s%d, s%d, s%d" % (sC, sC, sB))
    e("s_cmp_eq_u32 s%d, 0xf" % sC)
    e("s_cbranch_scc1 L_p2done")
    e("s_add_u32 s%d, s%d, 1" % (sCnt, sCnt))
    e("s_cmp_lt_u32 s%d, 200000" % sCnt)
    e("s_cbranch_scc0 L_p2done")
    if SLEEP: e("s_sleep %d" % SLEEP)
    e("s_branch L_poll2")
    g.lab("L_p2done")
    for n in range(1, 4):
        e("v_add_f32 v%d, v%d, v%d" % (FR, FR, FR+4*n))
        e("v_add_f32 v%d, v%d, v%d" % (FR+2, FR+2, FR+4*n+2))
    for mode in ("quad_perm:[2,3,0,1]", "row_ror:4", "row_ror:8"):
        e("s_nop 1")
        for v in (FR, FR+2):
            e("v_add_f32_dpp v%d, v%d, v%d %s row_mask:0xf bank_mask:0xf" % (v, v, v, mode))
    for swap in ("v_permlane16_swap_b32", "v_permlane32_swap_b32"):
        e("v_mov_b32 v%d, v%d" % (FR+1, FR))
        e("v_mov_b32 v%d, v%d" % (FR+3, FR+2))
        e("s_nop 1")
        e("%s v%d, v%d" % (swap, FR, FR+1))
        e("%s v%d, v%d" % (swap, FR+2, FR+3))
        e("s_nop 1")
        e("v_add_f32 v%d, v%d, v%d" % (FR, FR, FR+1))
        e("v_add_f32 v%d, v%d, v%d" % (FR+2, FR+2, FR+3))
    e("v_cvt_pk_bf16_f32 v%d, v%d, v%d" % (FR, FR, FR+2))
    e("v_lshlrev_b32 v%d, 2, v%d" % (T0, vLane))
    e("s_lshl_b32 s%d, s%d, 3" % (sA, sJ))
    e("s_mov_b64 exec, 3")
    e("buffer_store_dword v%d, v%d, %s, s%d offen" % (FR, T0, srd(sOUT), sA))
    e("s_cmp_lg_u32 s%d, 0" % sJ)
    e("s_cbranch_scc1 L_fin")
    e("s_mov_b64 exec, 1")
    e("v_mov_b32 v%d, s%d" % (T0, sT))
    e("v_mov_b32 v%d, 0" % (T1))
    e("buffer_store_dword v%d, v%d, %s, 0 offen" % (T0, T1, srd(sWS)))
    g.lab("L_fin")
    stamp(9)
    stamp_flush()
    g.lab("L_end")
    e("s_endpgm")
    out += g.L
    out += ['.section .rodata,"a"', ".p2align 6", ".amdhsa_kernel %s_kernel" % KN,
        "  .amdhsa_next_free_vgpr 256", "  .amdhsa_next_free_sgpr 102", "  .amdhsa_accum_offset 256",
        "  .amdhsa_group_segment_fixed_size 0", "  .amdhsa_kernarg_size 104", "  .amdhsa_user_sgpr_count 2",
        "  .amdhsa_user_sgpr_kernarg_segment_ptr 1", "  .amdhsa_system_sgpr_workgroup_id_x 1", ".end_amdhsa_kernel", ""]
    return "\n".join(out)

if __name__ == "__main__":
    opt = {}
    outp = sys.argv[1]
    for a in sys.argv[2:]:
        k, v = a.split("=")
        opt[k] = int(v)
    open(outp, "w").write(gen(opt))
```
